```python
import torch

def _softmax(x, axis=-1):
    return torch.softmax(x, dim=axis)

def _gelu(x):
    return torch.nn.functional.gelu(x, approximate='tanh')

def _silu(x):
    return torch.nn.functional.silu(x)

def _sigmoid(x):
    return torch.sigmoid(x)

def _layernorm(x, axis=-1, eps=1e-05):
    m = x.mean(dim=axis, keepdim=True)
    v = x.var(dim=axis, keepdim=True, unbiased=False)
    return (x - m) / torch.sqrt(v + eps)

def _scatter_add(tgt, idx, src, axis=0):
    return tgt.clone().index_add_(axis, idx, src)

def _segment_sum(src, seg, n):
    out = torch.zeros((n,) + src.shape[1:], dtype=src.dtype)
    return out.index_add_(0, seg, src)

def _pad(x, pw):
    flat = tuple((v for pair in reversed(pw) for v in pair))
    return torch.nn.functional.pad(x, flat)
kernel_name = 'standalone__varlen_attn_packed__ragged'

def setup_inputs():

    _w = lambda a: (lambda t: t.to(torch.bfloat16) if t.is_floating_point() else t)(torch.as_tensor(a))
    cu = torch.tensor([0, 321, 555, 878, 1299, 1551, 1670, 1878, 2181, 2351, 2646, 2810, 3248, 3471, 3811, 4169, 4391], dtype=torch.int64)
    T, H, D = (int(cu[-1]), 16, 128)
    return {'q': _w((lambda *s: torch.randn(*s, dtype=torch.bfloat16) * 0.8)(T, H, D)), 'k': _w((lambda *s: torch.randn(*s, dtype=torch.bfloat16) * 0.8)(T, H, D)), 'v': _w((lambda *s: torch.randn(*s, dtype=torch.bfloat16) * 0.05)(T, H, D)), 'cu': _w(cu)}

def reference(q, k, v, cu):
    T, H, D = q.shape
    out = torch.zeros_like(q)
    scale = D ** (-0.5)
    outs = []
    for i in range(len(cu) - 1):
        s, e = (int(cu[i]), int(cu[i + 1]))
        qi, ki, vi = (q[s:e].clone(), k[s:e].clone(), v[s:e].clone())
        p = _softmax(torch.einsum('qhd,khd->hqk', qi, ki) * scale, axis=-1)
        outs.append(torch.einsum('hqk,khd->qhd', p, vi))
    return torch.concatenate(outs, axis=0)
```

```python
import sys, math
CU = [0, 321, 555, 878, 1299, 1551, 1670, 1878, 2181, 2351, 2646, 2810, 3248, 3471, 3811, 4169, 4391]
NAME = "standalone__varlen_attn_packed__ragged"
HEADER = open('cdna_kernels/%s.s.ref' % NAME).read().split('; Override launch')[0]

STAMP = '--stamp' in sys.argv

out = []
def e(s): out.append('    ' + s)
def lab(s): out.append(s + ':')
def c(s): out.append('    ; ' + s)

tasks = []
for s in range(16):
    L = CU[s+1]-CU[s]
    n = (L+31)//32
    for g in range((n+3)//4):
        nw = min(4, n-4*g)
        tasks.append((n, nw, s, g))
tasks.sort(key=lambda t: (-t[0], t[2], t[3]))
NT = len(tasks)
NWG = NT*2*8

SLOT = 8704
NK, NV = 5, 4
KBASE = 0
VBASE = NK*SLOT
LDS = (NK+NV)*SLOT
QSLOT = [KBASE+3*SLOT, KBASE+4*SLOT, VBASE+2*SLOT, VBASE+3*SLOT]

sQ, sK, sV, sO = 16, 20, 24, 28
sW = 32
sN = 33
sI = 34
sKoff = 35
sVoff = 36
sKslot = 37
sVslot = 38
sKrd = 39
sVrd = 40
sC = 41
sQoff = 42
sT0, sT1, sT2, sT3 = 43, 44, 45, 46
sKwc = 47
sVwc = 48
sRem = 49
sThr = 50
sKend = 51
sVend = 52
sNm1 = 53
vKg0, vKg1, vVg0, vVg1 = 1, 2, 3, 4
vA0c, vA1c, vAVc = 5, 6, 7
vA0, vA1, vAV = 8, 9, 10
vM, vMc, vL, vMthr = 11, 12, 13, 14
vT = 15
vQ = 16
vO = 48
vS = [112, 128]
vP = 144
vK = 152
vV = 184
vT2, vT3, vLane, vL2 = 216, 217, 218, 219
NVGPR = 220

def vr(b, n): return 'v[%d:%d]' % (b, b+n-1)
def sr(b, n): return 's[%d:%d]' % (b, b+n-1)

SCALE = 128 ** -0.5
CC = SCALE * math.log2(math.e)
import struct
def f2u(x): return struct.unpack('<I', struct.pack('<f', x))[0]
THR = 8.0 / CC

def dma_k():
    e('s_mov_b32 m0, s%d' % sKslot)
    e('s_add_u32 s%d, s%d, %d' % (sKslot, sKslot, SLOT))
    e('buffer_load_dwordx4 v%d, %s, s%d offen lds' % (vKg0, sr(sK,4), sKoff))
    e('buffer_load_dwordx4 v%d, %s, s%d offen offset:1040 lds' % (vKg1, sr(sK,4), sKoff))
    e('s_cmp_ge_u32 s%d, s%d' % (sKslot, sKend))
    e('s_cselect_b32 s%d, s%d, s%d' % (sKslot, sKwc, sKslot))
    e('s_add_u32 s%d, s%d, %d' % (sKoff, sKoff, 32*4096))
def dma_v():
    e('s_mov_b32 m0, s%d' % sVslot)
    e('s_add_u32 s%d, s%d, %d' % (sVslot, sVslot, SLOT))
    e('buffer_load_dwordx4 v%d, %s, s%d offen lds' % (vVg0, sr(sV,4), sVoff))
    e('buffer_load_dwordx4 v%d, %s, s%d offen offset:1088 lds' % (vVg1, sr(sV,4), sVoff))
    e('s_cmp_ge_u32 s%d, s%d' % (sVslot, sVend))
    e('s_cselect_b32 s%d, s%d, s%d' % (sVslot, sVwc, sVslot))
    e('s_add_u32 s%d, s%d, %d' % (sVoff, sVoff, 32*4096))

def kread(s, dst=vK):
    a = vA0 if s < 4 else vA1
    return 'ds_read_b128 %s, v%d offset:%d' % (vr(dst+4*s,4), a, 32*(s%4))
def vread(t, b, h):
    return 'ds_read_b64_tr_b16 %s, v%d offset:%d' % (vr(vV+(t*4+b)*4+2*h,2), vAV, h*512+t*4352+64*b)
def adv_k():
    return ['s_add_u32 s%d, s%d, %d' % (sKrd, sKrd, SLOT),
            's_cmp_ge_u32 s%d, %d' % (sKrd, KBASE+NK*SLOT),
            's_cselect_b32 s%d, %d, s%d' % (sKrd, KBASE, sKrd),
            'v_add_u32 v%d, s%d, v%d' % (vA0, sKrd, vA0c),
            'v_add_u32 v%d, s%d, v%d' % (vA1, sKrd, vA1c)]
def adv_v():
    return ['s_add_u32 s%d, s%d, %d' % (sVrd, sVrd, SLOT),
            's_cmp_ge_u32 s%d, %d' % (sVrd, VBASE+NV*SLOT),
            's_cselect_b32 s%d, %d, s%d' % (sVrd, VBASE, sVrd),
            'v_add_u32 v%d, s%d, v%d' % (vAV, sVrd, vAVc)]
def qk(s, S):
    return 'v_mfma_f32_32x32x16_bf16 %s, %s, %s, %s' % (vr(S,16), vr(vK+4*s,4), vr(vQ+4*s,4), '0' if s == 0 else vr(S,16))
def pv(t, b):
    return 'v_mfma_f32_32x32x16_bf16 %s, %s, %s, %s' % (vr(vO+16*b,16), vr(vV+(t*4+b)*4,4), vr(vP+4*t,4), vr(vO+16*b,16))

def softmax_ops(S):
    ops = []
    fm = lambda r: 'v_fma_f32 v%d, v%d, s%d, -v%d' % (S+r, S+r, sC, vMc)
    ex = lambda r: 'v_exp_f32 v%d, v%d' % (S+r, S+r)
    ad = lambda r: 'v_add_f32 v%d, v%d, v%d' % ((vL if r % 2 == 0 else vL2), (vL if r % 2 == 0 else vL2), S+r)
    cv = lambda r: 'v_cvt_pk_bf16_f32 v%d, v%d, v%d' % (vP+r//2, S+r, S+r+1)
    ops += [fm(0), fm(1)]
    for p in range(8):
        r = 2*p
        ops += [ex(r), ex(r+1)]
        if p < 7: ops += [fm(r+2), fm(r+3)]
        else: ops += ['s_nop 0']
        ops += [ad(r), cv(r), ad(r+1)] if False else [ad(r), ad(r+1), cv(r)]
    return ops

def max_ops(S):
    ops = ['v_max3_f32 v%d, v%d, v%d, v%d' % (vT, S, S+1, S+2),
           'v_max3_f32 v%d, v%d, v%d, v%d' % (vT2, S+3, S+4, S+5)]
    ops += ['v_max3_f32 v%d, v%d, v%d, v%d' % (vT, vT, S+6, S+7),
            'v_max3_f32 v%d, v%d, v%d, v%d' % (vT2, vT2, S+8, S+9),
            'v_max3_f32 v%d, v%d, v%d, v%d' % (vT, vT, S+10, S+11),
            'v_max3_f32 v%d, v%d, v%d, v%d' % (vT2, vT2, S+12, S+13),
            'v_max3_f32 v%d, v%d, v%d, v%d' % (vT, vT, S+14, S+15),
            'v_max_f32 v%d, v%d, v%d' % (vT, vT, vT2)]
    return ops

def mask_ops(S):
    for r in range(16):
        e('v_cmp_lt_i32 vcc, %d, v%d' % (8*(r//4)+r%4, vT3))
        e('s_nop 1')
        e('v_cndmask_b32 v%d, v%d, v%d, vcc' % (S+r, vT2, S+r))

def stamp(slot):
    if not STAMP: return
    e('s_memrealtime s[60:61]')
    e('s_waitcnt lgkmcnt(0)')
    e('v_mov_b32 v220, s60')
    e('v_mov_b32 v221, s61')
    e('v_mov_b32 v222, s62')
    e('s_mov_b64 s[64:65], exec')
    e('s_mov_b64 exec, 1')
    e('buffer_store_dwordx2 v[220:221], v222, s[56:59], 0 offen offset:%d' % (slot*8))
    e('s_mov_b64 exec, s[64:65]')

out.append(HEADER.rstrip())
out.append('; @launch grid=(%d,1,1) block=(256,1,1) lds=%d' % (NWG, LDS))
out.append('.amdgcn_target "amdgcn-amd-amdhsa--gfx950"')
out.append('.text')
out.append('.globl %s_kernel' % NAME)
out.append('.p2align 8')
out.append('.type %s_kernel,@function' % NAME)
lab('%s_kernel' % NAME)
e('s_cmp_ge_u32 s2, %d' % NWG)
e('s_cbranch_scc1 L_end')
e('s_load_dwordx4 s[4:7], s[0:1], 0')
e('s_load_dwordx2 s[8:9], s[0:1], 16')
e('s_load_dwordx2 s[12:13], s[0:1], 32')
if STAMP:
    e('s_load_dwordx2 s[56:57], s[0:1], 48')
e('s_getpc_b64 s[10:11]')
lab('L_pc')
e('s_lshr_b32 s3, s2, 4')
e('s_lshl_b32 s3, s3, 3')
e('s_add_u32 s3, s3, L_table-L_pc')
e('s_add_u32 s10, s10, s3')
e('s_addc_u32 s11, s11, 0')
e('s_load_dwordx2 s[14:15], s[10:11], 0')
e('v_and_b32 v%d, 63, v0' % vLane)
e('v_lshrrev_b32 v%d, 6, v0' % vT)
e('v_lshrrev_b32 v%d, 4, v%d' % (vT2, vLane))
e('v_readfirstlane_b32 s%d, v%d' % (sW, vT))
e('v_and_b32 v%d, 15, v%d' % (vT3, vLane))
e('v_lshrrev_b32 v%d, 5, v%d' % (vT, vLane))
e('v_lshlrev_b32 v%d, 3, v%d' % (vKg0, vT))
e('v_xor_b32 v%d, v%d, v%d' % (vKg0, vKg0, vT3))
e('v_lshlrev_b32 v%d, 4, v%d' % (vKg0, vKg0))
e('v_lshl_add_u32 v%d, v%d, 15, v%d' % (vKg0, vT2, vKg0))
e('v_lshlrev_b32 v%d, 4, v%d' % (vVg0, vT3))
e('v_lshl_add_u32 v%d, v%d, 14, v%d' % (vVg0, vT2, vVg0))
e('v_and_b32 v%d, 7, v%d' % (vA0c, vLane))
e('v_mul_u32_u24 v%d, 1040, v%d' % (vA0c, vA0c))
e('v_bfe_u32 v%d, v%d, 3, 2' % (vA1c, vLane))
e('v_lshl_add_u32 v%d, v%d, 8, v%d' % (vA0c, vA1c, vA0c))
e('v_lshl_add_u32 v%d, v%d, 4, v%d' % (vA0c, vT, vA0c))
e('v_and_b32 v%d, 1, v%d' % (vT2, vT2))
e('v_lshlrev_b32 v%d, 7, v%d' % (vA1c, vT2))
e('v_xor_b32 v%d, 128, v%d' % (vA1, vA1c))
e('v_add_u32 v%d, v%d, v%d' % (vA0, vA0c, vA1c))
e('v_add_u32 v%d, v%d, v%d' % (vA1c, vA0c, vA1))
e('v_mov_b32 v%d, v%d' % (vA0c, vA0))
e('v_bfe_u32 v%d, v%d, 2, 2' % (vAVc, vLane))
e('v_mul_u32_u24 v%d, 1088, v%d' % (vAVc, vAVc))
e('v_lshl_add_u32 v%d, v%d, 8, v%d' % (vAVc, vT, vAVc))
e('v_lshl_add_u32 v%d, v%d, 5, v%d' % (vAVc, vT2, vAVc))
e('v_and_b32 v%d, 3, v%d' % (vT2, vLane))
e('v_lshl_add_u32 v%d, v%d, 3, v%d' % (vAVc, vT2, vAVc))
e('s_mul_i32 s%d, s%d, %d' % (sKwc, sW, 2*1040))
e('s_mul_i32 s%d, s%d, %d' % (sVwc, sW, 2*1088))
e('s_add_u32 s%d, s%d, %d' % (sVwc, sVwc, VBASE))
e('s_add_u32 s%d, s%d, %d' % (sKend, sKwc, KBASE+NK*SLOT))
e('s_add_u32 s%d, s%d, %d' % (sVend, sVwc, NV*SLOT))
e('s_mov_b32 s%d, s%d' % (sKslot, sKwc))
e('s_mov_b32 s%d, s%d' % (sVslot, sVwc))
e('s_and_b32 s%d, s%d, 2' % (sT0, sW))
e('s_add_u32 s%d, s%d, s%d' % (sT0, sT0, sW))
e('s_add_u32 s%d, s%d, 3' % (sT0, sT0))
e('s_mul_i32 s%d, s%d, %d' % (sT0, sT0, SLOT))
e('v_mov_b32 v%d, v%d' % (vT2, vKg0))
e('s_lshl_b32 s%d, s%d, 13' % (sT1, sW))
e('v_add_u32 v%d, s%d, v%d' % (vKg0, sT1, vKg0))
e('v_add_u32 v%d, %d, v%d' % (vKg1, 4096-1040, vKg0))
e('s_lshr_b32 s%d, s%d, 1' % (sT1, sW))
e('s_lshl_b32 s%d, s%d, 16' % (sT1, sT1))
e('s_and_b32 s%d, s%d, 1' % (sT2, sW))
e('s_lshl_b32 s%d, s%d, 13' % (sT2, sT2))
e('s_add_u32 s%d, s%d, s%d' % (sT1, sT1, sT2))
e('v_add_u32 v%d, s%d, v%d' % (vVg0, sT1, vVg0))
e('v_add_u32 v%d, %d, v%d' % (vVg1, 4096-1088, vVg0))
e('s_mov_b32 s%d, 0x%08x' % (sC, f2u(CC)))
e('s_mov_b32 s%d, 0x%08x' % (sThr, f2u(THR)))
e('s_waitcnt lgkmcnt(0)')
e('s_and_b32 s%d, s14, 0xffff' % sT1)
e('s_lshr_b32 s%d, s14, 16' % sT2)
e('s_add_u32 s%d, s%d, s%d' % (sT3, sT1, sT2))
e('s_lshl_b32 s%d, s%d, 12' % (sT3, sT3))
for (sd, p) in ((sQ, 4), (sK, 6), (sV, 8), (sO, 12)):
    e('s_mov_b32 s%d, s%d' % (sd, p))
    e('s_and_b32 s%d, s%d, 0xffff' % (sd+1, p+1))
    e('s_mov_b32 s%d, s%d' % (sd+2, sT3))
    e('s_mov_b32 s%d, 0x20000' % (sd+3))
if STAMP:
    e('s_and_b32 s57, s57, 0xffff')
    e('s_mov_b32 s58, 0x1000000')
    e('s_mov_b32 s59, 0x20000')
    e('s_lshl_b32 s62, s2, 2')
    e('s_add_u32 s62, s62, s%d' % sW)
    e('s_lshl_b32 s62, s62, 6')
e('s_lshr_b32 s3, s15, 16')
e('s_add_u32 s3, s3, s2')
e('s_and_b32 s3, s3, 7')
e('s_and_b32 s14, s2, 8')
e('s_add_u32 s3, s3, s14')
e('s_lshl_b32 s3, s3, 8')
e('s_lshl_b32 s%d, s%d, 12' % (sKoff, sT1))
e('s_add_u32 s%d, s%d, s3' % (sKoff, sKoff))
e('s_mov_b32 s%d, s%d' % (sVoff, sKoff))
e('s_and_b32 s15, s15, 0xffff')
e('s_lshl_b32 s14, s%d, 5' % sW)
e('s_add_u32 s15, s15, s14')
e('s_lshl_b32 s%d, s15, 12' % sQoff)
e('s_add_u32 s%d, s%d, s3' % (sQoff, sQoff))
e('s_add_u32 s%d, s%d, 31' % (sN, sT2))
e('s_lshr_b32 s%d, s%d, 5' % (sN, sN))
e('s_sub_u32 s%d, s%d, 1' % (sNm1, sN))
e('s_lshl_b32 s%d, s%d, 5' % (sRem, sNm1))
e('s_sub_u32 s%d, s%d, s%d' % (sRem, sT2, sRem))
stamp(0)
e('s_mov_b32 s14, s%d' % sQoff)
for j in range(8):
    e('s_add_u32 m0, s%d, %d' % (sT0, j*1040))
    e('s_nop 0')
    e('buffer_load_dwordx4 v%d, %s, s14 offen lds' % (vT2, sr(sQ,4)))
    if j < 7: e('s_add_u32 s14, s14, 4096')
dma_k(); dma_k(); dma_v(); dma_k(); dma_v()
e('s_lshl_b32 s15, s15, 12')
e('s_cmp_ge_u32 s15, s%d' % (sO+2))
e('s_cbranch_scc1 L_idle')
e('v_lshrrev_b32 v%d, 5, v%d' % (vT3, vLane))
e('v_lshlrev_b32 v%d, 2, v%d' % (vT3, vT3))
e('v_sub_u32 v%d, s%d, v%d' % (vT3, sRem, vT3))
e('v_add_u32 v%d, s%d, v%d' % (vA0, sT0, vA0c))
e('v_add_u32 v%d, s%d, v%d' % (vA1, sT0, vA1c))
for r in range(64):
    e('v_mov_b32 v%d, 0' % (vO+r))
e('v_mov_b32 v%d, 0' % vL)
e('v_mov_b32 v%d, 0' % vL2)
e('s_waitcnt vmcnt(10)')
for s in range(8): e(kread(s, vQ))
e('s_waitcnt lgkmcnt(0)')
e('s_mov_b32 s%d, %d' % (sKrd, KBASE))
e('s_mov_b32 s%d, %d' % (sVrd, VBASE))
e('v_add_u32 v%d, s%d, v%d' % (vA0, sKrd, vA0c))
e('v_add_u32 v%d, s%d, v%d' % (vA1, sKrd, vA1c))
e('v_add_u32 v%d, s%d, v%d' % (vAV, sVrd, vAVc))
e('s_waitcnt vmcnt(6)')
e('s_barrier')
stamp(1)
for s in range(8): e(kread(s))
dma_k(); dma_v(); dma_k()
for s in range(8):
    e('s_waitcnt lgkmcnt(%d)' % (7-s))
    e(qk(s, vS[0]))
for x in adv_k(): e(x)
for s in range(8): e(kread(s))
for x in adv_k(): e(x)
e('s_nop 7')
for x in max_ops(vS[0]): e(x)
e('v_mov_b32 v%d, v%d' % (vT2, vT))
e('s_nop 1')
e('v_permlane32_swap_b32 v%d, v%d' % (vT, vT2))
e('s_nop 1')
e('v_max_f32 v%d, v%d, v%d' % (vM, vT, vT2))
e('v_mul_f32 v%d, s%d, v%d' % (vMc, sC, vM))
e('v_add_f32 v%d, s%d, v%d' % (vMthr, sThr, vM))
e('s_mov_b32 s%d, 0' % sI)

def step(par):
    Sc, Sn = vS[par], vS[1-par]
    lab('L_step%d' % par)
    e('s_waitcnt vmcnt(%d)' % (8 + (1 if False else 0)))
    e('s_barrier')
    dma_k(); dma_v()
    sm = softmax_ops(Sc)
    vreads = [vread(t, b, h) for t in range(2) for b in range(4) for h in range(2)]
    e('s_waitcnt lgkmcnt(0)')
    idx = 0
    per_gap_x = [5, 5, 5, 5, 5, 5, 5, 5]
    for s in range(8):
        e(qk(s, Sn))
        e(vreads[2*s]); e(vreads[2*s+1])
        for k in range(per_gap_x[s]):
            e(sm[idx]); idx += 1
    for x in adv_v(): e(x)
    rest = sm[idx:]
    kreads = [kread(s) for s in range(8)]
    e('s_waitcnt lgkmcnt(8)')
    n = len(rest)
    q = [rest[(n*k)//4:(n*(k+1))//4] for k in range(4)]
    for b in range(4):
        e(pv(0, b))
        for x in q[b]: e(x)
    e('s_waitcnt lgkmcnt(0)')
    e('s_nop 0')
    mx = max_ops(Sn)
    e(pv(1, 0))
    for x in kreads[0:4]: e(x)
    e(pv(1, 1))
    for x in kreads[4:8]: e(x)
    for x in adv_k(): e(x)
    e('s_add_u32 s%d, s%d, 1' % (sI, sI))
    e('s_cmp_eq_u32 s%d, s%d' % (sI, sNm1))
    e('s_cbranch_scc0 L_nomask%d' % par)
    e('v_mov_b32 v%d, 0xff800000' % vT2)
    mask_ops(Sn)
    lab('L_nomask%d' % par)
    e(pv(1, 2))
    for x in mx[0:4]: e(x)
    e(pv(1, 3))
    for x in mx[4:]: e(x)
    e('s_cmp_ge_u32 s%d, s%d' % (sI, sN))
    e('s_cbranch_scc1 L_epi')
    e('v_cmp_gt_f32 vcc, v%d, v%d' % (vT, vMthr))
    e('s_cbranch_vccz L_step%d' % (1-par))
    e('v_mov_b32 v%d, v%d' % (vT2, vT))
    e('s_nop 1')
    e('v_permlane32_swap_b32 v%d, v%d' % (vT, vT2))
    e('s_nop 1')
    e('v_max3_f32 v%d, v%d, v%d, v%d' % (vT, vT, vT2, vM))
    e('v_sub_f32 v%d, v%d, v%d' % (vT2, vM, vT))
    e('v_mul_f32 v%d, s%d, v%d' % (vT2, sC, vT2))
    e('v_exp_f32 v%d, v%d' % (vT2, vT2))
    e('v_mov_b32 v%d, v%d' % (vM, vT))
    e('v_mul_f32 v%d, s%d, v%d' % (vMc, sC, vM))
    e('v_add_f32 v%d, s%d, v%d' % (vMthr, sThr, vM))
    e('v_mul_f32 v%d, v%d, v%d' % (vL, vL, vT2))
    e('v_mul_f32 v%d, v%d, v%d' % (vL2, vL2, vT2))
    e('s_nop 7')
    for r in range(64):
        e('v_mul_f32 v%d, v%d, v%d' % (vO+r, vO+r, vT2))
    if par == 1:
        e('s_branch L_step0')
step(0)
step(1)

lab('L_epi')
stamp(2)
e('v_add_f32 v%d, v%d, v%d' % (vL, vL, vL2))
e('v_mov_b32 v%d, v%d' % (vT2, vL))
e('s_nop 1')
e('v_permlane32_swap_b32 v%d, v%d' % (vL, vT2))
e('s_nop 1')
e('v_add_f32 v%d, v%d, v%d' % (vL, vL, vT2))
e('v_rcp_f32 v%d, v%d' % (vL, vL))
e('v_and_b32 v%d, 31, v%d' % (vT, vLane))
e('v_lshlrev_b32 v%d, 12, v%d' % (vT, vT))
e('v_lshrrev_b32 v%d, 5, v%d' % (vT2, vLane))
e('v_lshl_add_u32 v%d, v%d, 4, v%d' % (vT, vT2, vT))
e('s_nop 7')
for b in range(4):
    for gp in range(2):
        base = vO + 16*b + 8*gp
        for k in range(8):
            e('v_mul_f32 v%d, v%d, v%d' % (base+k, base+k, vL))
        d = vK + (b*2+gp)*4
        for k in range(4):
            e('v_cvt_pk_bf16_f32 v%d, v%d, v%d' % (d+k, base+2*k, base+2*k+1))
        e('s_nop 1')
        e('v_permlane32_swap_b32 v%d, v%d' % (d, d+2))
        e('v_permlane32_swap_b32 v%d, v%d' % (d+1, d+3))
        e('buffer_store_dwordx4 %s, v%d, %s, s%d offen offset:%d' % (vr(d,4), vT, sr(sO,4), sQoff, 64*b+32*gp))
if STAMP:
    e('s_waitcnt vmcnt(0)')
    stamp(3)
e('s_endpgm')

lab('L_idle')
e('s_waitcnt vmcnt(6)')
e('s_barrier')
dma_k(); dma_v(); dma_k()
e('s_mov_b32 s%d, 0' % sI)
lab('L_idle_loop')
e('s_waitcnt vmcnt(8)')
e('s_barrier')
dma_k(); dma_v()
e('s_add_u32 s%d, s%d, 1' % (sI, sI))
e('s_cmp_lt_u32 s%d, s%d' % (sI, sN))
e('s_cbranch_scc1 L_idle_loop')
lab('L_end')
e('s_endpgm')
out.append('.p2align 3')
out.append('.type L_table,@object')
lab('L_table')
for (n, nw, s, g) in tasks:
    L = CU[s+1]-CU[s]
    out.append('    .long 0x%08x, 0x%08x' % (CU[s] | (L << 16), (CU[s]+128*g) | (s << 16)))
out.append('.size L_table, %d' % (8*NT))
out.append('''.section .rodata,"a"
.p2align 6
.amdhsa_kernel %s_kernel
  .amdhsa_next_free_vgpr %d
  .amdhsa_next_free_sgpr 80
  .amdhsa_accum_offset %d
  .amdhsa_group_segment_fixed_size 0
  .amdhsa_kernarg_size 56
  .amdhsa_user_sgpr_count 2
  .amdhsa_user_sgpr_kernarg_segment_ptr 1
  .amdhsa_system_sgpr_workgroup_id_x 1
.end_amdhsa_kernel''' % (NAME, 224, 224))
dst = [a for a in sys.argv[1:] if not a.startswith('--')]
open(dst[0] if dst else 'cdna_kernels/%s.s' % NAME, 'w').write('\n'.join(out) + '\n')
```

```python
import sys, math
CU = [0, 321, 555, 878, 1299, 1551, 1670, 1878, 2181, 2351, 2646, 2810, 3248, 3471, 3811, 4169, 4391]
NAME = "standalone__varlen_attn_packed__ragged"
HEADER = open('cdna_kernels/%s.s.ref' % NAME).read().split('; Override launch')[0]

STAMP = '--stamp' in sys.argv
PROF = '--prof' in sys.argv
NTF = ' nt' if '--nt' in sys.argv else ''

def opt(name, default=None):
    for a in sys.argv[1:]:
        if a.startswith('--%s=' % name): return a.split('=')[1]
    return default
FIXN = int(opt('fixn', 0)); GRID = int(opt('grid', 0)); LDSO = int(opt('lds', 0))
NODMA = '--nodma' in sys.argv; NOBAR = '--nobar' in sys.argv; NOVALU = '--novalu' in sys.argv; NOLDS = '--nolds' in sys.argv; NOMFMA = '--nomfma' in sys.argv
PROF2 = '--prof2' in sys.argv
out = []
INLOOP = False
def e(s):
    if INLOOP:
        if NODMA and s.startswith('buffer_load'): return
        if NOBAR and s.startswith('s_barrier'): return
        if NOVALU and s.startswith('v_') and not s.startswith('v_mfma') and not s.startswith('v_cmp_gt') and not s.startswith('v_add_u32'): return
        if NOLDS and s.startswith('ds_'): return
        if NOMFMA and s.startswith('v_mfma'): return
        if FIXN and s.startswith('s_add_u32 s35, s35') : return
        if FIXN and s.startswith('s_add_u32 s36, s36') : return
    out.append('    ' + s)
def lab(s): out.append(s + ':')
def c(s): out.append('    ; ' + s)

tasks = []
for s in range(16):
    L = CU[s+1]-CU[s]
    n = (L+31)//32
    for g in range((n+3)//4):
        nw = min(4, n-4*g)
        tasks.append((n, nw, s, g))
tasks.sort(key=lambda t: (-t[0], t[2], t[3]))
NT = len(tasks)
NWG = NT*2*8
if GRID: NWG = GRID

SLOT = 8704
NK, NV = 5, 4
KBASE = 0
VBASE = NK*SLOT
LDS = (NK+NV)*SLOT
QSLOT = [KBASE+3*SLOT, KBASE+4*SLOT, VBASE+2*SLOT, VBASE+3*SLOT]

sQ, sK, sV, sO = 16, 20, 24, 28
sW = 32
sN = 33
sI = 34
sKoff = 35
sVoff = 36
sKslot = 37
sVslot = 38
sKrd = 39
sVrd = 40
sC = 41
sQoff = 42
sT0, sT1, sT2, sT3 = 43, 44, 45, 46
sKwc = 47
sVwc = 48
sRem = 49
sThr = 50
sKend = 51
sVend = 52
sNm1 = 53
vKg0, vKg1, vVg0, vVg1 = 1, 2, 3, 4
vA0c, vA1c, vAVc = 5, 6, 7
vA0, vA1, vAV = 8, 9, 10
vM, vMc, vL, vMthr = 11, 12, 13, 14
vT = 15
vQ = 16
vO = 48
vS = [112, 128]
vP = 144
vK = 152
vV = 184
vT2, vT3, vLane, vL2 = 216, 217, 218, 219
NVGPR = 220

def vr(b, n): return 'v[%d:%d]' % (b, b+n-1)
def sr(b, n): return 's[%d:%d]' % (b, b+n-1)

SCALE = 128 ** -0.5
CC = SCALE * math.log2(math.e)
import struct
def f2u(x): return struct.unpack('<I', struct.pack('<f', x))[0]
THR = 8.0 / CC

def dma_k():
    e('s_mov_b32 m0, s%d' % sKslot)
    e('s_add_u32 s%d, s%d, %d' % (sKslot, sKslot, SLOT))
    e('buffer_load_dwordx4 v%d, %s, s%d offen%s lds' % (vKg0, sr(sK,4), sKoff, NTF))
    e('buffer_load_dwordx4 v%d, %s, s%d offen offset:1040%s lds' % (vKg1, sr(sK,4), sKoff, NTF))
    e('s_cmp_ge_u32 s%d, s%d' % (sKslot, sKend))
    e('s_cselect_b32 s%d, s%d, s%d' % (sKslot, sKwc, sKslot))
    e('s_add_u32 s%d, s%d, %d' % (sKoff, sKoff, 32*4096))
def dma_v():
    e('s_mov_b32 m0, s%d' % sVslot)
    e('s_add_u32 s%d, s%d, %d' % (sVslot, sVslot, SLOT))
    e('buffer_load_dwordx4 v%d, %s, s%d offen%s lds' % (vVg0, sr(sV,4), sVoff, NTF))
    e('buffer_load_dwordx4 v%d, %s, s%d offen offset:1088%s lds' % (vVg1, sr(sV,4), sVoff, NTF))
    e('s_cmp_ge_u32 s%d, s%d' % (sVslot, sVend))
    e('s_cselect_b32 s%d, s%d, s%d' % (sVslot, sVwc, sVslot))
    e('s_add_u32 s%d, s%d, %d' % (sVoff, sVoff, 32*4096))

def kread(s, dst=vK):
    a = vA0 if s < 4 else vA1
    return 'ds_read_b128 %s, v%d offset:%d' % (vr(dst+4*s,4), a, 32*(s%4))
def vread(t, b, h):
    return 'ds_read_b64_tr_b16 %s, v%d offset:%d' % (vr(vV+(t*4+b)*4+2*h,2), vAV, h*512+t*4352+64*b)
def adv_k():
    return ['s_add_u32 s%d, s%d, %d' % (sKrd, sKrd, SLOT),
            's_cmp_ge_u32 s%d, %d' % (sKrd, KBASE+NK*SLOT),
            's_cselect_b32 s%d, %d, s%d' % (sKrd, KBASE, sKrd),
            'v_add_u32 v%d, s%d, v%d' % (vA0, sKrd, vA0c),
            'v_add_u32 v%d, s%d, v%d' % (vA1, sKrd, vA1c)]
def adv_v():
    return ['s_add_u32 s%d, s%d, %d' % (sVrd, sVrd, SLOT),
            's_cmp_ge_u32 s%d, %d' % (sVrd, VBASE+NV*SLOT),
            's_cselect_b32 s%d, %d, s%d' % (sVrd, VBASE, sVrd),
            'v_add_u32 v%d, s%d, v%d' % (vAV, sVrd, vAVc)]
def qk(s, S):
    return 'v_mfma_f32_32x32x16_bf16 %s, %s, %s, %s' % (vr(S,16), vr(vK+4*s,4), vr(vQ+4*s,4), '0' if s == 0 else vr(S,16))
def pv(t, b):
    return 'v_mfma_f32_32x32x16_bf16 %s, %s, %s, %s' % (vr(vO+16*b,16), vr(vV+(t*4+b)*4,4), vr(vP+4*t,4), vr(vO+16*b,16))

def softmax_ops(S):
    ops = []
    fm = lambda r: 'v_fma_f32 v%d, v%d, s%d, -v%d' % (S+r, S+r, sC, vMc)
    ex = lambda r: 'v_exp_f32 v%d, v%d' % (S+r, S+r)
    ad = lambda r: 'v_add_f32 v%d, v%d, v%d' % ((vL if r % 2 == 0 else vL2), (vL if r % 2 == 0 else vL2), S+r)
    cv = lambda r: 'v_cvt_pk_bf16_f32 v%d, v%d, v%d' % (vP+r//2, S+r, S+r+1)
    ops += [fm(0), fm(1)]
    for p in range(8):
        r = 2*p
        ops += [ex(r), ex(r+1)]
        if p < 7: ops += [fm(r+2), fm(r+3)]
        else: ops += ['s_nop 0']
        ops += [ad(r), cv(r), ad(r+1)] if False else [ad(r), ad(r+1), cv(r)]
    return ops

def max_ops(S):
    ops = ['v_max3_f32 v%d, v%d, v%d, v%d' % (vT, S, S+1, S+2),
           'v_max3_f32 v%d, v%d, v%d, v%d' % (vT2, S+3, S+4, S+5)]
    ops += ['v_max3_f32 v%d, v%d, v%d, v%d' % (vT, vT, S+6, S+7),
            'v_max3_f32 v%d, v%d, v%d, v%d' % (vT2, vT2, S+8, S+9),
            'v_max3_f32 v%d, v%d, v%d, v%d' % (vT, vT, S+10, S+11),
            'v_max3_f32 v%d, v%d, v%d, v%d' % (vT2, vT2, S+12, S+13),
            'v_max3_f32 v%d, v%d, v%d, v%d' % (vT, vT, S+14, S+15),
            'v_max_f32 v%d, v%d, v%d' % (vT, vT, vT2)]
    return ops

def mask_ops(S):
    for r in range(16):
        e('v_cmp_lt_i32 vcc, %d, v%d' % (8*(r//4)+r%4, vT3))
        e('s_nop 1')
        e('v_cndmask_b32 v%d, v%d, v%d, vcc' % (S+r, vT2, S+r))

def stamp(slot):
    if not STAMP: return
    e('s_memrealtime s[60:61]')
    e('s_waitcnt lgkmcnt(0)')
    e('v_mov_b32 v220, s60')
    e('v_mov_b32 v221, s61')
    e('v_mov_b32 v222, s62')
    e('s_mov_b64 s[64:65], exec')
    e('s_mov_b64 exec, 1')
    e('buffer_store_dwordx2 v[220:221], v222, s[56:59], 0 offen offset:%d' % (slot*8))
    e('s_mov_b64 exec, s[64:65]')

out.append(HEADER.rstrip())
out.append('; @launch grid=(%d,1,1) block=(256,1,1) lds=%d' % (NWG, LDSO or LDS))
out.append('.amdgcn_target "amdgcn-amd-amdhsa--gfx950"')
out.append('.text')
out.append('.globl %s_kernel' % NAME)
out.append('.p2align 8')
out.append('.type %s_kernel,@function' % NAME)
lab('%s_kernel' % NAME)
e('s_cmp_ge_u32 s2, %d' % NWG)
e('s_cbranch_scc1 L_end')
e('s_load_dwordx4 s[4:7], s[0:1], 0')
e('s_load_dwordx2 s[8:9], s[0:1], 16')
e('s_load_dwordx2 s[12:13], s[0:1], 32')
if STAMP:
    e('s_load_dwordx2 s[56:57], s[0:1], 48')
e('s_getpc_b64 s[10:11]')
lab('L_pc')
e('s_lshr_b32 s3, s2, 4')
e('s_lshl_b32 s3, s3, 3')
e('s_add_u32 s3, s3, L_table-L_pc')
e('s_add_u32 s10, s10, s3')
e('s_addc_u32 s11, s11, 0')
e('s_load_dwordx2 s[14:15], s[10:11], 0')
e('v_and_b32 v%d, 63, v0' % vLane)
e('v_lshrrev_b32 v%d, 6, v0' % vT)
e('v_lshrrev_b32 v%d, 4, v%d' % (vT2, vLane))
e('v_readfirstlane_b32 s%d, v%d' % (sW, vT))
e('v_and_b32 v%d, 15, v%d' % (vT3, vLane))
e('v_lshrrev_b32 v%d, 5, v%d' % (vT, vLane))
e('v_lshlrev_b32 v%d, 3, v%d' % (vKg0, vT))
e('v_xor_b32 v%d, v%d, v%d' % (vKg0, vKg0, vT3))
e('v_lshlrev_b32 v%d, 4, v%d' % (vKg0, vKg0))
e('v_lshl_add_u32 v%d, v%d, 15, v%d' % (vKg0, vT2, vKg0))
e('v_lshlrev_b32 v%d, 4, v%d' % (vVg0, vT3))
e('v_lshl_add_u32 v%d, v%d, 14, v%d' % (vVg0, vT2, vVg0))
e('v_and_b32 v%d, 7, v%d' % (vA0c, vLane))
e('v_mul_u32_u24 v%d, 1040, v%d' % (vA0c, vA0c))
e('v_bfe_u32 v%d, v%d, 3, 2' % (vA1c, vLane))
e('v_lshl_add_u32 v%d, v%d, 8, v%d' % (vA0c, vA1c, vA0c))
e('v_lshl_add_u32 v%d, v%d, 4, v%d' % (vA0c, vT, vA0c))
e('v_and_b32 v%d, 1, v%d' % (vT2, vT2))
e('v_lshlrev_b32 v%d, 7, v%d' % (vA1c, vT2))
e('v_xor_b32 v%d, 128, v%d' % (vA1, vA1c))
e('v_add_u32 v%d, v%d, v%d' % (vA0, vA0c, vA1c))
e('v_add_u32 v%d, v%d, v%d' % (vA1c, vA0c, vA1))
e('v_mov_b32 v%d, v%d' % (vA0c, vA0))
e('v_bfe_u32 v%d, v%d, 2, 2' % (vAVc, vLane))
e('v_mul_u32_u24 v%d, 1088, v%d' % (vAVc, vAVc))
e('v_lshl_add_u32 v%d, v%d, 8, v%d' % (vAVc, vT, vAVc))
e('v_lshl_add_u32 v%d, v%d, 5, v%d' % (vAVc, vT2, vAVc))
e('v_and_b32 v%d, 3, v%d' % (vT2, vLane))
e('v_lshl_add_u32 v%d, v%d, 3, v%d' % (vAVc, vT2, vAVc))
e('s_mul_i32 s%d, s%d, %d' % (sKwc, sW, 2*1040))
e('s_mul_i32 s%d, s%d, %d' % (sVwc, sW, 2*1088))
e('s_add_u32 s%d, s%d, %d' % (sVwc, sVwc, VBASE))
e('s_add_u32 s%d, s%d, %d' % (sKend, sKwc, KBASE+NK*SLOT))
e('s_add_u32 s%d, s%d, %d' % (sVend, sVwc, NV*SLOT))
e('s_mov_b32 s%d, s%d' % (sKslot, sKwc))
e('s_mov_b32 s%d, s%d' % (sVslot, sVwc))
e('s_and_b32 s%d, s%d, 2' % (sT0, sW))
e('s_add_u32 s%d, s%d, s%d' % (sT0, sT0, sW))
e('s_add_u32 s%d, s%d, 3' % (sT0, sT0))
e('s_mul_i32 s%d, s%d, %d' % (sT0, sT0, SLOT))
e('v_mov_b32 v%d, v%d' % (vT2, vKg0))
e('s_lshl_b32 s%d, s%d, 13' % (sT1, sW))
e('v_add_u32 v%d, s%d, v%d' % (vKg0, sT1, vKg0))
e('v_add_u32 v%d, %d, v%d' % (vKg1, 4096-1040, vKg0))
e('s_lshr_b32 s%d, s%d, 1' % (sT1, sW))
e('s_lshl_b32 s%d, s%d, 16' % (sT1, sT1))
e('s_and_b32 s%d, s%d, 1' % (sT2, sW))
e('s_lshl_b32 s%d, s%d, 13' % (sT2, sT2))
e('s_add_u32 s%d, s%d, s%d' % (sT1, sT1, sT2))
e('v_add_u32 v%d, s%d, v%d' % (vVg0, sT1, vVg0))
e('v_add_u32 v%d, %d, v%d' % (vVg1, 4096-1088, vVg0))
e('s_mov_b32 s%d, 0x%08x' % (sC, f2u(CC)))
e('s_mov_b32 s%d, 0x%08x' % (sThr, f2u(THR)))
e('s_waitcnt lgkmcnt(0)')
e('s_and_b32 s%d, s14, 0xffff' % sT1)
e('s_lshr_b32 s%d, s14, 16' % sT2)
e('s_add_u32 s%d, s%d, s%d' % (sT3, sT1, sT2))
e('s_lshl_b32 s%d, s%d, 12' % (sT3, sT3))
for (sd, p) in ((sQ, 4), (sK, 6), (sV, 8), (sO, 12)):
    e('s_mov_b32 s%d, s%d' % (sd, p))
    e('s_and_b32 s%d, s%d, 0xffff' % (sd+1, p+1))
    e('s_mov_b32 s%d, s%d' % (sd+2, sT3))
    e('s_mov_b32 s%d, 0x20000' % (sd+3))
if STAMP:
    e('s_and_b32 s57, s57, 0xffff')
    e('s_mov_b32 s58, 0x1000000')
    e('s_mov_b32 s59, 0x20000')
    e('s_lshl_b32 s62, s2, 2')
    e('s_add_u32 s62, s62, s%d' % sW)
    e('s_lshl_b32 s62, s62, 6')
e('s_lshr_b32 s3, s15, 16')
e('s_add_u32 s3, s3, s2')
e('s_and_b32 s3, s3, 7')
e('s_and_b32 s14, s2, 8')
e('s_add_u32 s3, s3, s14')
e('s_lshl_b32 s3, s3, 8')
e('s_lshl_b32 s%d, s%d, 12' % (sKoff, sT1))
e('s_add_u32 s%d, s%d, s3' % (sKoff, sKoff))
e('s_mov_b32 s%d, s%d' % (sVoff, sKoff))
e('s_and_b32 s15, s15, 0xffff')
e('s_lshl_b32 s14, s%d, 5' % sW)
e('s_add_u32 s15, s15, s14')
e('s_lshl_b32 s%d, s15, 12' % sQoff)
e('s_add_u32 s%d, s%d, s3' % (sQoff, sQoff))
e('s_add_u32 s%d, s%d, 31' % (sN, sT2))
e('s_lshr_b32 s%d, s%d, 5' % (sN, sN))
e('s_sub_u32 s%d, s%d, 1' % (sNm1, sN))
e('s_lshl_b32 s%d, s%d, 5' % (sRem, sNm1))
e('s_sub_u32 s%d, s%d, s%d' % (sRem, sT2, sRem))
if FIXN:
    e('s_mov_b32 s%d, %d' % (sN, FIXN))
    e('s_mov_b32 s%d, %d' % (sNm1, FIXN+5))
stamp(0)
e('s_mov_b32 s14, s%d' % sQoff)
for j in range(8):
    e('s_add_u32 m0, s%d, %d' % (sT0, j*1040))
    e('s_nop 0')
    e('buffer_load_dwordx4 v%d, %s, s14 offen%s lds' % (vT2, sr(sQ,4), NTF))
    if j < 7: e('s_add_u32 s14, s14, 4096')
dma_k(); dma_k(); dma_v(); dma_k(); dma_v()
e('s_lshl_b32 s15, s15, 12')
e('s_cmp_ge_u32 s15, s%d' % (sO+2))
e('s_cbranch_scc1 L_idle')
e('v_lshrrev_b32 v%d, 5, v%d' % (vT3, vLane))
e('v_lshlrev_b32 v%d, 2, v%d' % (vT3, vT3))
e('v_sub_u32 v%d, s%d, v%d' % (vT3, sRem, vT3))
e('v_add_u32 v%d, s%d, v%d' % (vA0, sT0, vA0c))
e('v_add_u32 v%d, s%d, v%d' % (vA1, sT0, vA1c))
for r in range(64):
    e('v_mov_b32 v%d, 0' % (vO+r))
e('v_mov_b32 v%d, 0' % vL)
e('v_mov_b32 v%d, 0' % vL2)
e('s_waitcnt vmcnt(10)')
for s in range(8): e(kread(s, vQ))
e('s_waitcnt lgkmcnt(0)')
e('s_mov_b32 s%d, %d' % (sKrd, KBASE))
e('s_mov_b32 s%d, %d' % (sVrd, VBASE))
e('v_add_u32 v%d, s%d, v%d' % (vA0, sKrd, vA0c))
e('v_add_u32 v%d, s%d, v%d' % (vA1, sKrd, vA1c))
e('v_add_u32 v%d, s%d, v%d' % (vAV, sVrd, vAVc))
e('s_waitcnt vmcnt(6)')
e('s_barrier')
stamp(1)
for s in range(8): e(kread(s))
dma_k(); dma_v(); dma_k()
for s in range(8):
    e('s_waitcnt lgkmcnt(%d)' % (7-s))
    e(qk(s, vS[0]))
for x in adv_k(): e(x)
for s in range(8): e(kread(s))
for x in adv_k(): e(x)
e('s_nop 7')
for x in max_ops(vS[0]): e(x)
e('v_mov_b32 v%d, v%d' % (vT2, vT))
e('s_nop 1')
e('v_permlane32_swap_b32 v%d, v%d' % (vT, vT2))
e('s_nop 1')
e('v_max_f32 v%d, v%d, v%d' % (vM, vT, vT2))
e('v_mul_f32 v%d, s%d, v%d' % (vMc, sC, vM))
e('v_add_f32 v%d, s%d, v%d' % (vMthr, sThr, vM))
e('s_mov_b32 s%d, 0' % sI)
if PROF or PROF2:
    e('s_memrealtime s[78:79]')
    e('s_mov_b32 s72, 0')
    e('s_mov_b32 s73, 0')
    e('s_memtime s[74:75]')
    e('s_waitcnt lgkmcnt(0)')

def step(par):
    Sc, Sn = vS[par], vS[1-par]
    lab('L_step%d' % par)
    if PROF:
        e('s_memtime s[66:67]')
        e('s_waitcnt lgkmcnt(0)')
    e('s_waitcnt vmcnt(%d)' % 8)
    if PROF:
        e('s_memtime s[68:69]')
        e('s_waitcnt lgkmcnt(0)')
    e('s_barrier')
    if PROF:
        e('s_memtime s[70:71]')
        e('s_waitcnt lgkmcnt(0)')
        e('s_sub_u32 s66, s68, s66')
        e('s_add_u32 s72, s72, s66')
        e('s_sub_u32 s68, s70, s68')
        e('s_add_u32 s73, s73, s68')
    dma_k(); dma_v()
    sm = softmax_ops(Sc)
    vreads = [vread(t, b, h) for t in range(2) for b in range(4) for h in range(2)]
    e('s_waitcnt lgkmcnt(0)')
    idx = 0
    per_gap_x = [5, 5, 5, 5, 5, 5, 5, 5]
    for s in range(8):
        e(qk(s, Sn))
        e(vreads[2*s]); e(vreads[2*s+1])
        for k in range(per_gap_x[s]):
            e(sm[idx]); idx += 1
    for x in adv_v(): e(x)
    rest = sm[idx:]
    kreads = [kread(s) for s in range(8)]
    e('s_waitcnt lgkmcnt(8)')
    n = len(rest)
    q = [rest[(n*k)//4:(n*(k+1))//4] for k in range(4)]
    for b in range(4):
        e(pv(0, b))
        for x in q[b]: e(x)
    e('s_waitcnt lgkmcnt(0)')
    e('s_nop 0')
    mx = max_ops(Sn)
    e(pv(1, 0))
    for x in kreads[0:4]: e(x)
    e(pv(1, 1))
    for x in kreads[4:8]: e(x)
    for x in adv_k(): e(x)
    e('s_add_u32 s%d, s%d, 1' % (sI, sI))
    e('s_cmp_eq_u32 s%d, s%d' % (sI, sNm1))
    e('s_cbranch_scc0 L_nomask%d' % par)
    e('v_mov_b32 v%d, 0xff800000' % vT2)
    mask_ops(Sn)
    lab('L_nomask%d' % par)
    e(pv(1, 2))
    for x in mx[0:4]: e(x)
    e(pv(1, 3))
    for x in mx[4:]: e(x)
    e('s_cmp_ge_u32 s%d, s%d' % (sI, sN))
    e('s_cbranch_scc1 L_epi')
    e('v_cmp_gt_f32 vcc, v%d, v%d' % (vT, vMthr))
    e('s_cbranch_vccz L_step%d' % (1-par))
    e('v_mov_b32 v%d, v%d' % (vT2, vT))
    e('s_nop 1')
    e('v_permlane32_swap_b32 v%d, v%d' % (vT, vT2))
    e('s_nop 1')
    e('v_max3_f32 v%d, v%d, v%d, v%d' % (vT, vT, vT2, vM))
    e('v_sub_f32 v%d, v%d, v%d' % (vT2, vM, vT))
    e('v_mul_f32 v%d, s%d, v%d' % (vT2, sC, vT2))
    e('v_exp_f32 v%d, v%d' % (vT2, vT2))
    e('v_mov_b32 v%d, v%d' % (vM, vT))
    e('v_mul_f32 v%d, s%d, v%d' % (vMc, sC, vM))
    e('v_add_f32 v%d, s%d, v%d' % (vMthr, sThr, vM))
    e('v_mul_f32 v%d, v%d, v%d' % (vL, vL, vT2))
    e('v_mul_f32 v%d, v%d, v%d' % (vL2, vL2, vT2))
    e('s_nop 7')
    for r in range(64):
        e('v_mul_f32 v%d, v%d, v%d' % (vO+r, vO+r, vT2))
    if par == 1:
        e('s_branch L_step0')
INLOOP = True
step(0)
step(1)
INLOOP = False

lab('L_epi')
if PROF or PROF2:
    e('s_memtime s[76:77]')
    e('s_memrealtime s[66:67]')
    e('s_waitcnt lgkmcnt(0)')
    if PROF2:
        e('s_sub_u32 s72, s66, s78')
    e('s_sub_u32 s76, s76, s74')
    e('v_mov_b32 v220, s72')
    e('v_mov_b32 v221, s73')
    e('v_mov_b32 v222, s76')
    e('v_mov_b32 v223, s%d' % sN)
    e('v_mov_b32 v215, s62')
    e('s_mov_b64 s[64:65], exec')
    e('s_mov_b64 exec, 1')
    e('buffer_store_dwordx4 v[220:223], v215, s[56:59], 0 offen offset:32')
    e('s_mov_b64 exec, s[64:65]')
    e('s_nop 3')
stamp(2)
e('v_add_f32 v%d, v%d, v%d' % (vL, vL, vL2))
e('v_mov_b32 v%d, v%d' % (vT2, vL))
e('s_nop 1')
e('v_permlane32_swap_b32 v%d, v%d' % (vL, vT2))
e('s_nop 1')
e('v_add_f32 v%d, v%d, v%d' % (vL, vL, vT2))
e('v_rcp_f32 v%d, v%d' % (vL, vL))
e('v_and_b32 v%d, 31, v%d' % (vT, vLane))
e('v_lshlrev_b32 v%d, 12, v%d' % (vT, vT))
e('v_lshrrev_b32 v%d, 5, v%d' % (vT2, vLane))
e('v_lshl_add_u32 v%d, v%d, 4, v%d' % (vT, vT2, vT))
e('s_nop 7')
for b in range(4):
    for gp in range(2):
        base = vO + 16*b + 8*gp
        for k in range(8):
            e('v_mul_f32 v%d, v%d, v%d' % (base+k, base+k, vL))
        d = vK + (b*2+gp)*4
        for k in range(4):
            e('v_cvt_pk_bf16_f32 v%d, v%d, v%d' % (d+k, base+2*k, base+2*k+1))
        e('s_nop 1')
        e('v_permlane32_swap_b32 v%d, v%d' % (d, d+2))
        e('v_permlane32_swap_b32 v%d, v%d' % (d+1, d+3))
        e('buffer_store_dwordx4 %s, v%d, %s, s%d offen offset:%d' % (vr(d,4), vT, sr(sO,4), sQoff, 64*b+32*gp))
if STAMP:
    e('s_waitcnt vmcnt(0)')
    stamp(3)
e('s_endpgm')

lab('L_idle')
e('s_waitcnt vmcnt(6)')
e('s_barrier')
dma_k(); dma_v(); dma_k()
e('s_mov_b32 s%d, 0' % sI)
INLOOP = True
lab('L_idle_loop')
e('s_waitcnt vmcnt(8)')
e('s_barrier')
dma_k(); dma_v()
e('s_add_u32 s%d, s%d, 1' % (sI, sI))
e('s_cmp_lt_u32 s%d, s%d' % (sI, sN))
e('s_cbranch_scc1 L_idle_loop')
INLOOP = False
lab('L_end')
e('s_endpgm')
out.append('.p2align 3')
out.append('.type L_table,@object')
lab('L_table')
for (n, nw, s, g) in tasks:
    L = CU[s+1]-CU[s]
    out.append('    .long 0x%08x, 0x%08x' % (CU[s] | (L << 16), (CU[s]+128*g) | (s << 16)))
out.append('.size L_table, %d' % (8*NT))
out.append('''.section .rodata,"a"
.p2align 6
.amdhsa_kernel %s_kernel
  .amdhsa_next_free_vgpr %d
  .amdhsa_next_free_sgpr 80
  .amdhsa_accum_offset %d
  .amdhsa_group_segment_fixed_size 0
  .amdhsa_kernarg_size 56
  .amdhsa_user_sgpr_count 2
  .amdhsa_user_sgpr_kernarg_segment_ptr 1
  .amdhsa_system_sgpr_workgroup_id_x 1
.end_amdhsa_kernel''' % (NAME, 224, 224))
dst = [a for a in sys.argv[1:] if not a.startswith('--')]
open(dst[0] if dst else 'cdna_kernels/%s.s' % NAME, 'w').write('\n'.join(out) + '\n')
```

```python
import sys, math, struct
CU = [0, 321, 555, 878, 1299, 1551, 1670, 1878, 2181, 2351, 2646, 2810, 3248, 3471, 3811, 4169, 4391]
NAME = "standalone__varlen_attn_packed__ragged"
HEADER = open('cdna_kernels/%s.s.ref' % NAME).read().split('; Override launch')[0]

def opt(name, default=None):
    for a in sys.argv[1:]:
        if a.startswith('--%s=' % name): return a.split('=', 1)[1]
    return default
def flag(name): return ('--' + name) in sys.argv
STAMP = flag('stamp')
PROF = flag('prof')
QF = opt('qf', 'nt'); KF = opt('kf', 'nt'); SF = opt('sf', '')
QF = (' ' + QF.replace('+', ' ')) if QF else ''
KF = (' ' + KF.replace('+', ' ')) if KF else ''
SF = (' ' + SF.replace('+', ' ')) if SF else ''
THRLOG = int(opt('thr', 10))
BDELAY = int(opt('bdelay', 1))
SCHED = opt('sched', 'a')
START = int(opt('start', 0))
PRIO = opt('prio', '')

out = []
INLOOP = [False]
NODMA = flag('nodma'); NOVALU = flag('novalu'); NOLDS = flag('nolds'); NOMFMA = flag('nomfma'); NOEXP = flag('noexp')
NOK = flag('nok'); NOV = flag('nov'); M16 = flag('m16'); NOQK = flag('noqk'); NOPV = flag('nopv')
import re
SWQK = flag('swqk'); SWPV = flag('swpv'); DUP = flag('dup')
def e(s):
    if INLOOP[0]:
        if NODMA and s.startswith('buffer_load'): return
        if NOVALU and s.startswith('v_') and not s.startswith('v_mfma') and not s.startswith('v_cmp_gt') and not s.startswith('v_add_u32') and not s.startswith('v_writelane'): return
        if NOEXP and s.startswith('v_exp'): return
        if NOLDS and s.startswith('ds_'): return
        if NOK and s.startswith('ds_read_b128'): return
        if NOV and s.startswith('ds_read_b64_tr'): return
        if NOMFMA and s.startswith('v_mfma'): return
        if s.startswith('v_mfma'):
            m = re.match(r'v_mfma_f32_32x32x16_bf16 v\[(\d+):\d+\], (v\[\d+:\d+\]), (v\[\d+:\d+\]), (.*)', s)
            d = int(m.group(1))
            if NOQK and d >= 112: return
            if NOPV and d < 112: return
            a0 = int(m.group(2)[2:].split(':')[0]); b0 = int(m.group(3)[2:].split(':')[0])
            if M16:
                R = lambda x: 'v[%d:%d]' % (x, x+3)
                if d >= 112:
                    sidx = (a0-160)//4; ks = sidx//2; i = sidx % 2
                    js = (0, 1) if i == 0 else (1, 0)
                    for j in js:
                        dd = d + 4*(2*i+j)
                        out.append('    v_mfma_f32_16x16x32_bf16 %s, %s, %s, %s' % (R(dd), R(a0), R(16+4*(2*ks+j)), R(dd) if ks else R(224+4*j)))
                else:
                    dt = (a0-192)//4; pb = 144 if b0 < 152 else 152
                    js = (0, 1) if dt % 2 == 0 else (1, 0)
                    for j in js:
                        dd = 48 + 8*dt + 4*j
                        out.append('    v_mfma_f32_16x16x32_bf16 %s, %s, %s, %s' % (R(dd), R(a0), R(pb+4*j), R(dd)))
                return
            if (SWQK and d >= 112) or (SWPV and d < 112):
                s = 'v_mfma_f32_32x32x16_bf16 v[%d:%d], %s, %s, %s' % (d, d+15, m.group(3), m.group(2), m.group(4))
            if DUP: out.append('    ' + s)
    out.append('    ' + s)
M16C = [0]
def lab(s): out.append(s + ':')

NB = [(CU[s+1]-CU[s]+31)//32 for s in range(16)]
def make_schedule():
    byn = {}
    for s in range(16):
        for hs in range(2):
            for g in range((NB[s]+3)//4):
                byn.setdefault(NB[s], []).append((s, hs, g))
    def take(n): return byn[n].pop(0)
    if SCHED == 'a':
        plan = ([([14], [12])]*6 + [([14], [14])]*2 + [([14], [11])]*6 + [([7, 7], [11])]*6 + [([8, 6], [11])]*6
                + [([10, 4], [10])]*2 + [([10, 6], [10])]*2 + [([10, 8], [10])]*2)
    else:
        raise SystemExit('sched?')
    cus = []
    res = [[[None]*len(a), [None]*len(b)] for a, b in plan]
    for lane in (0, 1):
        for i, p in enumerate(plan):
            res[i][lane][0] = take(p[lane][0])
    for lane in (0, 1):
        for i, p in enumerate(plan):
            if len(p[lane]) > 1: res[i][lane][1] = take(p[lane][1])
    assert all(len(v) == 0 for v in byn.values())
    return res
sched = make_schedule()
NWG = 512
def desc(t, xcd):
    if t is None: return [0, 0, 0, 0]
    s, hs, g = t
    head = ((xcd + s) & 7) + 8*hs
    L = CU[s+1]-CU[s]; n = NB[s]
    return [CU[s]*4096 + head*256, (CU[s]+128*g)*4096 + head*256, CU[s+1]*4096, n | ((L-32*(n-1)) << 8)]
table = []
for wg in range(NWG):
    xcd = wg & 7; j = wg >> 3
    lane = sched[j % 32][j // 32]
    assert len(lane) == 1 or NB[lane[0][0]] >= 7
    table.append(desc(lane[0], xcd) + desc(lane[1] if len(lane) > 1 else None, xcd))

FIXN = int(opt('fixn', 0))
if FIXN:
    NWG = int(opt('nwg', 512))
    table = []
    for wg in range(NWG):
        xcd = wg & 7; j = wg >> 3
        head = xcd + 8*(j & 1)
        r0 = ((j >> 1) % 2) * 2048
        table.append([r0*4096 + head*256, (128*(j >> 1))*4096 + head*256, 4391*4096, FIXN | (32 << 8), 0, 0, 0, 0])
SLOT = 8704
NK, NV = 5, 4
VBASE = NK*SLOT
LDS = (NK+NV)*SLOT
BLK = 32*4096

sQp, sKp, sVp, sOp = 4, 6, 8, 10
sD = 12
sKS, sVS, sOS = 20, 24, 28
sW = 32
sKoff, sVoff = 33, 34
sKrd = [35, 36]; sVrd = [37, 38]
sKwc, sVwc = 39, 40
sEv, sState = 41, 42
sX, sVa = 43, 44
sT0, sT1, sT2, sT3 = 45, 46, 47, 48
sC = 50
sThr = 52
sRet = 53
sM = [54, 56, 58, 60]
sLaneB = 62
NSGPR = 80

vKg0, vKg1, vVg0, vVg1 = 1, 2, 3, 4
vA0c, vA1c, vAVc = 5, 6, 7
vA0, vA1, vAV = 8, 9, 10
vL, vLt = 11, [12, 13]
vLane = 14
vX = 15
vQ = 16
vO = 48
vS = [112, 128]
vP = [144, 152]
vK = 160
vV = 192
vNM = 224
vT = [240, 241, 242, 243]
vY, vZ = 244, 245
NVGPR = 256 if (STAMP or PROF) else 248

def vr(b, n): return 'v[%d:%d]' % (b, b+n-1)
def sr(b, n): return 's[%d:%d]' % (b, b+n-1)
CC = 128 ** -0.5 * math.log2(math.e)
def f2u(x): return struct.unpack('<I', struct.pack('<f', x))[0]

def dk(which, srd=sKS, off=sKoff, fl=None):
    fl = KF if fl is None else fl
    if which == 0: return 'buffer_load_dwordx4 v%d, %s, s%d offen%s lds' % (vKg0, sr(srd, 4), off, fl)
    return 'buffer_load_dwordx4 v%d, %s, s%d offen offset:1040%s lds' % (vKg1, sr(srd, 4), off, fl)
def dv(which):
    if which == 0: return 'buffer_load_dwordx4 v%d, %s, s%d offen%s lds' % (vVg0, sr(sVS, 4), sVoff, KF)
    return 'buffer_load_dwordx4 v%d, %s, s%d offen offset:1088%s lds' % (vVg1, sr(sVS, 4), sVoff, KF)
def dma_k(slot):
    if isinstance(slot, tuple): e('s_add_u32 m0, s%d, %d' % (sKwc, slot[1]))
    else: e('s_add_u32 m0, s%d, s%d' % (sKwc, slot))
    e('s_nop 0')
    e(dk(0)); e(dk(1))
    e('s_add_u32 s%d, s%d, %d' % (sKoff, sKoff, BLK))
def dma_v(slot):
    if isinstance(slot, tuple): e('s_add_u32 m0, s%d, %d' % (sVwc, slot[1]))
    else: e('s_add_u32 m0, s%d, s%d' % (sVwc, slot))
    e('s_nop 0')
    e(dv(0)); e(dv(1))
    e('s_add_u32 s%d, s%d, %d' % (sVoff, sVoff, BLK))
def next_k(dst, src):
    return ['s_add_u32 s%d, s%d, %d' % (dst, src, SLOT),
            's_cmp_ge_u32 s%d, %d' % (dst, NK*SLOT),
            's_cselect_b32 s%d, 0, s%d' % (dst, dst)]
def next_v(dst, src):
    return ['s_add_u32 s%d, s%d, %d' % (dst, src, SLOT),
            's_cmp_ge_u32 s%d, %d' % (dst, VBASE+NV*SLOT),
            's_cselect_b32 s%d, %d, s%d' % (dst, VBASE, dst)]
def set_ka(s): return ['v_add_u32 v%d, s%d, v%d' % (vA0, s, vA0c), 'v_add_u32 v%d, s%d, v%d' % (vA1, s, vA1c)]
def set_va(s): return ['v_add_u32 v%d, s%d, v%d' % (vAV, s, vAVc)]
def kread(s, dst=vK):
    return 'ds_read_b128 %s, v%d offset:%d' % (vr(dst+4*s, 4), vA0 if s < 4 else vA1, 32*(s % 4))
def vread(t, b, h):
    return 'ds_read_b64_tr_b16 %s, v%d offset:%d' % (vr(vV+(t*4+b)*4+2*h, 2), vAV, h*512+t*4352+64*b)
VREADS = [vread(t, b, h) for t in range(2) for b in range(4) for h in range(2)]
def qk(s, S, c0):
    return 'v_mfma_f32_32x32x16_bf16 %s, %s, %s, %s' % (vr(S, 16), vr(vK+4*s, 4), vr(vQ+4*s, 4), c0 if s == 0 else vr(S, 16))
def pv(t, b, P, zero=False):
    return 'v_mfma_f32_32x32x16_bf16 %s, %s, %s, %s' % (vr(vO+16*b, 16), vr(vV+(t*4+b)*4, 4), vr(P+4*t, 4), '0' if (zero and t == 0) else vr(vO+16*b, 16))
def ex(p, r): return 'v_exp_f32 v%d, v%d' % (vT[r % 4], vS[p]+r)
def ad(r):
    if r < 2: return None
    if r < 4: return 'v_add_f32 v%d, v%d, v%d' % (vLt[r % 2], vT[r-2], vT[r])
    return 'v_add_f32 v%d, v%d, v%d' % (vLt[r % 2], vLt[r % 2], vT[r % 4])
def cv(p, k): return 'v_cvt_pk_bf16_f32 v%d, v%d, v%d' % (vP[p]+k, vT[(2*k) % 4], vT[(2*k+1) % 4])
XFMA = flag('xfma')
def sm_slot(p, g):
    ops = [ex(p, g)]
    if XFMA: ops.append('v_fma_f32 v%d, v%d, s%d, v%d' % (246+(g & 1), vS[p]+(g+1) % 16, sC, vNM))
    if g >= 1 and ad(g-1): ops.append(ad(g-1))
    if g >= 2 and g % 2 == 0: ops.append(cv(p, (g-2)//2))
    return ops
def sm_fin(p):
    return [ad(15), cv(p, 7), 'v_add_f32 v%d, v%d, v%d' % (vLt[0], vLt[0], vLt[1])]
def max_ops(S, a, b):
    return ['v_max3_f32 v%d, v%d, v%d, v%d' % (a, S, S+1, S+2),
            'v_max3_f32 v%d, v%d, v%d, v%d' % (b, S+3, S+4, S+5),
            'v_max3_f32 v%d, v%d, v%d, v%d' % (a, a, S+6, S+7),
            'v_max3_f32 v%d, v%d, v%d, v%d' % (b, b, S+8, S+9),
            'v_max3_f32 v%d, v%d, v%d, v%d' % (a, a, S+10, S+11),
            'v_max3_f32 v%d, v%d, v%d, v%d' % (b, b, S+12, S+13),
            'v_max3_f32 v%d, v%d, v%d, v%d' % (a, a, S+14, S+15),
            'v_max_f32 v%d, v%d, v%d' % (a, a, b)]
def prescale_ops():
    ops = []
    for i in range(32):
        t = vS[0] + 2*(i % 8)
        ops.append(['v_lshlrev_b32 v%d, 16, v%d' % (t, vK+i),
                    'v_and_b32 v%d, 0xffff0000, v%d' % (t+1, vK+i),
                    'v_mul_f32 v%d, s%d, v%d' % (t, sC, t),
                    'v_mul_f32 v%d, s%d, v%d' % (t+1, sC, t+1),
                    'v_cvt_pk_bf16_f32 v%d, v%d, v%d' % (vQ+i, t, t+1)])
    seq = []
    for i in range(0, 32, 2):
        a, b = ops[i], ops[i+1]
        seq += [a[0], a[1], b[0], b[1], a[2], a[3], b[2], b[3], a[4], b[4]]
    return seq

_pn = [0]
def prio(phase):
    if not PRIO: return
    a, b = int(PRIO[phase]), int(PRIO[3+phase])
    if a == b:
        e('s_setprio %d' % a); return
    _pn[0] += 1
    e('s_cmp_eq_u32 s%d, 0' % sLaneB)
    e('s_setprio %d' % a)
    e('s_cbranch_scc1 L_prio%d' % _pn[0])
    e('s_setprio %d' % b)
    lab('L_prio%d' % _pn[0])
def stamp(slot):
    if not STAMP: return
    e('s_memrealtime s[68:69]')
    e('s_waitcnt lgkmcnt(0)')
    e('v_mov_b32 v250, s68')
    e('v_mov_b32 v251, s69')
    e('v_mov_b32 v252, s70')
    e('s_mov_b64 s[72:73], exec')
    e('s_mov_b64 exec, 1')
    e('buffer_store_dwordx2 v[250:251], v252, s[64:67], 0 offen offset:%d' % (slot*8))
    e('s_mov_b64 exec, s[72:73]')
    e('s_nop 3')
CLK = flag('clk')
def tickA():
    if PROF: e('s_memtime s[68:69]')
    if PROF and CLK: e('s_memrealtime s[72:73]')
def tickB():
    if PROF and not CLK: e('s_memtime s[72:73]')
def tflush(wait=False, both=True):
    if not PROF: return
    if wait: e('s_waitcnt lgkmcnt(0)')
    e('s_mov_b32 m0, s71')
    e('s_add_u32 s71, s71, 1')
    e('v_writelane_b32 v253, s68, m0')
    e('v_writelane_b32 v254, s72, m0')
VS = 1 if STAMP else 0

out.append(HEADER.rstrip())
out.append('; @launch grid=(%d,1,1) block=(256,1,1) lds=%d' % (NWG, LDS))
out.append('.amdgcn_target "amdgcn-amd-amdhsa--gfx950"')
out.append('.text')
out.append('.globl %s_kernel' % NAME)
out.append('.p2align 8')
out.append('.type %s_kernel,@function' % NAME)
lab('%s_kernel' % NAME)
e('s_cmp_ge_u32 s2, %d' % NWG)
e('s_cbranch_scc1 L_end')
e('s_getpc_b64 s[46:47]')
lab('L_pc')
e('s_load_dwordx4 s[4:7], s[0:1], 0')
e('s_lshl_b32 s3, s2, 5')
e('s_add_u32 s3, s3, L_table-L_pc')
e('s_add_u32 s46, s46, s3')
e('s_addc_u32 s47, s47, 0')
e('s_load_dwordx8 s[12:19], s[46:47], 0')
e('s_load_dwordx2 s[8:9], s[0:1], 16')
e('s_load_dwordx2 s[10:11], s[0:1], 32')
if STAMP:
    e('s_load_dwordx2 s[64:65], s[0:1], 48')
    e('s_memrealtime s[74:75]')
if PROF:
    e('s_load_dwordx2 s[64:65], s[0:1], 48')
    e('s_memrealtime s[74:75]')
    e('s_memtime s[76:77]')
    e('s_mov_b32 s71, 0')
e('v_and_b32 v%d, 63, v0' % vLane)
e('v_lshrrev_b32 v%d, 6, v0' % vX)
e('v_lshrrev_b32 v%d, 4, v%d' % (vY, vLane))
e('v_readfirstlane_b32 s%d, v%d' % (sW, vX))
e('v_and_b32 v%d, 15, v%d' % (vZ, vLane))
e('v_lshrrev_b32 v%d, 5, v%d' % (vX, vLane))
e('v_lshlrev_b32 v%d, 3, v%d' % (vKg0, vX))
e('v_xor_b32 v%d, v%d, v%d' % (vKg0, vKg0, vZ))
e('v_lshlrev_b32 v%d, 4, v%d' % (vKg0, vKg0))
e('v_lshl_add_u32 v%d, v%d, 15, v%d' % (vT[0], vY, vKg0))
e('s_lshl_b32 s%d, s%d, 13' % (sT0, sW))
e('v_add_u32 v%d, s%d, v%d' % (vKg0, sT0, vT[0]))
e('v_add_u32 v%d, %d, v%d' % (vKg1, 4096-1040, vKg0))
e('v_lshlrev_b32 v%d, 4, v%d' % (vVg0, vZ))
e('v_lshl_add_u32 v%d, v%d, 14, v%d' % (vVg0, vY, vVg0))
e('s_lshr_b32 s%d, s%d, 1' % (sT1, sW))
e('s_lshl_b32 s%d, s%d, 16' % (sT1, sT1))
e('s_and_b32 s%d, s%d, 1' % (sT2, sW))
e('s_lshl_b32 s%d, s%d, 13' % (sT2, sT2))
e('s_add_u32 s%d, s%d, s%d' % (sT1, sT1, sT2))
e('v_add_u32 v%d, s%d, v%d' % (vVg0, sT1, vVg0))
e('v_add_u32 v%d, %d, v%d' % (vVg1, 4096-1088, vVg0))
e('s_mul_i32 s%d, s%d, %d' % (sKwc, sW, 2*1040))
e('s_mul_i32 s%d, s%d, %d' % (sVwc, sW, 2*1088))
e('s_and_b32 s%d, s%d, 2' % (sX, sW))
e('s_add_u32 s%d, s%d, s%d' % (sX, sX, sW))
e('s_add_u32 s%d, s%d, 3' % (sX, sX))
e('s_mul_i32 s%d, s%d, %d' % (sX, sX, SLOT))
e('s_lshl_b32 s%d, s%d, 17' % (sT0, sW))
e('s_mov_b32 s%d, 0x20000' % (sKS+3))
e('s_mov_b32 s%d, 0x20000' % (sVS+3))
e('s_mov_b32 s%d, 0x20000' % (sOS+3))
e('s_waitcnt lgkmcnt(0)')
e('s_and_b32 s%d, s%d, 0xffff' % (sQp+1, sQp+1))
e('s_and_b32 s%d, s%d, 0xffff' % (sKp+1, sKp+1))
e('s_mov_b64 %s, %s' % (sr(sOS, 2), sr(sQp, 2)))
e('s_mov_b32 s%d, s%d' % (sOS+2, sD+2))
e('s_add_u32 s%d, s%d, s%d' % (sT1, sD+1, sT0))
e('s_mov_b64 %s, %s' % (sr(sKS, 2), sr(sKp, 2)))
e('s_mov_b32 s%d, s%d' % (sKS+2, sD+2))
e('s_mov_b32 s%d, s%d' % (sKoff, sD))
e('s_mov_b32 s%d, s%d' % (sVS, sVp))
e('s_and_b32 s%d, s%d, 0xffff' % (sVS+1, sVp+1))
e('s_mov_b32 s%d, s%d' % (sVS+2, sD+2))
e('s_mov_b32 s%d, s%d' % (sVoff, sD))
def qloads():
    for j in range(8):
        e('s_add_u32 m0, s%d, %d' % (sX, j*1040))
        if j: e('s_add_u32 s%d, s%d, 4096' % (sT1, sT1))
        else: e('s_nop 0')
        e('buffer_load_dwordx4 v%d, %s, s%d offen%s lds' % (vT[0], sr(sOS, 4), sT1, QF))
e('s_lshr_b32 s%d, s2, 8' % sLaneB)
prio(0)
if START == 0 and BDELAY:
    e('s_cmp_ge_u32 s2, 256')
    e('s_cbranch_scc1 L_startB')
    qloads()
    dma_k(('imm', 0)); dma_k(('imm', SLOT))
    dma_v(('imm', VBASE)); dma_k(('imm', 2*SLOT)); dma_v(('imm', VBASE+SLOT))
    e('s_mov_b32 s%d, 0' % sRet)
    e('s_branch L_startC')
    lab('L_startB')
    dma_k(('imm', 0)); dma_k(('imm', SLOT))
    e('s_waitcnt vmcnt(%d)' % (2 if BDELAY == 1 else 0))
    qloads()
    dma_v(('imm', VBASE)); dma_k(('imm', 2*SLOT)); dma_v(('imm', VBASE+SLOT))
    e('s_mov_b32 s%d, 1' % sRet)
    lab('L_startC')
elif START == 0:
    qloads()
    dma_k(('imm', 0)); dma_k(('imm', SLOT))
    dma_v(('imm', VBASE)); dma_k(('imm', 2*SLOT)); dma_v(('imm', VBASE+SLOT))
    e('s_mov_b32 s%d, 0' % sRet)
else:
    AW = {1: 8, 2: 8, 3: 4, 4: 8, 5: 10}[START]
    e('s_cmp_ge_u32 s2, 256')
    e('s_cbranch_scc1 L_startB')
    qloads()
    dma_k(('imm', 0)); dma_k(('imm', SLOT))
    e('s_waitcnt vmcnt(%d)' % AW)
    dma_v(('imm', VBASE)); dma_k(('imm', 2*SLOT)); dma_v(('imm', VBASE+SLOT))
    e('s_mov_b32 s%d, 0' % sRet)
    e('s_branch L_startC')
    lab('L_startB')
    dma_k(('imm', 0))
    if START in (1, 3, 5):
        e('s_waitcnt vmcnt(0)')
    dma_k(('imm', SLOT))
    if START == 4:
        pass
    else:
        e('s_waitcnt vmcnt(%d)' % (0 if START in (1, 3, 5) else 2))
    qloads()
    dma_v(('imm', VBASE)); dma_k(('imm', 2*SLOT)); dma_v(('imm', VBASE+SLOT))
    e('s_mov_b32 s%d, 1' % sRet)
    lab('L_startC')
if STAMP:
    e('s_and_b32 s65, s65, 0xffff')
    e('s_mov_b32 s66, 0x1000000')
    e('s_mov_b32 s67, 0x20000')
    e('s_lshl_b32 s70, s2, 2')
    e('s_add_u32 s70, s70, s%d' % sW)
    e('s_lshl_b32 s70, s70, 6')
e('v_and_b32 v%d, 7, v%d' % (vA0c, vLane))
e('v_mul_u32_u24 v%d, 1040, v%d' % (vA0c, vA0c))
e('v_bfe_u32 v%d, v%d, 3, 2' % (vA1c, vLane))
e('v_lshl_add_u32 v%d, v%d, 8, v%d' % (vA0c, vA1c, vA0c))
e('v_lshl_add_u32 v%d, v%d, 4, v%d' % (vA0c, vX, vA0c))
e('v_and_b32 v%d, 1, v%d' % (vY, vY))
e('v_lshlrev_b32 v%d, 7, v%d' % (vA1c, vY))
e('v_xor_b32 v%d, 128, v%d' % (vA1, vA1c))
e('v_add_u32 v%d, v%d, v%d' % (vA0, vA0c, vA1c))
e('v_add_u32 v%d, v%d, v%d' % (vA1c, vA0c, vA1))
e('v_mov_b32 v%d, v%d' % (vA0c, vA0))
e('v_bfe_u32 v%d, v%d, 2, 2' % (vAVc, vLane))
e('v_mul_u32_u24 v%d, 1088, v%d' % (vAVc, vAVc))
e('v_lshl_add_u32 v%d, v%d, 8, v%d' % (vAVc, vX, vAVc))
e('v_lshl_add_u32 v%d, v%d, 5, v%d' % (vAVc, vY, vAVc))
e('v_and_b32 v%d, 3, v%d' % (vY, vLane))
e('v_lshl_add_u32 v%d, v%d, 3, v%d' % (vAVc, vY, vAVc))
e('s_mov_b32 s%d, 0x%08x' % (sC, f2u(CC)))
e('s_mov_b32 s%d, 0x%08x' % (sThr, f2u(2.0**THRLOG)))
e('s_mov_b32 s%d, s%d' % (sOS, sOp))
e('s_and_b32 s%d, s%d, 0xffff' % (sOS+1, sOp+1))
for x in set_ka(sX): e(x)
e('s_mov_b32 s%d, 0' % sX)
e('s_mov_b32 s%d, %d' % (sVa, VBASE+2*SLOT))
e('s_mov_b32 s%d, %d' % (sVrd[0], VBASE+3*SLOT))
if BDELAY or START:
    e('s_cmp_eq_u32 s%d, 0' % sRet)
    e('s_cbranch_scc1 L_waitA')
    e('s_waitcnt vmcnt(6)')
    lab('L_waitA')
e('s_waitcnt vmcnt(10)')
tickA()
for s in range(8): e(kread(s))
if STAMP:
    e('v_mov_b32 v250, s74')
    e('v_mov_b32 v251, s75')
    e('v_mov_b32 v252, s70')
    e('s_mov_b64 s[72:73], exec')
    e('s_mov_b64 exec, 1')
    e('buffer_store_dwordx2 v[250:251], v252, s[64:67], 0 offen')
    e('s_mov_b64 exec, s[72:73]')
    stamp(1)
ps = prescale_ops()
for s in range(8):
    e('s_waitcnt lgkmcnt(%d)' % (7-s))
    for x in ps[20*s:20*s+20]: e(x)
e('s_waitcnt vmcnt(%d)' % (6+2*VS))
e('s_barrier')
tickB()
tflush(wait=True)
for x in set_ka(sX): e(x)
for s in range(8): e(kread(s))
dma_k(('imm', 3*SLOT)); dma_k(('imm', 4*SLOT))

def task_prologue(vm_b0):
    dma_v(sVa)
    for x in next_k(sKrd[1], sX): e(x)
    for s in range(8):
        e('s_waitcnt lgkmcnt(%d)' % (7-s))
        e(qk(s, vS[0], '0'))
    for x in set_ka(sKrd[1]): e(x)
    for s in range(8): e(kread(s))
    e('s_and_b32 s%d, s%d, 0xff' % (sT0, sD+3))
    e('s_cmp_eq_u32 s%d, 0' % (sD+7))
    e('s_cselect_b32 s%d, 3, 7' % sT1)
    e('s_cselect_b32 s%d, 1, 0' % sState)
    e('s_sub_u32 s%d, s%d, s%d' % (sEv, sT0, sT1))
    for x in next_v(sVrd[1], sVrd[0]): e(x)
    for x in set_va(sVrd[1]): e(x)
    e('v_mov_b32 v%d, 0' % vL)
    for x in max_ops(vS[0], vX, vY): e(x)
    e('v_mov_b32 v%d, v%d' % (vY, vX))
    e('s_nop 1')
    e('v_permlane32_swap_b32 v%d, v%d' % (vX, vY))
    e('s_nop 1')
    e('v_max_f32 v%d, v%d, v%d' % (vX, vX, vY))
    for r in range(16):
        e('v_sub_f32 v%d, 0, v%d' % (vNM+r, vX))
    for r in range(16):
        e('v_sub_f32 v%d, v%d, v%d' % (vS[0]+r, vS[0]+r, vX))
    tickA()
    e('s_waitcnt vmcnt(%d) lgkmcnt(0)' % vm_b0)
    e('s_barrier')
    tickB()
    tflush(wait=True)

task_prologue(8)
lab('L_step0')
prio(1)
stamp(2)
gaps = [[] for _ in range(8)]
for g in range(8):
    gaps[g] += sm_slot(0, 2*g) + sm_slot(0, 2*g+1)
pre = next_k(sKrd[0], sKrd[1])
gaps[0] = ['s_add_u32 m0, s%d, s%d' % (sKwc, sX)] + gaps[0][:1] + [dk(0), dk(1), 's_add_u32 s%d, s%d, %d' % (sKoff, sKoff, BLK)] + gaps[0][1:]
gaps[1] = ['s_add_u32 m0, s%d, s%d' % (sKwc, sKrd[1])] + gaps[1][:1] + [dk(0), dk(1), 's_add_u32 s%d, s%d, %d' % (sKoff, sKoff, BLK)] + gaps[1][1:]
gaps[2] = pre + gaps[2]
gaps[3] = set_ka(sKrd[0]) + gaps[3]
gaps[4] += [kread(0), kread(1)]
gaps[5] += [kread(2), kread(3)]
gaps[6] += [kread(4), kread(5)]
gaps[7] = [kread(6), kread(7)] + gaps[7]
for g in range(8):
    e(qk(g, vS[1], vr(vNM, 16)))
    for x in gaps[g]: e(x)
e('s_nop 0')
for x in sm_fin(0): e(x)
e('v_add_f32 v%d, v%d, v%d' % (vL, vL, vLt[0]))
e('s_waitcnt vmcnt(%d) lgkmcnt(0)' % 8)

handlers = []
def body(p, tag, first=False):
    lab('L_body%s' % tag)
    e('s_sub_u32 s%d, s%d, 1' % (sEv, sEv))
    e('s_cbranch_scc1 L_ev%s' % tag)
    lab('L_ret%s' % tag)
    handlers.append((tag, p))
    tickA()
    e('s_add_u32 m0, s%d, s%d' % (sVwc, sVrd[1-p]))
    e('s_waitcnt vmcnt(10)')
    e('s_barrier')
    tickB()
    G = [[] for _ in range(16)]
    for g in range(8): G[g] += [VREADS[2*g], VREADS[2*g+1]]
    G[0] += [dv(0)]
    G[1] += [dv(1), 's_add_u32 s%d, s%d, %d' % (sVoff, sVoff, BLK)]
    nk = next_k(sKrd[p], sKrd[1-p])
    G[2] += nk[0:1]; G[3] += nk[1:3]
    for g in range(4): G[8+g] += [kread(2*g), kread(2*g+1)]
    for g in range(16): G[g] += sm_slot(p, g)
    ka = set_ka(sKrd[p])
    G[5] += ka[0:1]; G[7] += ka[1:2]
    nv = next_v(sVrd[1-p], sVrd[p])
    G[9] += nv[0:1]; G[11] += nv[1:3]
    G[12] = ['s_add_u32 m0, s%d, s%d' % (sKwc, sKrd[1-p])] + G[12] + [dk(0)]
    G[13] += set_va(sVrd[1-p]) + [dk(1)]
    G[14] += ['s_add_u32 s%d, s%d, %d' % (sKoff, sKoff, BLK)]
    for g in range(16):
        if g in (8, 12): e('s_waitcnt lgkmcnt(8)')
        if g < 8: e(qk(g, vS[1-p], vr(vNM, 16)))
        else: e(pv((g-8)//4, (g-8) % 4, vP[1-p], zero=first))
        if M16 and INLOOP[0] and flag('split'):
            second = out.pop()
            cost = lambda x: 8 if x.startswith('v_exp') else (12 if x.startswith('buffer') else 4)
            tot = sum(cost(x) for x in G[g]); acc = 0; done = False
            for x in G[g]:
                if not done and acc + cost(x)/2 > tot/2:
                    out.append(second); done = True
                e(x); acc += cost(x)
            if not done: out.append(second)
            continue
        for x in G[g]: e(x)
    e('s_waitcnt lgkmcnt(0)')
    tflush()
    for x in sm_fin(p): e(x)
    e('v_cmp_gt_f32 vcc, v%d, s%d' % (vLt[0], sThr))
    e('s_cbranch_vccnz L_fb%s' % tag)
    lab('L_fbret%s' % tag)
    e('v_add_f32 v%d, v%d, v%d' % (vL, vL, vLt[0]))
body(1, 'F', first=True)
INLOOP[0] = True
body(0, '0')
body(1, '1')
INLOOP[0] = False
e('s_branch L_body0')

def fallback(p, ret, has_next=True):
    e('s_nop 7'); e('s_nop 7')
    for x in max_ops(vS[p], vX, vY): e(x)
    e('v_mov_b32 v%d, v%d' % (vY, vX))
    e('s_nop 1')
    e('v_permlane32_swap_b32 v%d, v%d' % (vX, vY))
    e('s_nop 1')
    e('v_max3_f32 v%d, v%d, v%d, 0' % (vX, vX, vY))
    e('v_exp_f32 v%d, -v%d' % (vY, vX))
    for r in range(16):
        e('v_sub_f32 v%d, v%d, v%d' % (vS[p]+r, vS[p]+r, vX))
    if has_next:
        for r in range(16):
            e('v_sub_f32 v%d, v%d, v%d' % (vS[1-p]+r, vS[1-p]+r, vX))
        for r in range(16):
            e('v_sub_f32 v%d, v%d, v%d' % (vNM+r, vNM+r, vX))
    e('v_mul_f32 v%d, v%d, v%d' % (vL, vL, vY))
    for r in range(64):
        e('v_mul_f32 v%d, v%d, v%d' % (vO+r, vO+r, vY))
    for g in range(16):
        for x in sm_slot(p, g): e(x)
        e('s_nop 0')
    for x in sm_fin(p): e(x)
    e('s_branch %s' % ret)

for tag, p in handlers:
    lab('L_ev%s' % tag)
    e('s_cmp_eq_u32 s%d, 1' % sState)
    e('s_cbranch_scc1 L_evB%s' % tag)
    e('s_cmp_eq_u32 s%d, 2' % sState)
    e('s_cbranch_scc1 L_tail%d' % p)
    e('s_mov_b64 %s, %s' % (sr(sKS, 2), sr(sQp, 2)))
    e('s_mov_b32 s%d, s%d' % (sKS+2, sD+6))
    e('s_mov_b32 s%d, s%d' % (sKoff, sD+5))
    e('s_mov_b32 s%d, 3' % sEv)
    e('s_mov_b32 s%d, 1' % sState)
    e('s_branch L_ret%s' % tag)
    lab('L_evB%s' % tag)
    e('s_mov_b64 %s, %s' % (sr(sKS, 2), sr(sKp, 2)))
    e('s_mov_b32 s%d, s%d' % (sKS+2, sD+6))
    e('s_mov_b32 s%d, s%d' % (sVS+2, sD+6))
    e('s_mov_b32 s%d, s%d' % (sKoff, sD+4))
    e('s_mov_b32 s%d, s%d' % (sVoff, sD+4))
    e('s_mov_b32 s%d, 0' % sEv)
    e('s_mov_b32 s%d, 2' % sState)
    e('s_branch L_ret%s' % tag)
    lab('L_fb%s' % tag)
    fallback(p, 'L_fbret%s' % tag)

def tail(p):
    lab('L_tail%d' % p)
    e('s_add_u32 m0, s%d, s%d' % (sVwc, sVrd[1-p]))
    e('s_lshr_b32 s%d, s%d, 8' % (sT0, sD+3))
    e('v_lshrrev_b32 v%d, 5, v%d' % (vX, vLane))
    e('v_lshlrev_b32 v%d, 2, v%d' % (vX, vX))
    e('v_sub_u32 v%d, s%d, v%d' % (vX, sT0, vX))
    e('v_mov_b32 v%d, 0xff800000' % vY)
    tickA()
    e('s_waitcnt vmcnt(10)')
    e('s_barrier')
    tickB()
    mk = []
    for r0 in range(0, 16, 4):
        for k in range(4):
            r = r0+k
            mk.append('v_cmp_lt_i32 %s, %d, v%d' % (sr(sM[k], 2), 8*(r//4)+r % 4, vX))
        for k in range(4):
            r = r0+k
            mk.append('v_cndmask_b32 v%d, v%d, v%d, %s' % (vS[p]+r, vY, vS[p]+r, sr(sM[k], 2)))
    for g in range(8):
        e(VREADS[2*g]); e(VREADS[2*g+1])
        if g == 0: e(dv(0))
        if g == 1:
            e(dv(1)); e('s_add_u32 s%d, s%d, %d' % (sVoff, sVoff, BLK))
        for x in mk[4*g:4*g+4]: e(x)
    nv = next_v(sVrd[1-p], sVrd[p])
    for x in nv: e(x)
    for g in range(8):
        if g == 0: e('s_waitcnt lgkmcnt(8)')
        if g == 4: e('s_waitcnt lgkmcnt(0)')
        e(pv(g//4, g % 4, vP[1-p]))
        for x in sm_slot(p, 2*g) + sm_slot(p, 2*g+1): e(x)
    for x in set_va(sVrd[1-p]): e(x)
    for x in sm_fin(p): e(x)
    e('v_cmp_gt_f32 vcc, v%d, s%d' % (vLt[0], sThr))
    e('s_cbranch_vccnz L_fbT%d' % p)
    lab('L_fbretT%d' % p)
    e('v_add_f32 v%d, v%d, v%d' % (vL, vL, vLt[0]))
    e('s_mov_b32 s%d, s%d' % (sX, sKrd[p]))
    e('s_mov_b32 s%d, s%d' % (sVa, sVrd[p]))
    if p == 0:
        e('s_mov_b32 s%d, s%d' % (sVrd[0], sVrd[1]))
    tflush(wait=True)
    tickA()
    e('s_cmp_eq_u32 s%d, 0' % (sD+7))
    e('s_cbranch_scc0 L_tailQ%d' % p)
    e('s_waitcnt vmcnt(6)')
    e('s_barrier')
    tickB()
    for x in VREADS: e(x)
    for g in range(8):
        if g == 0: e('s_waitcnt lgkmcnt(8)')
        if g == 4: e('s_waitcnt lgkmcnt(0)')
        e(pv(g//4, g % 4, vP[p]))
    e('s_barrier')
    e('s_branch L_epi')
    lab('L_tailQ%d' % p)
    e('s_add_u32 s%d, s%d, 1' % (sT0, sW))
    e('s_mul_i32 s%d, s%d, %d' % (sT0, sT0, SLOT))
    e('s_add_u32 s%d, s%d, s%d' % (sT0, sT0, sX))
    e('s_sub_u32 s%d, s%d, %d' % (sT1, sT0, NK*SLOT))
    e('s_cselect_b32 s%d, s%d, s%d' % (sT0, sT0, sT1))
    for x in set_ka(sT0): e(x)
    e('s_waitcnt vmcnt(6)')
    e('s_barrier')
    tickB()
    for x in VREADS[:8]: e(x)
    for s in range(4): e(kread(s))
    for x in VREADS[8:]: e(x)
    for s in range(4, 8): e(kread(s))
    ps = prescale_ops()
    if p == 0:
        pass
    for g in range(8):
        if g == 0: e('s_waitcnt lgkmcnt(12)')
        if g == 4: e('s_waitcnt lgkmcnt(0)')
        e(pv(g//4, g % 4, vP[p]))
        if g == 4:
            e('s_barrier')
            e('s_mov_b32 s%d, s%d' % (sT0, sX))
            for k in range(4):
                for x in next_k(sT0, sT0): e(x)
                dma_k(sT0)
        for x in ps[20*g:20*g+20]: e(x)
    e('s_branch L_epi')
    lab('L_fbT%d' % p)
    fallback(p, 'L_fbretT%d' % p, has_next=False)
tail(0)
tail(1)

lab('L_epi')
prio(2)
tflush(wait=True)
tickA()
if STAMP:
    e('s_cmp_eq_u32 s%d, 0' % (sD+7))
    e('s_cbranch_scc1 L_st5')
    stamp(3)
    e('s_branch L_st3')
    lab('L_st5')
    stamp(5)
    lab('L_st3')
e('v_mov_b32 v%d, v%d' % (vY, vL))
e('s_and_b32 s%d, s%d, 1' % (sT0, sW))
e('s_mul_i32 s%d, s%d, 4352' % (sT0, sT0))
e('v_permlane32_swap_b32 v%d, v%d' % (vL, vY))
e('s_cmp_ge_u32 s%d, 2' % sW)
e('s_cselect_b32 s%d, s%d, s%d' % (sT1, sVrd[0], sVa))
e('s_add_u32 s%d, s%d, s%d' % (sT0, sT0, sT1))
e('v_add_f32 v%d, v%d, v%d' % (vL, vL, vY))
e('v_rcp_f32 v%d, v%d' % (vL, vL))
W = vP[0]
RD0, RD1, ST = vP[1], vP[1]+1, vP[1]+2
e('v_and_b32 v%d, 31, v%d' % (vX, vLane))
e('v_lshlrev_b32 v%d, 7, v%d' % (W, vX))
e('v_bfe_u32 v%d, v%d, 1, 3' % (vX, vLane))
e('v_lshl_add_u32 v%d, v%d, 4, v%d' % (W, vX, W))
e('v_lshrrev_b32 v%d, 5, v%d' % (vX, vLane))
e('v_lshl_add_u32 v%d, v%d, 3, v%d' % (W, vX, W))
e('v_add_u32 v%d, s%d, v%d' % (W, sT0, W))
for c in range(1, 8):
    e('v_xor_b32 v%d, %d, v%d' % (W+c, 16*c, W))
e('v_lshrrev_b32 v%d, 3, v%d' % (vX, vLane))
e('v_and_b32 v%d, 7, v%d' % (vY, vLane))
e('v_lshlrev_b32 v%d, 12, v%d' % (ST, vX))
e('v_lshl_add_u32 v%d, v%d, 4, v%d' % (ST, vY, ST))
e('v_lshrrev_b32 v%d, 4, v%d' % (vZ, vLane))
e('v_xor_b32 v%d, v%d, v%d' % (vY, vY, vZ))
e('v_lshlrev_b32 v%d, 7, v%d' % (RD0, vX))
e('v_lshl_add_u32 v%d, v%d, 4, v%d' % (RD0, vY, RD0))
e('v_add_u32 v%d, s%d, v%d' % (RD0, sT0, RD0))
e('v_xor_b32 v%d, 64, v%d' % (RD1, RD0))
e('s_lshl_b32 s%d, s%d, 17' % (sT1, sW))
e('s_add_u32 s%d, s%d, s%d' % (sT1, sT1, sD+1))
e('s_mov_b32 s%d, s%d' % (sOS+2, sD+2))
e('s_add_u32 s%d, s%d, %d' % (sT2, sT1, 8*4096))
e('s_add_u32 s%d, s%d, %d' % (sT3, sT1, 16*4096))
e('s_add_u32 s%d, s%d, %d' % (sRet, sT1, 24*4096))
soffs = [sT1, sT2, sT3, sRet]
def stage_round(rho):
    for bb in range(2):
        b = 2*rho + bb
        for j in range(4):
            base = vO + 16*b + 4*j
            d = vS[0] + (b*4+j)*2
            for k in range(4):
                e('v_mul_f32 v%d, v%d, v%d' % (base+k, base+k, vL))
            e('v_cvt_pk_bf16_f32 v%d, v%d, v%d' % (d, base, base+1))
            e('v_cvt_pk_bf16_f32 v%d, v%d, v%d' % (d+1, base+2, base+3))
            e('ds_write_b64 v%d, %s' % (W+4*bb+j, vr(d, 2)))
    for k in range(4):
        e('ds_read_b128 %s, v%d offset:%d' % (vr(vV+16*rho+4*k, 4), RD1 if k & 1 else RD0, 1024*k))
def store_round(rho, base_cnt):
    for k in range(4):
        e('s_waitcnt lgkmcnt(%d)' % (base_cnt+3-k))
        e('buffer_store_dwordx4 %s, v%d, %s, s%d offen offset:%d%s' % (vr(vV+16*rho+4*k, 4), ST, sr(sOS, 4), soffs[k], 128*rho, SF))
stage_round(0)
stage_round(1)
store_round(0, 12)
store_round(1, 0)
tickB()
tflush(wait=True)
e('s_cmp_eq_u32 s%d, 0' % (sD+7))
e('s_cbranch_scc1 L_fin')
prio(0)
e('s_mov_b64 %s, %s' % (sr(sD, 2), sr(sD+4, 2)))
e('s_mov_b64 %s, %s' % (sr(sD+2, 2), sr(sD+6, 2)))
e('s_mov_b64 %s, 0' % sr(sD+4, 2))
e('s_mov_b64 %s, 0' % sr(sD+6, 2))
for x in set_ka(sX): e(x)
tickA()
e('s_waitcnt vmcnt(%d)' % (14+VS))
e('s_barrier')
tickB()
tflush(wait=True)
stamp(4)
for s in range(8): e(kread(s))
task_prologue(14)
e('s_branch L_step0')
lab('L_fin')
if STAMP:
    stamp(6)
    e('s_waitcnt vmcnt(0)')
    stamp(7)
if PROF:
    e('s_waitcnt vmcnt(0)')
    e('s_memtime s[68:69]')
    e('s_memrealtime s[72:73]')
    e('s_waitcnt lgkmcnt(0)')
    e('v_writelane_b32 v253, s76, 62')
    e('v_writelane_b32 v254, s74, 62')
    e('v_writelane_b32 v253, s68, 63')
    e('v_writelane_b32 v254, s72, 63')
    e('v_writelane_b32 v253, s71, 61')
    e('s_and_b32 s65, s65, 0xffff')
    e('s_mov_b32 s66, 0x1000000')
    e('s_mov_b32 s67, 0x20000')
    e('s_lshl_b32 s70, s2, 2')
    e('s_add_u32 s70, s70, s%d' % sW)
    e('s_lshl_b32 s70, s70, 9')
    e('v_lshlrev_b32 v252, 2, v%d' % vLane)
    e('s_nop 4')
    e('buffer_store_dword v253, v252, s[64:67], s70 offen')
    e('buffer_store_dword v254, v252, s[64:67], s70 offen offset:256')
lab('L_end')
e('s_endpgm')
out.append('.p2align 6')
out.append('.type L_table,@object')
lab('L_table')
for row in table:
    out.append('    .long ' + ', '.join('0x%08x' % x for x in row))
out.append('.size L_table, %d' % (32*NWG))
out.append('''.section .rodata,"a"
.p2align 6
.amdhsa_kernel %s_kernel
  .amdhsa_next_free_vgpr %d
  .amdhsa_next_free_sgpr %d
  .amdhsa_accum_offset %d
  .amdhsa_group_segment_fixed_size 0
  .amdhsa_kernarg_size 56
  .amdhsa_user_sgpr_count 2
  .amdhsa_user_sgpr_kernarg_segment_ptr 1
  .amdhsa_system_sgpr_workgroup_id_x 1
.end_amdhsa_kernel''' % (NAME, NVGPR, NSGPR, NVGPR))
dst = [a for a in sys.argv[1:] if not a.startswith('--')]
open(dst[0] if dst else 'cdna_kernels/%s.s' % NAME, 'w').write('\n'.join(out) + '\n')
```

```python
import sys, math, struct, json
CU = [0, 321, 555, 878, 1299, 1551, 1670, 1878, 2181, 2351, 2646, 2810, 3248, 3471, 3811, 4169, 4391]
NAME = "standalone__varlen_attn_packed__ragged"
HEADER = open('cdna_kernels/%s.s.ref' % NAME).read().split('; Override launch')[0]

def opt(name, default=None):
    for a in sys.argv[1:]:
        if a.startswith('--%s=' % name): return a.split('=', 1)[1]
    return default
def flag(name): return ('--' + name) in sys.argv
STAMP = flag('stamp'); PROF = flag('prof'); CLK = flag('clk'); FINE = flag('fine')
QF = opt('qf', 'nt'); KF = opt('kf', 'nt'); SF = opt('sf', '')
QF = (' ' + QF.replace('+', ' ')) if QF else ''
KF = (' ' + KF.replace('+', ' ')) if KF else ''
SF = (' ' + SF.replace('+', ' ')) if SF else ''
THRLOG = int(opt('thr', 14))
LOWLOG = int(opt('low', 40))
SCHED = opt('sched', 'a')
CLS = opt('cls', '01')
PRI = opt('pri', '00')
PPRO = opt('ppro', None)
PEPI = opt('pepi', None)
PTR = opt('ptr', None)
USEPRI = PPRO is not None or PEPI is not None or PTR is not None
NOIDLE = flag('noidle')
XL = opt('xl', '')
BW = dict((int(a), int(b)) for a, b in (x.split(':') for x in opt('bw', '4:2').split(',') if x))
PK = opt('pk', '')

out = []
IDLE = [False]
INLOOP = [False]
dsq = []
def e(s, tag=None):
    if s is None: return
    if isinstance(s, tuple): s, tag = s
    if INLOOP[0] and XL:
        if 'd' in XL and s.startswith('buffer_load'): return
        if 'v' in XL and s.startswith('ds_read_b64'): return
        if 'k' in XL and s.startswith('ds_read_b128'): return
        if 'e' in XL and s.startswith('v_exp'): return
        if 'a' in XL and s.startswith('v_add_f32'): return
        if 'c' in XL and s.startswith('v_cvt'): return
        if 'b' in XL and s.startswith('s_barrier'): return
    if s.startswith('ds_'): dsq.append(tag)
    if IDLE[0]:
        if s.startswith('ds_') or s.startswith('s_nop'): return
        if s.startswith('v_') and not s.startswith('v_add_u32') and not s.startswith('v_writelane') and not s.startswith('v_mov_b32 v25'): return
        if s.startswith('s_waitcnt lgkmcnt') and not (PROF or STAMP): return
        if s.startswith('s_cbranch_vccnz'): return
        if s.startswith('s_add_u32 m0'):
            out.append('    ' + s); s = 's_nop 0'
    out.append('    ' + s)
def need(*tags, vm=None):
    last = -1
    for t in tags:
        idx = [i for i, x in enumerate(dsq) if x == t]
        if idx: last = max(last, idx[-1])
    if last < 0:
        if vm is not None: e('s_waitcnt vmcnt(%d)' % vm)
        return
    n = min(15, len(dsq) - 1 - last)
    e('s_waitcnt %slgkmcnt(%d)' % ('vmcnt(%d) ' % vm if vm is not None else '', n))
    del dsq[:len(dsq) - n]
def drain(vm=None):
    e('s_waitcnt %slgkmcnt(0)' % ('vmcnt(%d) ' % vm if vm is not None else ''))
    del dsq[:]
def lab(s): out.append(s + ('I' if IDLE[0] else '') + ':')
def L(s): return s + ('I' if IDLE[0] else '')

NB = [(CU[s+1]-CU[s]+31)//32 for s in range(16)]
def make_schedule():
    byn = {}
    for s in range(16):
        for hs in range(2):
            for g in range((NB[s]+3)//4):
                byn.setdefault(NB[s], []).append((s, hs, g))
    def take(n): return byn[n].pop(0)
    plan = ([([14], [12])]*6 + [([14], [14])]*2 + [([14], [11])]*6 + [([7, 7], [11])]*6 + [([8, 6], [11])]*6
            + [([10, 4], [10])]*2 + [([10, 6], [10])]*2 + [([10, 8], [10])]*2)
    res = [[[None]*len(a), [None]*len(b)] for a, b in plan]
    for lane in (0, 1):
        for i, p in enumerate(plan):
            res[i][lane][0] = take(p[lane][0])
    for lane in (0, 1):
        for i, p in enumerate(plan):
            if len(p[lane]) > 1: res[i][lane][1] = take(p[lane][1])
    assert all(len(v) == 0 for v in byn.values())
    return [[dict(tasks=res[i][l], cls=int(CLS[l]), pri=int(PRI[l])) for l in (0, 1)] for i in range(32)]
if SCHED.endswith('.json'):
    sched = json.load(open(SCHED))
else:
    base = make_schedule()
    sched = [[[dict(tasks=[[s, ((x+s) & 7) + 8*hs, gq, 0] for (s, hs, gq) in ln['tasks']], cls=ln['cls'], pri=ln['pri']) for ln in cu] for cu in base] for x in range(8)]
seen = set()
for xs in sched:
    for cu in xs:
        for ln in cu:
            for t in ln['tasks']:
                assert tuple(t[:3]) not in seen and t[2] < (NB[t[0]]+3)//4; seen.add(tuple(t[:3]))
assert len(seen) == 82*8
NWG = 512
def desc(t, extra=0):
    if t is None: return [0, 0, 0, 0]
    s, head, g, rot = t
    Ls = CU[s+1]-CU[s]; n = NB[s]
    return [CU[s]*4096 + head*256, (CU[s]+128*g)*4096 + head*256, CU[s+1]*4096, n | ((Ls-32*(n-1)) << 8) | (rot << 22) | extra]
table = []
for wg in range(NWG):
    xcd = wg & 7; j = wg >> 3
    ln = sched[xcd][j % 32][j // 32]
    tk_ = ln['tasks']
    assert len(tk_) == 1 or NB[tk_[0][0]] >= 6
    table.append(desc(tk_[0], (ln['cls'] << 16) | (ln['pri'] << 20)) + desc(tk_[1] if len(tk_) > 1 else None))
FIXN = int(opt('fixn', 0))
if FIXN:
    NWG = int(opt('nwg', 512))
    table = []
    for wg in range(NWG):
        xcd = wg & 7; j = wg >> 3
        head = xcd + 8*(j & 1)
        r0 = ((j >> 1) % 2) * 2048
        table.append([r0*4096 + head*256, (128*(j >> 1))*4096 + head*256, 4391*4096, FIXN | (32 << 8) | ((j//32) << 16), 0, 0, 0, 0])

PS = 1056
SLOT = 8*PS
NK, NV = 5, 4
KBASE = NV*SLOT
KEND = KBASE + NK*SLOT
LDS = KEND
VX2 = 2*SLOT
assert (SLOT & VX2) == 0
BLK = 32*4096
def kb(i): return (KBASE + i*SLOT - KEND) & 0xffffffff

sQp, sKp, sVp, sOp = 4, 6, 8, 10
sD = 12
sKS, sVS, sOS = 20, 24, 28
sW = 32
sKoff, sVoff = 33, 34
sKrd = [35, 36]; sVrd = [37, 38]
sWc, sWcK = 39, 40
sEv, sState = 41, 42
sX, sVa = 43, 44
sT0, sT1, sT2, sT3 = 45, 46, 47, 48
sPri = 49
sC = 50
sK1 = 51
sThr = 52
sT4 = 53
sM = [54, 56, 58, 60]
sFirst = 62
sWq = 3
sLow = 63
NSGPR = 100 if FINE else 80

vG0, vG1 = 1, 2
vAKc, vAVc, vAK, vAV = 3, 4, 5, 6
vWc, vRDc, vST = 7, 8, 9
vLane = 10
vX, vY, vZ = 11, 12, 13
vX2, vY2 = 14, 15
vQ = 16
vO = 48
vS = [112, 128]
vP = [144, 152]
vK = 160
vV = 192
vNM = 224
vL = [[232, 233], [234, 235]]
vT = [236, 237, 238, 239]
vW = 240
vRD = 244
vR = [245, 246]
NVGPR = 256 if (STAMP or PROF) else 248

def vr(b, n): return 'v[%d:%d]' % (b, b+n-1)
def sr(b, n): return 's[%d:%d]' % (b, b+n-1)
CC = 128 ** -0.5 * math.log2(math.e)
def f2u(x): return struct.unpack('<I', struct.pack('<f', x))[0]

def dk(which):
    if which == 0: return 'buffer_load_dwordx4 v%d, %s, s%d offen%s lds' % (vG0, sr(sKS, 4), sKoff, KF)
    return 'buffer_load_dwordx4 v%d, %s, s%d offen offset:%d%s lds' % (vG1, sr(sKS, 4), sKoff, PS, KF)
def dv(which):
    if which == 0: return 'buffer_load_dwordx4 v%d, %s, s%d offen%s lds' % (vG0, sr(sVS, 4), sVoff, KF)
    return 'buffer_load_dwordx4 v%d, %s, s%d offen offset:%d%s lds' % (vG1, sr(sVS, 4), sVoff, PS, KF)
def m0imm(addr): return 's_add_u32 m0, s%d, %d' % (sWc, addr)
def m0v(s): return 's_add_u32 m0, s%d, s%d' % (sWc, s)
def m0k(s): return 's_add_u32 m0, s%d, s%d' % (sWcK, s)
KADV = 's_add_u32 s%d, s%d, %d' % (sKoff, sKoff, BLK)
VADV = 's_add_u32 s%d, s%d, %d' % (sVoff, sVoff, BLK)
def next_k(dst, src):
    return ['s_add_u32 s%d, s%d, %d' % (dst, src, SLOT),
            's_cselect_b32 s%d, 0x%x, s%d' % (dst, kb(0), dst)]
def next_v(dst, src):
    return ['s_add_u32 s%d, s%d, %d' % (dst, src, SLOT),
            's_cmp_ge_u32 s%d, %d' % (dst, NV*SLOT),
            's_cselect_b32 s%d, 0, s%d' % (dst, dst)]
def xor_v(s): return 's_xor_b32 s%d, s%d, 0x%x' % (s, s, VX2)
def set_ka(s): return 'v_add_u32 v%d, s%d, v%d' % (vAK, s, vAKc)
def set_va(s): return 'v_add_u32 v%d, s%d, v%d' % (vAV, s, vAVc)
def kread(f, dst=vK, tag='k'):
    return ('ds_read_b128 %s, v%d offset:%d' % (vr(dst+4*f, 4), vAK, 512*(f//4) + 64*(f % 4)), '%s%d' % (tag, f))
KORD = [0, 4, 1, 5, 2, 6, 3, 7]
def vread(k):
    dt, h = k//2, k % 2
    return ('ds_read_b64_tr_b16 %s, v%d offset:%d' % (vr(vV+4*dt+2*h, 2), vAV, 32*dt + 512*h), 'v%d' % k)
VREADS = [vread(k) for k in range(16)]
IJ = [(0, 0), (0, 1), (1, 1), (1, 0)]
def qk(idx, S, A=vK, B=vQ):
    ks = idx//4; i, j = IJ[idx % 4]
    D = S + 8*j + 4*i
    c = vr(D, 4) if ks else vr(vNM+4*j, 4)
    return 'v_mfma_f32_16x16x32_bf16 %s, %s, %s, %s' % (vr(D, 4), vr(A+4*(4*i+ks), 4), vr(B+4*(4*j+ks), 4), c)
def qk_frag(idx): return 4*IJ[idx % 4][0] + idx//4
def pv(idx, P, zero=False):
    dt = idx//2; j = (idx % 2) ^ (dt & 1)
    D = vO + 8*dt + 4*j
    return 'v_mfma_f32_16x16x32_bf16 %s, %s, %s, %s' % (vr(D, 4), vr(vV+4*dt, 4), vr(P+4*j, 4), '0' if zero else vr(D, 4))
def ex(p, x): return 'v_exp_f32 v%d, v%d' % (vT[x % 4], vS[p]+x)
def ad(p, x, first=False):
    j = x//8
    if x % 8 == 0:
        if first: return 'v_mov_b32 v%d, v%d' % (vL[p][j], vT[x % 4])
        return 'v_add_f32 v%d, v%d, v%d' % (vL[p][j], vL[1-p][j], vT[x % 4])
    return 'v_add_f32 v%d, v%d, v%d' % (vL[p][j], vL[p][j], vT[x % 4])
def cv(p, k): return 'v_cvt_pk_bf16_f32 v%d, v%d, v%d' % (vP[p]+k, vT[(2*k) % 4], vT[(2*k+1) % 4])
def sm_slot(p, x, first=False):
    ops = [ex(p, x)]
    if x >= 1: ops.append(ad(p, x-1, first))
    if x >= 2 and x % 2 == 0: ops.append(cv(p, (x-2)//2))
    return ops
def sm_fin(p): return [ad(p, 15), cv(p, 7)]
def check_ops(p):
    return ['v_max_f32 v%d, v%d, v%d' % (vX, vL[p][0], vL[p][1]),
            'v_cmp_lt_f32 vcc, s%d, v%d' % (sThr, vX)]
def max8(S, a, b):
    return ['v_max3_f32 v%d, v%d, v%d, v%d' % (a, S, S+1, S+2),
            'v_max3_f32 v%d, v%d, v%d, v%d' % (b, S+8, S+9, S+10),
            'v_max3_f32 v%d, v%d, v%d, v%d' % (a, a, S+3, S+4),
            'v_max3_f32 v%d, v%d, v%d, v%d' % (b, b, S+11, S+12),
            'v_max3_f32 v%d, v%d, v%d, v%d' % (a, a, S+5, S+6),
            'v_max3_f32 v%d, v%d, v%d, v%d' % (b, b, S+13, S+14),
            'v_max_f32 v%d, v%d, v%d' % (a, a, S+7),
            'v_max_f32 v%d, v%d, v%d' % (b, b, S+15)]
def xlane(op, a, b):
    return [None,
            'v_permlane32_swap_b32 v%d, v%d' % (a, b), None,
            '%s v%d, v%d, v%d' % (op, a, a, b),
            'v_mov_b32 v%d, v%d' % (b, a), None,
            'v_permlane16_swap_b32 v%d, v%d' % (a, b), None,
            '%s v%d, v%d, v%d' % (op, a, a, b),
            'v_mov_b32 v%d, v%d' % (b, a), None,
            'v_permlane32_swap_b32 v%d, v%d' % (a, b), None]
def emit_fill(seq, fill):
    for x in seq:
        if x is None:
            if len(fill) >= 2: e(fill.pop(0)); e(fill.pop(0))
            else: e('s_nop 1')
        else: e(x)
def prescale_ops():
    seq = []
    n = 0
    for f in KORD:
        for h in range(2):
            ops = []
            for i in (4*f+2*h, 4*f+2*h+1):
                t = vS[1] + 2*(n % 8); n += 1
                ops.append(['v_lshlrev_b32 v%d, 16, v%d' % (t, vK+i),
                            'v_and_b32 v%d, 0xffff0000, v%d' % (t+1, vK+i),
                            'v_mul_f32 v%d, s%d, v%d' % (t, sC, t),
                            'v_mul_f32 v%d, s%d, v%d' % (t+1, sC, t+1),
                            'v_cvt_pk_bf16_f32 v%d, v%d, v%d' % (vQ+i, t, t+1)])
            a, b = ops
            if 'p' in PK:
                for o in (a, b):
                    t = int(o[2].split()[1][1:-1])
                    o[2] = 'v_pk_mul_f32 %s, %s, %s op_sel_hi:[1,0]' % (vr(t, 2), vr(t, 2), sr(sC, 2)); o[3] = None
            seq += [a[0], a[1], b[0], b[1], a[2], a[3], b[2], b[3], a[4], b[4]]
    return seq

def stamp(slot):
    if not STAMP: return
    e('s_memrealtime s[68:69]')
    drain()
    e('v_mov_b32 v250, s68')
    e('v_mov_b32 v251, s69')
    e('v_mov_b32 v252, s70')
    e('s_mov_b64 s[72:73], exec')
    e('s_mov_b64 exec, 1')
    e('buffer_store_dwordx2 v[250:251], v252, s[64:67], 0 offen offset:%d' % (slot*8))
    e('s_mov_b64 exec, s[72:73]')
    e('s_nop 3')
def tickA():
    if PROF: e('s_memtime s[68:69]')
    if PROF and CLK: e('s_memrealtime s[72:73]')
def tickB():
    if PROF and not CLK: e('s_memtime s[72:73]')
def tflush():
    if not PROF: return
    drain()
    e('s_mov_b32 m0, s71')
    e('s_add_u32 s71, s71, 1')
    e('v_writelane_b32 v253, s68, m0')
    e('v_writelane_b32 v254, s72, m0')
_tk = [0]
def tk():
    if FINE:
        e('s_memtime s[%d:%d]' % (80+2*_tk[0], 81+2*_tk[0])); _tk[0] += 1
def tkflush():
    if not FINE: return
    drain()
    n = _tk[0]
    for i in range(0, n, 2):
        e('s_mov_b32 m0, s71')
        e('s_add_u32 s71, s71, 1')
        e('v_writelane_b32 v253, s%d, m0' % (80+2*i))
        e('v_writelane_b32 v254, s%d, m0' % (80+2*min(i+1, n-1)))
    _tk[0] = 0
_pn = [0]
def prio_loop():
    _pn[0] += 1
    e('s_cmp_eq_u32 s%d, 0' % sPri)
    if USEPRI: e('s_setprio 1')
    e('s_cbranch_scc1 L_pr%d' % _pn[0])
    e('s_setprio %d' % (2 if USEPRI else 1))
    out.append('L_pr%d:' % _pn[0])

out.append(HEADER.rstrip())
out.append('; @launch grid=(%d,1,1) block=(256,1,1) lds=%d' % (NWG, LDS))
out.append('.amdgcn_target "amdgcn-amd-amdhsa--gfx950"')
out.append('.text')
out.append('.globl %s_kernel' % NAME)
out.append('.p2align 8')
out.append('.type %s_kernel,@function' % NAME)
lab('%s_kernel' % NAME)
e('s_cmp_ge_u32 s2, %d' % NWG)
e('s_cbranch_scc1 L_end')
e('s_getpc_b64 s[46:47]')
lab('L_pc')
e('s_load_dwordx4 s[4:7], s[0:1], 0')
e('s_lshl_b32 s3, s2, 5')
e('s_add_u32 s3, s3, L_table-L_pc')
e('s_add_u32 s46, s46, s3')
e('s_addc_u32 s47, s47, 0')
e('s_load_dwordx8 s[12:19], s[46:47], 0')
e('s_load_dwordx2 s[8:9], s[0:1], 16')
e('s_load_dwordx2 s[10:11], s[0:1], 32')
if STAMP or PROF:
    e('s_load_dwordx2 s[64:65], s[0:1], 48')
    e('s_memrealtime s[74:75]')
if PROF:
    e('s_memtime s[76:77]')
    e('s_mov_b32 s71, 0')
e('v_and_b32 v%d, 63, v0' % vLane)
e('v_lshrrev_b32 v%d, 6, v0' % vX)
e('v_lshrrev_b32 v%d, 4, v%d' % (vY, vLane))
e('v_readfirstlane_b32 s%d, v%d' % (sW, vX))
e('v_and_b32 v%d, 15, v%d' % (vZ, vLane))
e('v_lshlrev_b32 v%d, 4, v%d' % (vG0, vZ))
e('v_lshl_add_u32 v%d, v%d, 15, v%d' % (vT[0], vY, vG0))
e('s_lshl_b32 s%d, s%d, 13' % (sT0, sW))
e('v_add_u32 v%d, s%d, v%d' % (vG0, sT0, vT[0]))
e('v_add_u32 v%d, %d, v%d' % (vG1, 4096-PS, vG0))
e('s_mul_i32 s%d, s%d, %d' % (sWc, sW, 2*PS))
e('s_add_u32 s%d, s%d, %d' % (sWcK, sWc, KEND))
e('s_add_u32 s%d, s%d, 7' % (sX, sW))
e('s_cmp_ge_u32 s%d, 2' % sW)
e('s_cselect_b32 s%d, s%d, s%d' % (sX, sW, sX))
e('s_mul_i32 s%d, s%d, %d' % (sX, sX, SLOT))
e('s_mov_b32 s%d, 0x20000' % (sKS+3))
e('s_mov_b32 s%d, 0x20000' % (sVS+3))
e('s_mov_b32 s%d, 0x20000' % (sOS+3))
e('s_waitcnt lgkmcnt(0)')
e('s_and_b32 s%d, s%d, 0xffff' % (sKp+1, sKp+1))
e('s_mov_b64 %s, %s' % (sr(sKS, 2), sr(sKp, 2)))
e('s_mov_b32 s%d, s%d' % (sKS+2, sD+2))
e('s_mov_b32 s%d, s%d' % (sKoff, sD))
e('s_bfe_u32 s%d, s%d, 0x40010' % (sT2, sD+3))
e('s_and_b32 s%d, s%d, 0xffff' % (sQp+1, sQp+1))
def ldseq(waits):
    cnt = [0]
    def ld(s):
        e(s); cnt[0] += 1
        if cnt[0] in waits: e('s_waitcnt vmcnt(%d)' % waits[cnt[0]])
    e(m0imm(KBASE)); e('s_mov_b64 %s, %s' % (sr(sOS, 2), sr(sQp, 2))); ld(dk(0))
    e('s_mov_b32 s%d, s%d' % (sOS+2, sD+2))
    e('s_lshr_b32 s%d, s%d, 22' % (sWq, sD+3))
    ld(dk(1)); e(KADV)
    e(m0imm(KBASE+SLOT)); e('s_mov_b32 s%d, s%d' % (sVS, sVp)); ld(dk(0))
    e('s_and_b32 s%d, s%d, 0xffff' % (sVS+1, sVp+1))
    ld(dk(1)); e(KADV)
    e('s_add_u32 s%d, s%d, s%d' % (sWq, sWq, sW))
    e('s_and_b32 s%d, s%d, 3' % (sWq, sWq))
    e('s_lshl_b32 s%d, s%d, 17' % (sWq, sWq))
    e('s_add_u32 s%d, s%d, s%d' % (sT1, sD+1, sWq))
    e('s_mov_b32 s%d, s%d' % (sVS+2, sD+2))
    e('s_mov_b32 s%d, s%d' % (sVoff, sD))
    for j in range(8):
        e('s_add_u32 m0, s%d, %d' % (sX, j*PS))
        if j: e('s_add_u32 s%d, s%d, 4096' % (sT1, sT1))
        else: e('s_nop 0')
        ld('buffer_load_dwordx4 v%d, %s, s%d offen%s lds' % (vT[0], sr(sOS, 4), sT1, QF))
    e(m0imm(0)); e('s_sub_u32 s%d, s%d, %d' % (sX, sX, KEND)); ld(dv(0)); ld(dv(1)); e(VADV)
    e(m0imm(KBASE+2*SLOT)); e('s_nop 0'); ld(dk(0)); ld(dk(1)); e(KADV)
    e(m0imm(SLOT)); e('s_nop 0'); ld(dv(0)); ld(dv(1)); e(VADV)
e('s_cmp_eq_u32 s%d, 0' % sT2)
e('s_cbranch_scc0 L_ldB')
ldseq({})
e('s_branch L_ldone')
lab('L_ldB')
ldseq(BW)
lab('L_ldone')
if STAMP:
    e('s_and_b32 s65, s65, 0xffff')
    e('s_mov_b32 s66, 0x1000000')
    e('s_mov_b32 s67, 0x20000')
    e('s_lshl_b32 s70, s2, 2')
    e('s_add_u32 s70, s70, s%d' % sW)
    e('s_lshl_b32 s70, s70, 6')
e('s_bfe_u32 s%d, s%d, 0x20014' % (sPri, sD+3))
if PPRO is not None: e('s_setprio %d' % int(PPRO))
else: prio_loop()
e('v_and_b32 v%d, 7, v%d' % (vX, vLane))
e('v_mul_u32_u24 v%d, %d, v%d' % (vAKc, PS, vX))
e('v_bfe_u32 v%d, v%d, 3, 1' % (vT[1], vLane))
e('v_lshl_add_u32 v%d, v%d, 8, v%d' % (vAKc, vT[1], vAKc))
e('v_lshl_add_u32 v%d, v%d, 4, v%d' % (vAKc, vY, vAKc))
e('v_add_u32 v%d, %d, v%d' % (vAKc, KEND, vAKc))
e(set_ka(sX))
e('v_bfe_u32 v%d, v%d, 2, 3' % (vAVc, vLane))
e('v_mul_u32_u24 v%d, %d, v%d' % (vAVc, PS, vAVc))
e('v_lshrrev_b32 v%d, 5, v%d' % (vX2, vLane))
e('v_lshl_add_u32 v%d, v%d, 8, v%d' % (vAVc, vX2, vAVc))
e('v_and_b32 v%d, 3, v%d' % (vY2, vLane))
e('v_lshl_add_u32 v%d, v%d, 3, v%d' % (vAVc, vY2, vAVc))
e('v_xor_b32 v%d, v%d, v%d' % (vWc, vX2, vX))
e('v_lshlrev_b32 v%d, 4, v%d' % (vWc, vWc))
e('v_lshl_add_u32 v%d, v%d, 7, v%d' % (vWc, vZ, vWc))
e('v_and_b32 v%d, 1, v%d' % (vY2, vY))
e('v_xor_b32 v%d, v%d, v%d' % (vY2, vY2, vT[1]))
e('v_lshl_add_u32 v%d, v%d, 3, v%d' % (vWc, vY2, vWc))
e('s_and_b32 s%d, s%d, 1' % (sT0, sW))
e('s_lshl_b32 s%d, s%d, 12' % (sT0, sT0))
e('v_add_u32 v%d, s%d, v%d' % (vWc, sT0, vWc))
e('v_lshrrev_b32 v%d, 3, v%d' % (vY2, vLane))
e('v_xor_b32 v%d, v%d, v%d' % (vRDc, vY2, vX))
e('v_lshlrev_b32 v%d, 4, v%d' % (vRDc, vRDc))
e('v_lshl_add_u32 v%d, v%d, 7, v%d' % (vRDc, vY2, vRDc))
e('v_add_u32 v%d, s%d, v%d' % (vRDc, sT0, vRDc))
e('v_lshlrev_b32 v%d, 12, v%d' % (vST, vY2))
e('v_lshl_add_u32 v%d, v%d, 4, v%d' % (vST, vX, vST))
for r in range(8): e('v_mov_b32 v%d, 0' % (vNM+r))
e('s_mov_b32 s%d, 0x%08x' % (sC, f2u(CC)))
e('s_mov_b32 s%d, 0x%08x' % (sThr, f2u(2.0**THRLOG)))
e('s_mov_b32 s%d, 0x%08x' % (sLow, f2u(2.0**-LOWLOG)))
e('s_mov_b32 s%d, s%d' % (sOS, sOp))
e('s_and_b32 s%d, s%d, 0xffff' % (sOS+1, sOp+1))
e('s_mov_b32 s%d, 0x%x' % (sX, kb(0)))
e('s_mov_b32 s%d, %d' % (sVa, 2*SLOT))
e('s_mov_b32 s%d, %d' % (sVrd[0], 3*SLOT))
e('s_mov_b32 s%d, 1' % sFirst)
def qk0_with_prescale(ps, extra):
    for idx in range(16):
        if idx % 4 == 0: e('s_nop 1')
        need('k%d' % qk_frag(idx))
        e(qk(idx, vS[0], A=vV))
        for x in extra.get(idx, []):
            if callable(x): x()
            else: e(x)
        for x in ps[:10]: e(x)
        del ps[:10]
def p1():
    e('s_waitcnt vmcnt(6)')
    tickA()
    for f in KORD: e(kread(f, tag='q'))
    if STAMP:
        e('s_getreg_b32 s75, hwreg(HW_REG_HW_ID)')
        e('s_getreg_b32 s76, hwreg(HW_REG_XCC_ID)')
        e('s_and_b32 s75, s75, 0xffff')
        e('s_lshl_b32 s76, s76, 16')
        e('s_or_b32 s75, s75, s76')
        e('v_mov_b32 v250, s74')
        e('v_mov_b32 v251, s75')
        e('v_mov_b32 v252, s70')
        e('s_mov_b64 s[72:73], exec')
        e('s_mov_b64 exec, 1')
        e('buffer_store_dwordx2 v[250:251], v252, s[64:67], 0 offen')
        e('s_mov_b64 exec, s[72:73]')
        stamp(1)
    e(set_ka(sX))
    drain()
    e('s_barrier')
    tickB()
    tflush()
    for f in KORD: e(kread(f, vV))

    ps = prescale_ops()
    for i, x in enumerate(ps[:40]):
        e(x)
        if i == 9: e(m0imm(KBASE+3*SLOT))
        if i == 14: e(dk(0))
        if i == 29: e(dk(1)); e(KADV)
    del ps[:40]
    qk0_with_prescale(ps, {1: [m0imm(KBASE+4*SLOT)], 2: [dk(0)], 5: [dk(1)], 6: [KADV]})
    tickA()
    e('s_waitcnt vmcnt(6)')


if not NOIDLE:
    e('s_add_u32 s%d, s%d, s%d' % (sT0, sWq, sD+1))
    e('s_cmp_ge_u32 s%d, s%d' % (sT0, sD+2))
    e('s_cbranch_scc1 L_p1I')
p1()

lab('L_pre0')
del dsq[:]
for x in next_k(sK1, sX): e(x)
e(set_ka(sK1))
e(m0v(sVa))
if USEPRI: prio_loop()
e('s_barrier')
tickB()
for f in KORD: e(kread(f))
e(dv(0))
e('s_and_b32 s%d, s%d, 0xff' % (sT0, sD+3))
e('s_cmp_eq_u32 s%d, 0' % (sD+7))
e('s_cselect_b32 s%d, 2, 6' % sT1)
e('s_cselect_b32 s%d, 1, 0' % sState)
e('s_sub_u32 s%d, s%d, s%d' % (sEv, sT0, sT1))
for x in next_v(sVrd[1], sVrd[0]): e(x)
e(set_va(sVrd[1]))
for x in next_k(sKrd[0], sK1): e(x)
e(set_ka(sKrd[0]))
e(dv(1)); e(VADV)
tflush()
stamp(2)
if not NOIDLE:
    e('s_add_u32 s%d, s%d, s%d' % (sT0, sWq, sD+1))
    e('s_cmp_ge_u32 s%d, s%d' % (sT0, sD+2))
    e('s_cbranch_scc1 L_step0I')
dsq0 = list(dsq)

handlers = []
def step0():
    lab('L_step0')
    dsq[:] = dsq0
    N = [[] for _ in range(16)]
    G = [sm_slot(0, g, True) for g in range(16)]
    for ks in range(4):
        if ks < 3: N[4*ks+4] += [kread(ks, tag='n')]; N[4*ks+5] += [kread(4+ks, tag='n')]
    N[14] += [kread(3, tag='n')]
    N[15] += [kread(7, tag='n')]
    N[1] += [m0k(sX)]
    N[2] += [dk(0)]
    N[6] += [dk(1)]
    N[7] += [KADV]
    N[10] += next_k(sKrd[1], sKrd[0])
    N[11] += ['s_sub_u32 s%d, s%d, 1' % (sEv, sEv), 's_cbranch_scc1 %s' % L('L_evS'), ('LABEL', 'L_retSx')]
    for g in range(16):
        need('k%d' % qk_frag(g))
        e(qk(g, vS[1]))
        for x in N[g] + G[g]:
            if x[0] == 'LABEL': lab(x[1])
            else: e(x)
    e(m0k(sK1))
    e(ad(0, 15)); e(cv(0, 7))
    e(set_ka(sKrd[1]))
    e('v_subrev_u32 v%d, s%d, v%d' % (vX, sLow, vL[0][0]))
    e('v_subrev_u32 v%d, s%d, v%d' % (vY, sLow, vL[0][1]))
    e('s_sub_u32 s%d, s%d, s%d' % (sT0, sThr, sLow))
    e('v_max_u32 v%d, v%d, v%d' % (vX, vX, vY))
    e('v_cmp_lt_u32 vcc, s%d, v%d' % (sT0, vX))
    e('s_cmp_eq_u32 s%d, 0' % sFirst)
    e('s_cbranch_scc1 %s' % L('L_s0w'))
    e('s_waitcnt vmcnt(6)')
    lab('L_s0w')
    e('s_cbranch_vccnz L_fbS')
    lab('L_fbretS')

def body(p, tag, nxt, first=False, loop=False):
    lab('L_ret%s' % tag)
    INLOOP[0] = not first
    tickA()
    drain(vm=10)
    e('s_barrier')
    tickB()
    N = [[] for _ in range(32)]
    G = [[] for _ in range(32)]
    for q in range(4):
        x = 4*q; g = 7*q
        G[g] = [ex(p, x)]; G[g+1] = [ex(p, x+1)]; G[g+2] = [ad(p, x), cv(p, 2*q)]
        G[g+3] = [ex(p, x+2)]; G[g+4] = [ex(p, x+3)]; G[g+5] = [ad(p, x+1), ad(p, x+2)]; G[g+6] = [ad(p, x+3), cv(p, 2*q+1)]
    G[28] = check_ops(p)
    for g in range(16): N[g].append(VREADS[g])
    for g in range(8): N[16+g].append(kread(KORD[g]))
    N[23] += [m0v(sVrd[1-p])]
    N[24] += [dv(0)]
    N[25] += [xor_v(sVrd[1-p])]
    N[26] += [dv(1)]
    N[27] += [m0k(sKrd[1-p])]
    N[28] += [dk(0)]
    N[29] += [VADV]
    G[29] = [set_va(sVrd[1-p])]
    N[30] += [dk(1)] + next_k(sKrd[1-p], sKrd[p])
    N[31] += [KADV]
    G[31] = [set_ka(sKrd[1-p])]
    if first:
        N[1] += [dk(0)]; N[4] += [dk(1)]; N[5] += [KADV]
        N[6] += ['s_sub_u32 s%d, s%d, 1' % (sEv, sEv), 's_cbranch_scc1 %s' % L('L_evF'), ('LABEL', 'L_retFx')]
    for g in range(32):
        if g == 16: need('v7')
        if g == 24: need('v15')
        if g < 16: e(qk(g, vS[1-p]))
        else: e(pv(g-16, vP[1-p], zero=first))
        for x in N[g] + G[g]:
            if x[0] == 'LABEL': lab(x[1])
            else: e(x)
    tflush()
    e('s_sub_u32 s%d, s%d, 1' % (sEv, sEv))
    e('s_cbranch_vccnz L_fb%s' % tag)
    INLOOP[0] = False
    lab('L_fbret%s' % tag)
    if loop: e('s_cbranch_scc0 %s' % L('L_ret%s' % nxt))
    else: e('s_cbranch_scc1 %s' % L('L_ev%s' % nxt))

def fallback(p, ret, has_next=True, first=False):
    e('s_nop 7'); e('s_nop 1')
    for x in max8(vS[p], vX, vY): e(x)
    emit_fill(xlane('v_max_f32', vX, vY), [])
    if not first:
        e('v_max_f32 v%d, 0, v%d' % (vX, vX))
        e('v_max_f32 v%d, 0, v%d' % (vY, vY))
        e('v_exp_f32 v%d, -v%d' % (vX2, vX))
        e('v_exp_f32 v%d, -v%d' % (vY2, vY))
    for x in range(16):
        e('v_sub_f32 v%d, v%d, v%d' % (vS[p]+x, vS[p]+x, vX if x < 8 else vY))
    if has_next:
        for x in range(16):
            e('v_sub_f32 v%d, v%d, v%d' % (vS[1-p]+x, vS[1-p]+x, vX if x < 8 else vY))
        for r in range(8):
            e('v_sub_f32 v%d, v%d, v%d' % (vNM+r, vNM+r, vX if r < 4 else vY))
    if not first:
        e('v_mul_f32 v%d, v%d, v%d' % (vL[1-p][0], vL[1-p][0], vX2))
        e('v_mul_f32 v%d, v%d, v%d' % (vL[1-p][1], vL[1-p][1], vY2))
        for r in range(64):
            e('v_mul_f32 v%d, v%d, v%d' % (vO+r, vO+r, vX2 if (r % 8) < 4 else vY2))
    for x in range(16):
        for y in sm_slot(p, x, first): e(y)
        e('s_nop 0')
    for x in sm_fin(p): e(x)
    e('s_branch %s' % ret)

def handler(tag, p, ret):
    lab('L_ev%s' % tag)
    e('s_cmp_eq_u32 s%d, 1' % sState)
    e('s_cbranch_scc1 %s' % L('L_evB%s' % tag))
    if p is not None:
        e('s_cmp_eq_u32 s%d, 2' % sState)
        e('s_cbranch_scc1 %s' % L('L_tail%d' % p))
    e('s_mov_b64 %s, %s' % (sr(sKS, 2), sr(sQp, 2)))
    e('s_mov_b32 s%d, s%d' % (sKS+2, sD+6))
    e('s_mov_b32 s%d, s%d' % (sKoff, sD+5))
    e('s_mov_b32 s%d, 3' % sEv)
    e('s_mov_b32 s%d, 1' % sState)
    e('s_branch %s' % L(ret))
    lab('L_evB%s' % tag)
    e('s_mov_b64 %s, %s' % (sr(sKS, 2), sr(sKp, 2)))
    e('s_mov_b32 s%d, s%d' % (sKS+2, sD+6))
    e('s_mov_b32 s%d, s%d' % (sVS+2, sD+6))
    e('s_mov_b32 s%d, s%d' % (sKoff, sD+4))
    e('s_mov_b32 s%d, s%d' % (sVoff, sD+4))
    e('s_mov_b32 s%d, 0' % sEv)
    e('s_mov_b32 s%d, 2' % sState)
    e('s_branch %s' % L(ret))

def tail1(p):
    lab('L_tail%d' % p)
    e(m0v(sVrd[1-p]))
    e('s_bfe_u32 s%d, s%d, 0x80008' % (sT0, sD+3))
    e('v_lshrrev_b32 v%d, 4, v%d' % (vX, vLane))
    e('v_lshlrev_b32 v%d, 2, v%d' % (vX, vX))
    e('v_sub_u32 v%d, s%d, v%d' % (vX, sT0, vX))
    e('v_mov_b32 v%d, 0xff800000' % vY)
    tickA()
    drain(vm=10)
    e('s_barrier')
    tickB()
    mk = []
    for i in range(2):
        for r in range(4):
            mk.append('v_cmp_lt_i32 %s, %d, v%d' % (sr(sM[r], 2), 16*i+r, vX))
        for j in range(2):
            for r in range(4):
                x = vS[p]+8*j+4*i+r
                mk.append('v_cndmask_b32 v%d, v%d, v%d, %s' % (x, vY, x, sr(sM[r], 2)))
    for g in range(4):
        e(VREADS[2*g]); e(VREADS[2*g+1])
        for x in mk[6*g:6*g+6]: e(x)
    N = [[] for _ in range(16)]
    G = [sm_slot(p, g) for g in range(16)]
    for g in range(8): N[g] += [VREADS[8+g]]
    N[8] += [dv(0)]
    N[9] += [xor_v(sVrd[1-p])]
    N[10] += ['s_sub_u32 s%d, s%d, %d' % (sX, sKrd[1-p], SLOT)]
    N[11] += ['s_cmp_lt_u32 s%d, 0x%x' % (sX, kb(0))]
    N[12] += ['s_cselect_b32 s%d, 0x%x, s%d' % (sX, kb(NK-1), sX)]
    N[13] += [dv(1)]
    N[14] += ['s_mov_b32 s%d, s%d' % (sVa, sVrd[p])]
    N[15] += [VADV]
    G[15] += [set_va(sVrd[1-p])]
    for g in range(16):
        if g % 2 == 0: need('v%d' % (g+1))
        e(pv(g, vP[1-p]))
        for x in N[g] + G[g]: e(x)
    for x in sm_fin(p): e(x)
    for x in check_ops(p): e(x)
    if p == 0:
        e('s_mov_b32 s%d, s%d' % (sVrd[0], sVrd[1]))
    tflush()
    e('s_cmp_eq_u32 s%d, 0' % (sD+7))
    e('s_cbranch_vccnz L_fbT%d' % p)
    lab('L_fbretT%d' % p)

def norm_stage(dt, off=0):
    ops = []
    for j in range(2):
        b = vO + 8*dt + 4*j
        for r in range(4): ops.append('v_mul_f32 v%d, v%d, v%d' % (b+r, b+r, vR[j]))
        if 'n' in PK:
            sel = 'op_sel:[0,1] op_sel_hi:[1,1]' if vR[j] % 2 else 'op_sel_hi:[1,0]'
            for r in (0, 2):
                ops[-4+r] = 'v_pk_mul_f32 %s, %s, %s %s' % (vr(b+r, 2), vr(b+r, 2), vr(vR[j] & ~1, 2), sel)
                ops[-3+r] = None
        ops.append('v_cvt_pk_bf16_f32 v%d, v%d, v%d' % (b, b, b+1))
        ops.append('v_cvt_pk_bf16_f32 v%d, v%d, v%d' % (b+1, b+2, b+3))
    a, b_ = ops[:6], ops[6:]
    seq = a[:4] + b_[:2] + a[4:] + b_[2:4]
    seq.append(('ds_write_b64 v%d, %s offset:%d' % (vW + dt % 4, vr(vO+8*dt, 2), off), 'w'))
    seq += b_[4:]
    seq.append(('ds_write_b64 v%d, %s offset:%d' % (vW + dt % 4, vr(vO+8*dt+4, 2), off + 2048), 'w'))
    return seq
def rdback(rho, off=0):
    ops = []
    for k in range(4):
        b = vO+32*rho+4*k
        if k % 2 == 0: ops.append(('ds_read_b128 %s, v%d offset:%d' % (vr(b, 4), vRD, off + 1024*k), 'r%d' % k))
        else:
            ops.append(('ds_read_b64 %s, v%d offset:%d' % (vr(b, 2), vRD, off + 1024*k + 8), 'r%d' % k))
            ops.append(('ds_read_b64 %s, v%d offset:%d' % (vr(b+2, 2), vRD, off + 1024*k), 'r%d' % k))
    return ops
SOFF = [sT1, sT2, sT3, sT4]
def store(rho, k):
    need('r%d' % k)
    e('buffer_store_dwordx4 %s, v%d, %s, s%d offen offset:%d%s' % (vr(vO+32*rho+4*k, 4), vST, sr(sOS, 4), SOFF[k], 128*rho, SF))
def epi_addr():
    return ['v_add_u32 v%d, s%d, v%d' % (vW, sT0, vWc),
            'v_add_u32 v%d, s%d, v%d' % (vRD, sT0, vRDc),
            'v_xor_b32 v%d, 32, v%d' % (vW+1, vW),
            'v_xor_b32 v%d, 64, v%d' % (vW+2, vW),
            'v_xor_b32 v%d, 96, v%d' % (vW+3, vW)]
def epi_soff():
    return ['s_add_u32 s%d, s%d, s%d' % (sT1, sWq, sD+1),
            's_mov_b32 s%d, s%d' % (sOS+2, sD+2),
            's_add_u32 s%d, s%d, %d' % (sT2, sT1, 8*4096),
            's_add_u32 s%d, s%d, %d' % (sT3, sT1, 16*4096),
            's_add_u32 s%d, s%d, %d' % (sT4, sT1, 24*4096)]
def rcps(p):
    return ['v_rcp_f32 v%d, v%d' % (vR[0], vL[p][0]), 'v_rcp_f32 v%d, v%d' % (vR[1], vL[p][1])]
def spread(main, extra):
    for i, x in enumerate(main):
        for y in extra.get(i, []):
            if callable(y): y()
            else: e(y)
        e(x)

def tail2(p):
    lab('L_tail2_%d' % p)
    del dsq[:]
    e('s_cbranch_scc0 %s' % L('L_trans%d' % p))
    if IDLE[0]:
        tickA()
        e('s_waitcnt vmcnt(2)')
        e('s_barrier')
        tickB()
        tflush()
        e('s_branch L_fin')
    else: final(p)
    trans(p)
def final(p):
    if PEPI is not None: e('s_setprio %d' % int(PEPI))
    e('s_mul_i32 s%d, s%d, %d' % (sT0, sW, SLOT))
    e('s_and_b32 s%d, s%d, 1' % (sT1, sW))
    e('s_lshl_b32 s%d, s%d, 12' % (sT1, sT1))
    e('s_sub_u32 s%d, s%d, s%d' % (sT0, sT0, sT1))
    e('s_add_u32 s%d, s%d, %d' % (sT0, sT0, KBASE))
    tickA()
    e('s_waitcnt vmcnt(2)')
    e('s_barrier')
    tickB()
    stamp(5)
    fill = list(VREADS)
    for _ in range(4): e(fill.pop(0))
    emit_fill(xlane('v_add_f32', vL[p][0], vL[p][1])[1:], fill)
    for x in fill: e(x)
    tk()
    pre = {0: rcps(p), 1: epi_addr()[:3], 2: epi_addr()[3:], 3: epi_soff()}
    for g in range(16):
        if g % 2 == 0: need('v%d' % (g+1))
        e(pv(g, vP[p]))
        if g < 4:
            for x in pre[g]: e(x)
        else:
            ns = norm_stage((g-4)//2, 4096*((g-4)//8))
            for x in (ns[:7] if g % 2 == 0 else ns[7:]): e(x)
            if g == 11:
                tk()
                for x in rdback(0): e(x)
            if g == 14: store(0, 0)
    tk()
    store(0, 1)
    spread(norm_stage(6, 4096) + norm_stage(7, 4096), {10: [lambda: store(0, 2)], 22: [lambda: store(0, 3)]})
    tk()
    for x in rdback(1, 4096): e(x)
    for k in range(4): store(1, k)
    tk(); tk()
    tflush()
    tkflush()
    e('s_branch L_fin')
def trans(p):
    lab('L_trans%d' % p)
    del dsq[:]
    if PTR is not None: e('s_setprio %d' % int(PTR))
    e('s_lshr_b32 s%d, s%d, 22' % (sK1, sD+7))
    e('s_add_u32 s%d, s%d, s%d' % (sK1, sK1, sW))
    e('s_and_b32 s%d, s%d, 3' % (sK1, sK1))
    if IDLE[0]:
        e('s_lshl_b32 s%d, s%d, 17' % (sT0, sK1))
        e('s_add_u32 s%d, s%d, s%d' % (sT0, sT0, sD+5))
        e('s_cmp_ge_u32 s%d, s%d' % (sT0, sD+6))
        e('s_cbranch_scc0 L_trans%d' % p)
    e('s_add_u32 s%d, s%d, 1' % (sT0, sK1))
    e('s_mul_i32 s%d, s%d, %d' % (sT0, sT0, SLOT))
    e('s_add_u32 s%d, s%d, s%d' % (sT0, sT0, sX))
    e('s_cselect_b32 s%d, 0x%x, 0' % (sT1, kb(0)))
    e('s_add_u32 s%d, s%d, s%d' % (sT0, sT0, sT1))
    e(set_ka(sT0))
    e('s_cmp_ge_u32 s%d, 2' % sW)
    e('s_cselect_b32 s%d, s%d, s%d' % (sT0, sVrd[0], sVa))
    tickA()
    e('s_waitcnt vmcnt(6)')
    e('s_barrier')
    tickB()
    stamp(3)
    qr = [kread(f, tag='q') for f in KORD]
    fill = VREADS[:6] + qr[:2] + VREADS[6:] + qr[2:]
    for _ in range(6): e(fill.pop(0))
    emit_fill(xlane('v_add_f32', vL[p][0], vL[p][1])[1:], fill)
    tk()
    ps = prescale_ops()
    nm = ['v_mov_b32 v%d, 0' % (vNM+r) for r in range(8)]
    pre = {0: rcps(p) + nm[:2], 1: epi_addr()[:3] + nm[2:4], 2: epi_addr()[3:] + nm[4:]}
    so = epi_soff() + ['s_lshl_b32 s%d, s%d, 17' % (sWq, sK1)] + next_k(sKrd[0], sX)
    for g in range(8):
        if g % 2 == 0: need('v%d' % (g+1))
        e(pv(g, vP[p]))
        for x in fill[:2]: e(x)
        del fill[:2]
        if g < 3:
            for x in pre[g]: e(x)
        else:
            if g == 3: need('q0')
            if g == 4: e(set_ka(sX))
            if g == 6: need('q4')
            for x in so[:2]: e(x)
            del so[:2]
            for x in ps[:6]: e(x)
            del ps[:6]
    assert not fill and not so
    e(m0k(sKrd[0]))
    for x in ps[:10]: e(x)
    del ps[:10]
    tk()
    drain(vm=2)
    e('s_barrier')
    tk()
    nk = next_k(sKrd[0], sKrd[0])
    N = {8: [dk(0)], 10: [dk(1)], 11: [KADV] + nk + [m0k(sKrd[0])], 12: [dk(0)], 14: [dk(1)], 15: [KADV] + nk + [m0k(sKrd[0])]}
    for g in range(8, 16):
        e(pv(g, vP[p]))
        for x in N.get(g, []): e(x)
        ns = norm_stage((g-8)//2)
        for x in (ns[:7] if g % 2 == 0 else ns[7:]): e(x)
    tk()
    for x in rdback(0): e(x)
    for f in KORD: e(kread(f, vV))
    ns = norm_stage(4) + norm_stage(5) + norm_stage(6) + norm_stage(7)
    spread(ns, {10: [lambda: store(0, 0)], 22: [lambda: store(0, 1)], 34: [lambda: store(0, 2)], 46: [lambda: store(0, 3)]})
    tk()
    for x in rdback(1): e(x)
    qk0_with_prescale(ps, {0: [dk(0)], 2: [dk(1)], 3: [KADV] + nk + [m0k(sKrd[0])],
                           4: [lambda: store(1, 0)], 6: [lambda: store(1, 1)], 8: [lambda: store(1, 2)], 10: [lambda: store(1, 3)],
                           12: [dk(0), 's_mov_b64 %s, %s' % (sr(sD, 2), sr(sD+4, 2)), 's_mov_b64 %s, %s' % (sr(sD+2, 2), sr(sD+6, 2))],
                           13: ['s_mov_b64 %s, 0' % sr(sD+4, 2), 's_mov_b64 %s, 0' % sr(sD+6, 2), 's_mov_b32 s%d, 0' % sFirst],
                           15: [dk(1), KADV]})
    tk(); tk()
    tflush()
    tkflush()
    stamp(4)
    tickA()
    e('s_waitcnt vmcnt(12)')
    e('s_branch L_pre0')

def mainloop():
    step0()
    body(1, 'F', '0', first=True)
    body(0, '0', '1')
    body(1, '1', '0', loop=True)
    handler('0', 0, 'L_ret0')
    handler('1', 1, 'L_ret1')
    handler('F', None, 'L_retFx')
    handler('S', None, 'L_retSx')
mainloop()
for p in (0, 1):
    tail1(p)
    tail2(p)
if not NOIDLE:
    IDLE[0] = True
    mainloop()
    for p in (0, 1):
        tail1(p)
        tail2(p)
    lab('L_p1')
    del dsq[:]
    p1()
    e('s_branch L_pre0')
    IDLE[0] = False
for tag, p in (('F', 1), ('0', 0), ('1', 1)):
    lab('L_fb%s' % tag)
    fallback(p, 'L_fbret%s' % tag)
for p in (0, 1):
    lab('L_fbT%d' % p)
    fallback(p, 'L_fbretT%d' % p, has_next=False)
lab('L_fbS')
fallback(0, 'L_fbretS', first=True)

lab('L_fin')
if STAMP:
    stamp(6)
    e('s_waitcnt vmcnt(0)')
    stamp(7)
if PROF:
    e('s_waitcnt vmcnt(0)')
    e('s_memtime s[68:69]')
    e('s_memrealtime s[72:73]')
    e('s_waitcnt lgkmcnt(0)')
    e('v_writelane_b32 v253, s76, 62')
    e('v_writelane_b32 v254, s74, 62')
    e('v_writelane_b32 v253, s68, 63')
    e('v_writelane_b32 v254, s72, 63')
    e('v_writelane_b32 v253, s71, 61')
    e('s_and_b32 s65, s65, 0xffff')
    e('s_mov_b32 s66, 0x1000000')
    e('s_mov_b32 s67, 0x20000')
    e('s_lshl_b32 s70, s2, 2')
    e('s_add_u32 s70, s70, s%d' % sW)
    e('s_lshl_b32 s70, s70, 9')
    e('v_lshlrev_b32 v252, 2, v%d' % vLane)
    e('s_nop 4')
    e('buffer_store_dword v253, v252, s[64:67], s70 offen')
    e('buffer_store_dword v254, v252, s[64:67], s70 offen offset:256')
lab('L_end')
e('s_endpgm')
out.append('.p2align 6')
out.append('.type L_table,@object')
lab('L_table')
for row in table:
    out.append('    .long ' + ', '.join('0x%08x' % x for x in row))
out.append('.size L_table, %d' % (32*NWG))
out.append('''.section .rodata,"a"
.p2align 6
.amdhsa_kernel %s_kernel
  .amdhsa_next_free_vgpr %d
  .amdhsa_next_free_sgpr %d
  .amdhsa_accum_offset %d
  .amdhsa_group_segment_fixed_size 0
  .amdhsa_kernarg_size 56
  .amdhsa_user_sgpr_count 2
  .amdhsa_user_sgpr_kernarg_segment_ptr 1
  .amdhsa_system_sgpr_workgroup_id_x 1
.end_amdhsa_kernel''' % (NAME, NVGPR, NSGPR, NVGPR))
dst = [a for a in sys.argv[1:] if not a.startswith('--')]
open(dst[0] if dst else 'cdna_kernels/%s.s' % NAME, 'w').write('\n'.join(out) + '\n')
```

```python
import sys, math, struct, json
CU = [0, 321, 555, 878, 1299, 1551, 1670, 1878, 2181, 2351, 2646, 2810, 3248, 3471, 3811, 4169, 4391]
NAME = "standalone__varlen_attn_packed__ragged"
HEADER = open('cdna_kernels/%s.s.ref' % NAME).read().split('; Override launch')[0]

def opt(name, default=None):
    for a in sys.argv[1:]:
        if a.startswith('--%s=' % name): return a.split('=', 1)[1]
    return default
def flag(name): return ('--' + name) in sys.argv
STAMP = flag('stamp'); PROF = flag('prof'); CLK = flag('clk'); FINE = flag('fine')
QF = opt('qf', 'nt'); KF = opt('kf', 'nt'); SF = opt('sf', '')
QF = (' ' + QF.replace('+', ' ')) if QF else ''
KF = (' ' + KF.replace('+', ' ')) if KF else ''
SF = (' ' + SF.replace('+', ' ')) if SF else ''
THRLOG = int(opt('thr', 14))
LOWLOG = int(opt('low', 40))
SCHED = opt('sched', 'a')
CLS = opt('cls', '01')
PRI = opt('pri', '00')
PPRO = opt('ppro', None)
PEPI = opt('pepi', None)
PTR = opt('ptr', None)
USEPRI = PPRO is not None or PEPI is not None or PTR is not None
NOIDLE = flag('noidle')
XL = opt('xl', '')
BW = dict((int(a), int(b)) for a, b in (x.split(':') for x in opt('bw', '4:2').split(',') if x))
PK = opt('pk', '')

out = []
IDLE = [False]
INLOOP = [False]
dsq = []
def e(s, tag=None):
    if s is None: return
    if isinstance(s, tuple): s, tag = s
    if INLOOP[0] and XL:
        if 'd' in XL and s.startswith('buffer_load'): return
        if 'v' in XL and s.startswith('ds_read_b64'): return
        if 'k' in XL and s.startswith('ds_read_b128'): return
        if 'e' in XL and s.startswith('v_exp'): return
        if 'a' in XL and s.startswith('v_add_f32'): return
        if 'c' in XL and s.startswith('v_cvt'): return
        if 'b' in XL and s.startswith('s_barrier'): return
    if s.startswith('ds_'): dsq.append(tag)
    if IDLE[0]:
        if s.startswith('ds_') or s.startswith('s_nop'): return
        if s.startswith('v_') and not s.startswith('v_add_u32') and not s.startswith('v_writelane') and not s.startswith('v_mov_b32 v25'): return
        if s.startswith('s_waitcnt lgkmcnt') and not (PROF or STAMP): return
        if s.startswith('s_cbranch_vccnz'): return
        if s.startswith('s_add_u32 m0'):
            out.append('    ' + s); s = 's_nop 0'
    out.append('    ' + s)
def need(*tags, vm=None):
    last = -1
    for t in tags:
        idx = [i for i, x in enumerate(dsq) if x == t]
        if idx: last = max(last, idx[-1])
    if last < 0:
        if vm is not None: e('s_waitcnt vmcnt(%d)' % vm)
        return
    n = min(15, len(dsq) - 1 - last)
    e('s_waitcnt %slgkmcnt(%d)' % ('vmcnt(%d) ' % vm if vm is not None else '', n))
    del dsq[:len(dsq) - n]
def drain(vm=None):
    e('s_waitcnt %slgkmcnt(0)' % ('vmcnt(%d) ' % vm if vm is not None else ''))
    del dsq[:]
def lab(s): out.append(s + ('I' if IDLE[0] else '') + ':')
def L(s): return s + ('I' if IDLE[0] else '')

NB = [(CU[s+1]-CU[s]+31)//32 for s in range(16)]
def make_schedule():
    byn = {}
    for s in range(16):
        for hs in range(2):
            for g in range((NB[s]+3)//4):
                byn.setdefault(NB[s], []).append((s, hs, g))
    def take(n): return byn[n].pop(0)
    plan = ([([14], [12])]*6 + [([14], [14])]*2 + [([14], [11])]*6 + [([7, 7], [11])]*6 + [([8, 6], [11])]*6
            + [([10, 4], [10])]*2 + [([10, 6], [10])]*2 + [([10, 8], [10])]*2)
    res = [[[None]*len(a), [None]*len(b)] for a, b in plan]
    for lane in (0, 1):
        for i, p in enumerate(plan):
            res[i][lane][0] = take(p[lane][0])
    for lane in (0, 1):
        for i, p in enumerate(plan):
            if len(p[lane]) > 1: res[i][lane][1] = take(p[lane][1])
    assert all(len(v) == 0 for v in byn.values())
    return [[dict(tasks=res[i][l], cls=int(CLS[l]), pri=int(PRI[l])) for l in (0, 1)] for i in range(32)]
if SCHED.endswith('.json'):
    sched = json.load(open(SCHED))
else:
    base = make_schedule()
    sched = [[[dict(tasks=[[s, ((x+s) & 7) + 8*hs, gq, 0] for (s, hs, gq) in ln['tasks']], cls=ln['cls'], pri=ln['pri']) for ln in cu] for cu in base] for x in range(8)]
seen = set()
for xs in sched:
    for cu in xs:
        for ln in cu:
            for t in ln['tasks']:
                assert tuple(t[:3]) not in seen and t[2] < (NB[t[0]]+3)//4; seen.add(tuple(t[:3]))
assert len(seen) == 82*8
NWG = 512
def desc(t, extra=0):
    if t is None: return [0, 0, 0, 0]
    s, head, g, rot = t
    Ls = CU[s+1]-CU[s]; n = NB[s]
    return [CU[s]*4096 + head*256, (CU[s]+128*g)*4096 + head*256, CU[s+1]*4096, n | ((Ls-32*(n-1)) << 8) | (rot << 22) | extra]
table = []
for wg in range(NWG):
    xcd = wg & 7; j = wg >> 3
    ln = sched[xcd][j % 32][j // 32]
    tk_ = ln['tasks']
    assert len(tk_) == 1 or NB[tk_[0][0]] >= 6
    table.append(desc(tk_[0], (ln['cls'] << 16) | (ln['pri'] << 20)) + desc(tk_[1] if len(tk_) > 1 else None))
FIXN = int(opt('fixn', 0))
if FIXN:
    NWG = int(opt('nwg', 512))
    table = []
    for wg in range(NWG):
        xcd = wg & 7; j = wg >> 3
        head = xcd + 8*(j & 1)
        r0 = ((j >> 1) % 2) * 2048
        table.append([r0*4096 + head*256, (128*(j >> 1))*4096 + head*256, 4391*4096, FIXN | (32 << 8) | ((j//32) << 16), 0, 0, 0, 0])

PS = 1056
SLOT = 8*PS
NK, NV = 5, 4
KBASE = NV*SLOT
KEND = KBASE + NK*SLOT
LDS = KEND
VX2 = 2*SLOT
assert (SLOT & VX2) == 0
BLK = 32*4096
def kb(i): return (KBASE + i*SLOT - KEND) & 0xffffffff

sQp, sKp, sVp, sOp = 4, 6, 8, 10
sD = 12
sKS, sVS, sOS = 20, 24, 28
sW = 32
sKoff, sVoff = 33, 34
sKrd = [35, 36]; sVrd = [37, 38]
sWc, sWcK = 39, 40
sEv, sState = 41, 42
sX, sVa = 43, 44
sT0, sT1, sT2, sT3 = 45, 46, 47, 48
sPri = 49
sC = 50
sK1 = 51
sThr = 52
sT4 = 53
sM = [54, 56, 58, 60]
sFirst = 62
sWq = 3
sLow = 63
NSGPR = 100 if FINE else 80

vG0, vG1 = 1, 2
vAKc, vAVc, vAK, vAV = 3, 4, 5, 6
vWc, vRDc, vST = 7, 8, 9
vLane = 10
vX, vY, vZ = 11, 12, 13
vX2, vY2 = 14, 15
vQ = 16
vO = 48
vS = [112, 128]
vP = [144, 152]
vK = 160
vV = 192
vNM = 224
vL = [[232, 233], [234, 235]]
vT = [236, 237, 238, 239]
vW = 240
vRD = 244
vR = [245, 246]
NVGPR = 256 if (STAMP or PROF) else 248

def vr(b, n): return 'v[%d:%d]' % (b, b+n-1)
def sr(b, n): return 's[%d:%d]' % (b, b+n-1)
CC = 128 ** -0.5 * math.log2(math.e)
def f2u(x): return struct.unpack('<I', struct.pack('<f', x))[0]

def dk(which):
    if which == 0: return 'buffer_load_dwordx4 v%d, %s, s%d offen%s lds' % (vG0, sr(sKS, 4), sKoff, KF)
    return 'buffer_load_dwordx4 v%d, %s, s%d offen offset:%d%s lds' % (vG1, sr(sKS, 4), sKoff, PS, KF)
def dv(which):
    if which == 0: return 'buffer_load_dwordx4 v%d, %s, s%d offen%s lds' % (vG0, sr(sVS, 4), sVoff, KF)
    return 'buffer_load_dwordx4 v%d, %s, s%d offen offset:%d%s lds' % (vG1, sr(sVS, 4), sVoff, PS, KF)
def m0imm(addr): return 's_add_u32 m0, s%d, %d' % (sWc, addr)
def m0v(s): return 's_add_u32 m0, s%d, s%d' % (sWc, s)
def m0k(s): return 's_add_u32 m0, s%d, s%d' % (sWcK, s)
KADV = 's_add_u32 s%d, s%d, %d' % (sKoff, sKoff, BLK)
VADV = 's_add_u32 s%d, s%d, %d' % (sVoff, sVoff, BLK)
def next_k(dst, src):
    return ['s_add_u32 s%d, s%d, %d' % (dst, src, SLOT),
            's_cselect_b32 s%d, 0x%x, s%d' % (dst, kb(0), dst)]
def next_v(dst, src):
    return ['s_add_u32 s%d, s%d, %d' % (dst, src, SLOT),
            's_cmp_ge_u32 s%d, %d' % (dst, NV*SLOT),
            's_cselect_b32 s%d, 0, s%d' % (dst, dst)]
def xor_v(s): return 's_xor_b32 s%d, s%d, 0x%x' % (s, s, VX2)
def set_ka(s): return 'v_add_u32 v%d, s%d, v%d' % (vAK, s, vAKc)
def set_va(s): return 'v_add_u32 v%d, s%d, v%d' % (vAV, s, vAVc)
def kread(f, dst=vK, tag='k'):
    return ('ds_read_b128 %s, v%d offset:%d' % (vr(dst+4*f, 4), vAK, 512*(f//4) + 64*(f % 4)), '%s%d' % (tag, f))
KORD = [0, 4, 1, 5, 2, 6, 3, 7]
def vread(k):
    dt, h = k//2, k % 2
    return ('ds_read_b64_tr_b16 %s, v%d offset:%d' % (vr(vV+4*dt+2*h, 2), vAV, 32*dt + 512*h), 'v%d' % k)
VREADS = [vread(k) for k in range(16)]
IJ = [(0, 0), (0, 1), (1, 1), (1, 0)]
def qk(idx, S, A=vK, B=vQ):
    ks = idx//4; i, j = IJ[idx % 4]
    D = S + 8*j + 4*i
    c = vr(D, 4) if ks else vr(vNM+4*j, 4)
    return 'v_mfma_f32_16x16x32_bf16 %s, %s, %s, %s' % (vr(D, 4), vr(A+4*(4*i+ks), 4), vr(B+4*(4*j+ks), 4), c)
def qk_frag(idx): return 4*IJ[idx % 4][0] + idx//4
def pv(idx, P, zero=False):
    dt = idx//2; j = (idx % 2) ^ (dt & 1)
    D = vO + 8*dt + 4*j
    return 'v_mfma_f32_16x16x32_bf16 %s, %s, %s, %s' % (vr(D, 4), vr(vV+4*dt, 4), vr(P+4*j, 4), '0' if zero else vr(D, 4))
def ex(p, x): return 'v_exp_f32 v%d, v%d' % (vT[x % 4], vS[p]+x)
def ad(p, x, first=False):
    j = x//8
    if x % 8 == 0:
        if first: return 'v_mov_b32 v%d, v%d' % (vL[p][j], vT[x % 4])
        return 'v_add_f32 v%d, v%d, v%d' % (vL[p][j], vL[1-p][j], vT[x % 4])
    return 'v_add_f32 v%d, v%d, v%d' % (vL[p][j], vL[p][j], vT[x % 4])
def cv(p, k): return 'v_cvt_pk_bf16_f32 v%d, v%d, v%d' % (vP[p]+k, vT[(2*k) % 4], vT[(2*k+1) % 4])
def sm_slot(p, x, first=False):
    ops = [ex(p, x)]
    if x >= 1: ops.append(ad(p, x-1, first))
    if x >= 2 and x % 2 == 0: ops.append(cv(p, (x-2)//2))
    return ops
def sm_fin(p): return [ad(p, 15), cv(p, 7)]
def check_ops(p):
    return ['v_max_f32 v%d, v%d, v%d' % (vX, vL[p][0], vL[p][1]),
            'v_cmp_lt_f32 vcc, s%d, v%d' % (sThr, vX)]
def max8(S, a, b):
    return ['v_max3_f32 v%d, v%d, v%d, v%d' % (a, S, S+1, S+2),
            'v_max3_f32 v%d, v%d, v%d, v%d' % (b, S+8, S+9, S+10),
            'v_max3_f32 v%d, v%d, v%d, v%d' % (a, a, S+3, S+4),
            'v_max3_f32 v%d, v%d, v%d, v%d' % (b, b, S+11, S+12),
            'v_max3_f32 v%d, v%d, v%d, v%d' % (a, a, S+5, S+6),
            'v_max3_f32 v%d, v%d, v%d, v%d' % (b, b, S+13, S+14),
            'v_max_f32 v%d, v%d, v%d' % (a, a, S+7),
            'v_max_f32 v%d, v%d, v%d' % (b, b, S+15)]
def xlane(op, a, b):
    return [None,
            'v_permlane32_swap_b32 v%d, v%d' % (a, b), None,
            '%s v%d, v%d, v%d' % (op, a, a, b),
            'v_mov_b32 v%d, v%d' % (b, a), None,
            'v_permlane16_swap_b32 v%d, v%d' % (a, b), None,
            '%s v%d, v%d, v%d' % (op, a, a, b),
            'v_mov_b32 v%d, v%d' % (b, a), None,
            'v_permlane32_swap_b32 v%d, v%d' % (a, b), None]
def emit_fill(seq, fill):
    for x in seq:
        if x is None:
            if len(fill) >= 2: e(fill.pop(0)); e(fill.pop(0))
            else: e('s_nop 1')
        else: e(x)
def prescale_ops():
    seq = []
    n = 0
    for f in KORD:
        for h in range(2):
            ops = []
            for i in (4*f+2*h, 4*f+2*h+1):
                t = vS[1] + 2*(n % 8); n += 1
                ops.append(['v_lshlrev_b32 v%d, 16, v%d' % (t, vK+i),
                            'v_and_b32 v%d, 0xffff0000, v%d' % (t+1, vK+i),
                            'v_mul_f32 v%d, s%d, v%d' % (t, sC, t),
                            'v_mul_f32 v%d, s%d, v%d' % (t+1, sC, t+1),
                            'v_cvt_pk_bf16_f32 v%d, v%d, v%d' % (vQ+i, t, t+1)])
            a, b = ops
            if 'p' in PK:
                for o in (a, b):
                    t = int(o[2].split()[1][1:-1])
                    o[2] = 'v_pk_mul_f32 %s, %s, %s op_sel_hi:[1,0]' % (vr(t, 2), vr(t, 2), sr(sC, 2)); o[3] = None
            seq += [a[0], a[1], b[0], b[1], a[2], a[3], b[2], b[3], a[4], b[4]]
    return seq

def stamp(slot):
    if not STAMP: return
    e('s_memrealtime s[68:69]')
    drain()
    e('v_mov_b32 v250, s68')
    e('v_mov_b32 v251, s69')
    e('v_mov_b32 v252, s70')
    e('s_mov_b64 s[72:73], exec')
    e('s_mov_b64 exec, 1')
    e('buffer_store_dwordx2 v[250:251], v252, s[64:67], 0 offen offset:%d' % (slot*8))
    e('s_mov_b64 exec, s[72:73]')
    e('s_nop 3')
def tickA():
    if PROF: e('s_memtime s[68:69]')
    if PROF and CLK: e('s_memrealtime s[72:73]')
def tickB():
    if PROF and not CLK: e('s_memtime s[72:73]')
def tflush():
    if not PROF: return
    drain()
    e('s_mov_b32 m0, s71')
    e('s_add_u32 s71, s71, 1')
    e('v_writelane_b32 v253, s68, m0')
    e('v_writelane_b32 v254, s72, m0')
_tk = [0]
def tk():
    if FINE:
        e('s_memtime s[%d:%d]' % (80+2*_tk[0], 81+2*_tk[0])); _tk[0] += 1
def tkflush():
    if not FINE: return
    drain()
    n = _tk[0]
    for i in range(0, n, 2):
        e('s_mov_b32 m0, s71')
        e('s_add_u32 s71, s71, 1')
        e('v_writelane_b32 v253, s%d, m0' % (80+2*i))
        e('v_writelane_b32 v254, s%d, m0' % (80+2*min(i+1, n-1)))
    _tk[0] = 0
_pn = [0]
def prio_loop():
    _pn[0] += 1
    e('s_cmp_eq_u32 s%d, 0' % sPri)
    if USEPRI: e('s_setprio 1')
    e('s_cbranch_scc1 L_pr%d' % _pn[0])
    e('s_setprio %d' % (2 if USEPRI else 1))
    out.append('L_pr%d:' % _pn[0])

out.append(HEADER.rstrip())
out.append('; @launch grid=(%d,1,1) block=(256,1,1) lds=%d' % (NWG, LDS))
out.append('.amdgcn_target "amdgcn-amd-amdhsa--gfx950"')
out.append('.text')
out.append('.globl %s_kernel' % NAME)
out.append('.p2align 8')
out.append('.type %s_kernel,@function' % NAME)
lab('%s_kernel' % NAME)
e('s_cmp_ge_u32 s2, %d' % NWG)
e('s_cbranch_scc1 L_end')
REP = int(opt('rep', 0))
if REP:
    e('s_mov_b32 s79, %d' % REP)
    lab('L_again')
e('s_getpc_b64 s[46:47]')
lab('L_pc')
e('s_load_dwordx4 s[4:7], s[0:1], 0')
e('s_lshl_b32 s3, s2, 5')
e('s_add_u32 s3, s3, L_table-L_pc')
e('s_add_u32 s46, s46, s3')
e('s_addc_u32 s47, s47, 0')
e('s_load_dwordx8 s[12:19], s[46:47], 0')
e('s_load_dwordx2 s[8:9], s[0:1], 16')
e('s_load_dwordx2 s[10:11], s[0:1], 32')
if STAMP or PROF:
    e('s_load_dwordx2 s[64:65], s[0:1], 48')
    e('s_memrealtime s[74:75]')
if PROF:
    e('s_memtime s[76:77]')
    e('s_mov_b32 s71, 0')
e('v_and_b32 v%d, 63, v0' % vLane)
e('v_lshrrev_b32 v%d, 6, v0' % vX)
e('v_lshrrev_b32 v%d, 4, v%d' % (vY, vLane))
e('v_readfirstlane_b32 s%d, v%d' % (sW, vX))
e('v_and_b32 v%d, 15, v%d' % (vZ, vLane))
e('v_lshlrev_b32 v%d, 4, v%d' % (vG0, vZ))
e('v_lshl_add_u32 v%d, v%d, 15, v%d' % (vT[0], vY, vG0))
e('s_lshl_b32 s%d, s%d, 13' % (sT0, sW))
e('v_add_u32 v%d, s%d, v%d' % (vG0, sT0, vT[0]))
e('v_add_u32 v%d, %d, v%d' % (vG1, 4096-PS, vG0))
e('s_mul_i32 s%d, s%d, %d' % (sWc, sW, 2*PS))
e('s_add_u32 s%d, s%d, %d' % (sWcK, sWc, KEND))
e('s_add_u32 s%d, s%d, 7' % (sX, sW))
e('s_cmp_ge_u32 s%d, 2' % sW)
e('s_cselect_b32 s%d, s%d, s%d' % (sX, sW, sX))
e('s_mul_i32 s%d, s%d, %d' % (sX, sX, SLOT))
e('s_mov_b32 s%d, 0x20000' % (sKS+3))
e('s_mov_b32 s%d, 0x20000' % (sVS+3))
e('s_mov_b32 s%d, 0x20000' % (sOS+3))
e('s_waitcnt lgkmcnt(0)')
e('s_and_b32 s%d, s%d, 0xffff' % (sKp+1, sKp+1))
e('s_mov_b64 %s, %s' % (sr(sKS, 2), sr(sKp, 2)))
e('s_mov_b32 s%d, s%d' % (sKS+2, sD+2))
e('s_mov_b32 s%d, s%d' % (sKoff, sD))
e('s_bfe_u32 s%d, s%d, 0x40010' % (sT2, sD+3))
e('s_and_b32 s%d, s%d, 0xffff' % (sQp+1, sQp+1))
def ldseq(waits):
    cnt = [0]
    def ld(s):
        e(s); cnt[0] += 1
        if cnt[0] in waits: e('s_waitcnt vmcnt(%d)' % waits[cnt[0]])
    e(m0imm(KBASE)); e('s_mov_b64 %s, %s' % (sr(sOS, 2), sr(sQp, 2))); ld(dk(0))
    e('s_mov_b32 s%d, s%d' % (sOS+2, sD+2))
    e('s_lshr_b32 s%d, s%d, 22' % (sWq, sD+3))
    ld(dk(1)); e(KADV)
    e(m0imm(KBASE+SLOT)); e('s_mov_b32 s%d, s%d' % (sVS, sVp)); ld(dk(0))
    e('s_and_b32 s%d, s%d, 0xffff' % (sVS+1, sVp+1))
    ld(dk(1)); e(KADV)
    e('s_add_u32 s%d, s%d, s%d' % (sWq, sWq, sW))
    e('s_and_b32 s%d, s%d, 3' % (sWq, sWq))
    e('s_lshl_b32 s%d, s%d, 17' % (sWq, sWq))
    e('s_add_u32 s%d, s%d, s%d' % (sT1, sD+1, sWq))
    e('s_mov_b32 s%d, s%d' % (sVS+2, sD+2))
    e('s_mov_b32 s%d, s%d' % (sVoff, sD))
    for j in range(8):
        e('s_add_u32 m0, s%d, %d' % (sX, j*PS))
        if j: e('s_add_u32 s%d, s%d, 4096' % (sT1, sT1))
        else: e('s_nop 0')
        ld('buffer_load_dwordx4 v%d, %s, s%d offen%s lds' % (vT[0], sr(sOS, 4), sT1, QF))
    e(m0imm(0)); e('s_sub_u32 s%d, s%d, %d' % (sX, sX, KEND)); ld(dv(0)); ld(dv(1)); e(VADV)
    e(m0imm(KBASE+2*SLOT)); e('s_nop 0'); ld(dk(0)); ld(dk(1)); e(KADV)
    e(m0imm(SLOT)); e('s_nop 0'); ld(dv(0)); ld(dv(1)); e(VADV)
e('s_cmp_eq_u32 s%d, 0' % sT2)
e('s_cbranch_scc0 L_ldB')
ldseq({})
e('s_branch L_ldone')
lab('L_ldB')
ldseq(BW)
lab('L_ldone')
if STAMP:
    e('s_and_b32 s65, s65, 0xffff')
    e('s_mov_b32 s66, 0x1000000')
    e('s_mov_b32 s67, 0x20000')
    e('s_lshl_b32 s70, s2, 2')
    e('s_add_u32 s70, s70, s%d' % sW)
    e('s_lshl_b32 s70, s70, 6')
e('s_bfe_u32 s%d, s%d, 0x20014' % (sPri, sD+3))
if PPRO is not None: e('s_setprio %d' % int(PPRO))
else: prio_loop()
e('v_and_b32 v%d, 7, v%d' % (vX, vLane))
e('v_mul_u32_u24 v%d, %d, v%d' % (vAKc, PS, vX))
e('v_bfe_u32 v%d, v%d, 3, 1' % (vT[1], vLane))
e('v_lshl_add_u32 v%d, v%d, 8, v%d' % (vAKc, vT[1], vAKc))
e('v_lshl_add_u32 v%d, v%d, 4, v%d' % (vAKc, vY, vAKc))
e('v_add_u32 v%d, %d, v%d' % (vAKc, KEND, vAKc))
e(set_ka(sX))
e('v_bfe_u32 v%d, v%d, 2, 3' % (vAVc, vLane))
e('v_mul_u32_u24 v%d, %d, v%d' % (vAVc, PS, vAVc))
e('v_lshrrev_b32 v%d, 5, v%d' % (vX2, vLane))
e('v_lshl_add_u32 v%d, v%d, 8, v%d' % (vAVc, vX2, vAVc))
e('v_and_b32 v%d, 3, v%d' % (vY2, vLane))
e('v_lshl_add_u32 v%d, v%d, 3, v%d' % (vAVc, vY2, vAVc))
e('v_xor_b32 v%d, v%d, v%d' % (vWc, vX2, vX))
e('v_lshlrev_b32 v%d, 4, v%d' % (vWc, vWc))
e('v_lshl_add_u32 v%d, v%d, 7, v%d' % (vWc, vZ, vWc))
e('v_and_b32 v%d, 1, v%d' % (vY2, vY))
e('v_xor_b32 v%d, v%d, v%d' % (vY2, vY2, vT[1]))
e('v_lshl_add_u32 v%d, v%d, 3, v%d' % (vWc, vY2, vWc))
e('s_and_b32 s%d, s%d, 1' % (sT0, sW))
e('s_lshl_b32 s%d, s%d, 12' % (sT0, sT0))
e('v_add_u32 v%d, s%d, v%d' % (vWc, sT0, vWc))
e('v_lshrrev_b32 v%d, 3, v%d' % (vY2, vLane))
e('v_xor_b32 v%d, v%d, v%d' % (vRDc, vY2, vX))
e('v_lshlrev_b32 v%d, 4, v%d' % (vRDc, vRDc))
e('v_lshl_add_u32 v%d, v%d, 7, v%d' % (vRDc, vY2, vRDc))
e('v_add_u32 v%d, s%d, v%d' % (vRDc, sT0, vRDc))
e('v_lshlrev_b32 v%d, 12, v%d' % (vST, vY2))
e('v_lshl_add_u32 v%d, v%d, 4, v%d' % (vST, vX, vST))
for r in range(8): e('v_mov_b32 v%d, 0' % (vNM+r))
e('s_mov_b32 s%d, 0x%08x' % (sC, f2u(CC)))
e('s_mov_b32 s%d, 0x%08x' % (sThr, f2u(2.0**THRLOG)))
e('s_mov_b32 s%d, 0x%08x' % (sLow, f2u(2.0**-LOWLOG)))
e('s_mov_b32 s%d, s%d' % (sOS, sOp))
e('s_and_b32 s%d, s%d, 0xffff' % (sOS+1, sOp+1))
e('s_mov_b32 s%d, 0x%x' % (sX, kb(0)))
e('s_mov_b32 s%d, %d' % (sVa, 2*SLOT))
e('s_mov_b32 s%d, %d' % (sVrd[0], 3*SLOT))
e('s_mov_b32 s%d, 1' % sFirst)
def qk0_with_prescale(ps, extra):
    for idx in range(16):
        if idx % 4 == 0: e('s_nop 1')
        need('k%d' % qk_frag(idx))
        e(qk(idx, vS[0], A=vV))
        for x in extra.get(idx, []):
            if callable(x): x()
            else: e(x)
        for x in ps[:10]: e(x)
        del ps[:10]
def p1():
    e('s_waitcnt vmcnt(6)')
    tickA()
    for f in KORD: e(kread(f, tag='q'))
    if STAMP:
        e('s_getreg_b32 s75, hwreg(HW_REG_HW_ID)')
        e('s_getreg_b32 s76, hwreg(HW_REG_XCC_ID)')
        e('s_and_b32 s75, s75, 0xffff')
        e('s_lshl_b32 s76, s76, 16')
        e('s_or_b32 s75, s75, s76')
        e('v_mov_b32 v250, s74')
        e('v_mov_b32 v251, s75')
        e('v_mov_b32 v252, s70')
        e('s_mov_b64 s[72:73], exec')
        e('s_mov_b64 exec, 1')
        e('buffer_store_dwordx2 v[250:251], v252, s[64:67], 0 offen')
        e('s_mov_b64 exec, s[72:73]')
        stamp(1)
    e(set_ka(sX))
    drain()
    e('s_barrier')
    tickB()
    tflush()
    for f in KORD: e(kread(f, vV))

    ps = prescale_ops()
    for i, x in enumerate(ps[:40]):
        e(x)
        if i == 9: e(m0imm(KBASE+3*SLOT))
        if i == 14: e(dk(0))
        if i == 29: e(dk(1)); e(KADV)
    del ps[:40]
    qk0_with_prescale(ps, {1: [m0imm(KBASE+4*SLOT)], 2: [dk(0)], 5: [dk(1)], 6: [KADV]})
    tickA()
    e('s_waitcnt vmcnt(6)')


if not NOIDLE:
    e('s_add_u32 s%d, s%d, s%d' % (sT0, sWq, sD+1))
    e('s_cmp_ge_u32 s%d, s%d' % (sT0, sD+2))
    e('s_cbranch_scc1 L_p1I')
p1()

lab('L_pre0')
del dsq[:]
for x in next_k(sK1, sX): e(x)
e(set_ka(sK1))
e(m0v(sVa))
if USEPRI: prio_loop()
e('s_barrier')
tickB()
for f in KORD: e(kread(f))
e(dv(0))
e('s_and_b32 s%d, s%d, 0xff' % (sT0, sD+3))
e('s_cmp_eq_u32 s%d, 0' % (sD+7))
e('s_cselect_b32 s%d, 2, 6' % sT1)
e('s_cselect_b32 s%d, 1, 0' % sState)
e('s_sub_u32 s%d, s%d, s%d' % (sEv, sT0, sT1))
for x in next_v(sVrd[1], sVrd[0]): e(x)
e(set_va(sVrd[1]))
for x in next_k(sKrd[0], sK1): e(x)
e(set_ka(sKrd[0]))
e(dv(1)); e(VADV)
tflush()
stamp(2)
if not NOIDLE:
    e('s_add_u32 s%d, s%d, s%d' % (sT0, sWq, sD+1))
    e('s_cmp_ge_u32 s%d, s%d' % (sT0, sD+2))
    e('s_cbranch_scc1 L_step0I')
dsq0 = list(dsq)

handlers = []
def step0():
    lab('L_step0')
    dsq[:] = dsq0
    N = [[] for _ in range(16)]
    G = [sm_slot(0, g, True) for g in range(16)]
    for ks in range(4):
        if ks < 3: N[4*ks+4] += [kread(ks, tag='n')]; N[4*ks+5] += [kread(4+ks, tag='n')]
    N[14] += [kread(3, tag='n')]
    N[15] += [kread(7, tag='n')]
    N[1] += [m0k(sX)]
    N[2] += [dk(0)]
    N[6] += [dk(1)]
    N[7] += [KADV]
    N[10] += next_k(sKrd[1], sKrd[0])
    N[11] += ['s_sub_u32 s%d, s%d, 1' % (sEv, sEv), 's_cbranch_scc1 %s' % L('L_evS'), ('LABEL', 'L_retSx')]
    for g in range(16):
        need('k%d' % qk_frag(g))
        e(qk(g, vS[1]))
        for x in N[g] + G[g]:
            if x[0] == 'LABEL': lab(x[1])
            else: e(x)
    e(m0k(sK1))
    e(ad(0, 15)); e(cv(0, 7))
    e(set_ka(sKrd[1]))
    e('v_subrev_u32 v%d, s%d, v%d' % (vX, sLow, vL[0][0]))
    e('v_subrev_u32 v%d, s%d, v%d' % (vY, sLow, vL[0][1]))
    e('s_sub_u32 s%d, s%d, s%d' % (sT0, sThr, sLow))
    e('v_max_u32 v%d, v%d, v%d' % (vX, vX, vY))
    e('v_cmp_lt_u32 vcc, s%d, v%d' % (sT0, vX))
    e('s_cmp_eq_u32 s%d, 0' % sFirst)
    e('s_cbranch_scc1 %s' % L('L_s0w'))
    e('s_waitcnt vmcnt(6)')
    lab('L_s0w')
    e('s_cbranch_vccnz L_fbS')
    lab('L_fbretS')

def body(p, tag, nxt, first=False, loop=False):
    lab('L_ret%s' % tag)
    INLOOP[0] = not first
    tickA()
    drain(vm=10)
    e('s_barrier')
    tickB()
    N = [[] for _ in range(32)]
    G = [[] for _ in range(32)]
    for q in range(4):
        x = 4*q; g = 7*q
        G[g] = [ex(p, x)]; G[g+1] = [ex(p, x+1)]; G[g+2] = [ad(p, x), cv(p, 2*q)]
        G[g+3] = [ex(p, x+2)]; G[g+4] = [ex(p, x+3)]; G[g+5] = [ad(p, x+1), ad(p, x+2)]; G[g+6] = [ad(p, x+3), cv(p, 2*q+1)]
    G[28] = check_ops(p)
    for g in range(16): N[g].append(VREADS[g])
    for g in range(8): N[16+g].append(kread(KORD[g]))
    N[23] += [m0v(sVrd[1-p])]
    N[24] += [dv(0)]
    N[25] += [xor_v(sVrd[1-p])]
    N[26] += [dv(1)]
    N[27] += [m0k(sKrd[1-p])]
    N[28] += [dk(0)]
    N[29] += [VADV]
    G[29] = [set_va(sVrd[1-p])]
    N[30] += [dk(1)] + next_k(sKrd[1-p], sKrd[p])
    N[31] += [KADV]
    G[31] = [set_ka(sKrd[1-p])]
    if first:
        N[1] += [dk(0)]; N[4] += [dk(1)]; N[5] += [KADV]
        N[6] += ['s_sub_u32 s%d, s%d, 1' % (sEv, sEv), 's_cbranch_scc1 %s' % L('L_evF'), ('LABEL', 'L_retFx')]
    for g in range(32):
        if g == 16: need('v7')
        if g == 24: need('v15')
        if g < 16: e(qk(g, vS[1-p]))
        else: e(pv(g-16, vP[1-p], zero=first))
        for x in N[g] + G[g]:
            if x[0] == 'LABEL': lab(x[1])
            else: e(x)
    tflush()
    e('s_sub_u32 s%d, s%d, 1' % (sEv, sEv))
    e('s_cbranch_vccnz L_fb%s' % tag)
    INLOOP[0] = False
    lab('L_fbret%s' % tag)
    if loop: e('s_cbranch_scc0 %s' % L('L_ret%s' % nxt))
    else: e('s_cbranch_scc1 %s' % L('L_ev%s' % nxt))

def fallback(p, ret, has_next=True, first=False):
    e('s_nop 7'); e('s_nop 1')
    for x in max8(vS[p], vX, vY): e(x)
    emit_fill(xlane('v_max_f32', vX, vY), [])
    if not first:
        e('v_max_f32 v%d, 0, v%d' % (vX, vX))
        e('v_max_f32 v%d, 0, v%d' % (vY, vY))
        e('v_exp_f32 v%d, -v%d' % (vX2, vX))
        e('v_exp_f32 v%d, -v%d' % (vY2, vY))
    for x in range(16):
        e('v_sub_f32 v%d, v%d, v%d' % (vS[p]+x, vS[p]+x, vX if x < 8 else vY))
    if has_next:
        for x in range(16):
            e('v_sub_f32 v%d, v%d, v%d' % (vS[1-p]+x, vS[1-p]+x, vX if x < 8 else vY))
        for r in range(8):
            e('v_sub_f32 v%d, v%d, v%d' % (vNM+r, vNM+r, vX if r < 4 else vY))
    if not first:
        e('v_mul_f32 v%d, v%d, v%d' % (vL[1-p][0], vL[1-p][0], vX2))
        e('v_mul_f32 v%d, v%d, v%d' % (vL[1-p][1], vL[1-p][1], vY2))
        for r in range(64):
            e('v_mul_f32 v%d, v%d, v%d' % (vO+r, vO+r, vX2 if (r % 8) < 4 else vY2))
    for x in range(16):
        for y in sm_slot(p, x, first): e(y)
        e('s_nop 0')
    for x in sm_fin(p): e(x)
    e('s_branch %s' % ret)

def handler(tag, p, ret):
    lab('L_ev%s' % tag)
    e('s_cmp_eq_u32 s%d, 1' % sState)
    e('s_cbranch_scc1 %s' % L('L_evB%s' % tag))
    if p is not None:
        e('s_cmp_eq_u32 s%d, 2' % sState)
        e('s_cbranch_scc1 %s' % L('L_tail%d' % p))
    e('s_mov_b64 %s, %s' % (sr(sKS, 2), sr(sQp, 2)))
    e('s_mov_b32 s%d, s%d' % (sKS+2, sD+6))
    e('s_mov_b32 s%d, s%d' % (sKoff, sD+5))
    e('s_mov_b32 s%d, 3' % sEv)
    e('s_mov_b32 s%d, 1' % sState)
    e('s_branch %s' % L(ret))
    lab('L_evB%s' % tag)
    e('s_mov_b64 %s, %s' % (sr(sKS, 2), sr(sKp, 2)))
    e('s_mov_b32 s%d, s%d' % (sKS+2, sD+6))
    e('s_mov_b32 s%d, s%d' % (sVS+2, sD+6))
    e('s_mov_b32 s%d, s%d' % (sKoff, sD+4))
    e('s_mov_b32 s%d, s%d' % (sVoff, sD+4))
    e('s_mov_b32 s%d, 0' % sEv)
    e('s_mov_b32 s%d, 2' % sState)
    e('s_branch %s' % L(ret))

def tail1(p):
    lab('L_tail%d' % p)
    e(m0v(sVrd[1-p]))
    e('s_bfe_u32 s%d, s%d, 0x80008' % (sT0, sD+3))
    e('v_lshrrev_b32 v%d, 4, v%d' % (vX, vLane))
    e('v_lshlrev_b32 v%d, 2, v%d' % (vX, vX))
    e('v_sub_u32 v%d, s%d, v%d' % (vX, sT0, vX))
    e('v_mov_b32 v%d, 0xff800000' % vY)
    tickA()
    drain(vm=10)
    e('s_barrier')
    tickB()
    mk = []
    for i in range(2):
        for r in range(4):
            mk.append('v_cmp_lt_i32 %s, %d, v%d' % (sr(sM[r], 2), 16*i+r, vX))
        for j in range(2):
            for r in range(4):
                x = vS[p]+8*j+4*i+r
                mk.append('v_cndmask_b32 v%d, v%d, v%d, %s' % (x, vY, x, sr(sM[r], 2)))
    for g in range(4):
        e(VREADS[2*g]); e(VREADS[2*g+1])
        for x in mk[6*g:6*g+6]: e(x)
    N = [[] for _ in range(16)]
    G = [sm_slot(p, g) for g in range(16)]
    for g in range(8): N[g] += [VREADS[8+g]]
    N[8] += [dv(0)]
    N[9] += [xor_v(sVrd[1-p])]
    N[10] += ['s_sub_u32 s%d, s%d, %d' % (sX, sKrd[1-p], SLOT)]
    N[11] += ['s_cmp_lt_u32 s%d, 0x%x' % (sX, kb(0))]
    N[12] += ['s_cselect_b32 s%d, 0x%x, s%d' % (sX, kb(NK-1), sX)]
    N[13] += [dv(1)]
    N[14] += ['s_mov_b32 s%d, s%d' % (sVa, sVrd[p])]
    N[15] += [VADV]
    G[15] += [set_va(sVrd[1-p])]
    for g in range(16):
        if g % 2 == 0: need('v%d' % (g+1))
        e(pv(g, vP[1-p]))
        for x in N[g] + G[g]: e(x)
    for x in sm_fin(p): e(x)
    for x in check_ops(p): e(x)
    if p == 0:
        e('s_mov_b32 s%d, s%d' % (sVrd[0], sVrd[1]))
    tflush()
    e('s_cmp_eq_u32 s%d, 0' % (sD+7))
    e('s_cbranch_vccnz L_fbT%d' % p)
    lab('L_fbretT%d' % p)

def norm_stage(dt, off=0):
    ops = []
    for j in range(2):
        b = vO + 8*dt + 4*j
        for r in range(4): ops.append('v_mul_f32 v%d, v%d, v%d' % (b+r, b+r, vR[j]))
        if 'n' in PK:
            sel = 'op_sel:[0,1] op_sel_hi:[1,1]' if vR[j] % 2 else 'op_sel_hi:[1,0]'
            for r in (0, 2):
                ops[-4+r] = 'v_pk_mul_f32 %s, %s, %s %s' % (vr(b+r, 2), vr(b+r, 2), vr(vR[j] & ~1, 2), sel)
                ops[-3+r] = None
        ops.append('v_cvt_pk_bf16_f32 v%d, v%d, v%d' % (b, b, b+1))
        ops.append('v_cvt_pk_bf16_f32 v%d, v%d, v%d' % (b+1, b+2, b+3))
    a, b_ = ops[:6], ops[6:]
    seq = a[:4] + b_[:2] + a[4:] + b_[2:4]
    seq.append(('ds_write_b64 v%d, %s offset:%d' % (vW + dt % 4, vr(vO+8*dt, 2), off), 'w'))
    seq += b_[4:]
    seq.append(('ds_write_b64 v%d, %s offset:%d' % (vW + dt % 4, vr(vO+8*dt+4, 2), off + 2048), 'w'))
    return seq
def rdback(rho, off=0):
    ops = []
    for k in range(4):
        b = vO+32*rho+4*k
        if k % 2 == 0: ops.append(('ds_read_b128 %s, v%d offset:%d' % (vr(b, 4), vRD, off + 1024*k), 'r%d' % k))
        else:
            ops.append(('ds_read_b64 %s, v%d offset:%d' % (vr(b, 2), vRD, off + 1024*k + 8), 'r%d' % k))
            ops.append(('ds_read_b64 %s, v%d offset:%d' % (vr(b+2, 2), vRD, off + 1024*k), 'r%d' % k))
    return ops
SOFF = [sT1, sT2, sT3, sT4]
def store(rho, k):
    need('r%d' % k)
    e('buffer_store_dwordx4 %s, v%d, %s, s%d offen offset:%d%s' % (vr(vO+32*rho+4*k, 4), vST, sr(sOS, 4), SOFF[k], 128*rho, SF))
def epi_addr():
    return ['v_add_u32 v%d, s%d, v%d' % (vW, sT0, vWc),
            'v_add_u32 v%d, s%d, v%d' % (vRD, sT0, vRDc),
            'v_xor_b32 v%d, 32, v%d' % (vW+1, vW),
            'v_xor_b32 v%d, 64, v%d' % (vW+2, vW),
            'v_xor_b32 v%d, 96, v%d' % (vW+3, vW)]
def epi_soff():
    return ['s_add_u32 s%d, s%d, s%d' % (sT1, sWq, sD+1),
            's_mov_b32 s%d, s%d' % (sOS+2, sD+2),
            's_add_u32 s%d, s%d, %d' % (sT2, sT1, 8*4096),
            's_add_u32 s%d, s%d, %d' % (sT3, sT1, 16*4096),
            's_add_u32 s%d, s%d, %d' % (sT4, sT1, 24*4096)]
def rcps(p):
    return ['v_rcp_f32 v%d, v%d' % (vR[0], vL[p][0]), 'v_rcp_f32 v%d, v%d' % (vR[1], vL[p][1])]
def spread(main, extra):
    for i, x in enumerate(main):
        for y in extra.get(i, []):
            if callable(y): y()
            else: e(y)
        e(x)

def tail2(p):
    lab('L_tail2_%d' % p)
    del dsq[:]
    e('s_cbranch_scc0 %s' % L('L_trans%d' % p))
    if IDLE[0]:
        tickA()
        e('s_waitcnt vmcnt(2)')
        e('s_barrier')
        tickB()
        tflush()
        e('s_branch L_fin')
    else: final(p)
    trans(p)
def final(p):
    if PEPI is not None: e('s_setprio %d' % int(PEPI))
    e('s_mul_i32 s%d, s%d, %d' % (sT0, sW, SLOT))
    e('s_and_b32 s%d, s%d, 1' % (sT1, sW))
    e('s_lshl_b32 s%d, s%d, 12' % (sT1, sT1))
    e('s_sub_u32 s%d, s%d, s%d' % (sT0, sT0, sT1))
    e('s_add_u32 s%d, s%d, %d' % (sT0, sT0, KBASE))
    tickA()
    e('s_waitcnt vmcnt(2)')
    e('s_barrier')
    tickB()
    stamp(5)
    fill = list(VREADS)
    for _ in range(4): e(fill.pop(0))
    emit_fill(xlane('v_add_f32', vL[p][0], vL[p][1])[1:], fill)
    for x in fill: e(x)
    tk()
    pre = {0: rcps(p), 1: epi_addr()[:3], 2: epi_addr()[3:], 3: epi_soff()}
    for g in range(16):
        if g % 2 == 0: need('v%d' % (g+1))
        e(pv(g, vP[p]))
        if g < 4:
            for x in pre[g]: e(x)
        else:
            ns = norm_stage((g-4)//2, 4096*((g-4)//8))
            for x in (ns[:7] if g % 2 == 0 else ns[7:]): e(x)
            if g == 11:
                tk()
                for x in rdback(0): e(x)
            if g == 14: store(0, 0)
    tk()
    store(0, 1)
    spread(norm_stage(6, 4096) + norm_stage(7, 4096), {10: [lambda: store(0, 2)], 22: [lambda: store(0, 3)]})
    tk()
    for x in rdback(1, 4096): e(x)
    for k in range(4): store(1, k)
    tk(); tk()
    tflush()
    tkflush()
    e('s_branch L_fin')
def trans(p):
    lab('L_trans%d' % p)
    del dsq[:]
    if PTR is not None: e('s_setprio %d' % int(PTR))
    e('s_lshr_b32 s%d, s%d, 22' % (sK1, sD+7))
    e('s_add_u32 s%d, s%d, s%d' % (sK1, sK1, sW))
    e('s_and_b32 s%d, s%d, 3' % (sK1, sK1))
    if IDLE[0]:
        e('s_lshl_b32 s%d, s%d, 17' % (sT0, sK1))
        e('s_add_u32 s%d, s%d, s%d' % (sT0, sT0, sD+5))
        e('s_cmp_ge_u32 s%d, s%d' % (sT0, sD+6))
        e('s_cbranch_scc0 L_trans%d' % p)
    e('s_add_u32 s%d, s%d, 1' % (sT0, sK1))
    e('s_mul_i32 s%d, s%d, %d' % (sT0, sT0, SLOT))
    e('s_add_u32 s%d, s%d, s%d' % (sT0, sT0, sX))
    e('s_cselect_b32 s%d, 0x%x, 0' % (sT1, kb(0)))
    e('s_add_u32 s%d, s%d, s%d' % (sT0, sT0, sT1))
    e(set_ka(sT0))
    e('s_cmp_ge_u32 s%d, 2' % sW)
    e('s_cselect_b32 s%d, s%d, s%d' % (sT0, sVrd[0], sVa))
    tickA()
    e('s_waitcnt vmcnt(6)')
    e('s_barrier')
    tickB()
    stamp(3)
    qr = [kread(f, tag='q') for f in KORD]
    fill = VREADS[:6] + qr[:2] + VREADS[6:] + qr[2:]
    for _ in range(6): e(fill.pop(0))
    emit_fill(xlane('v_add_f32', vL[p][0], vL[p][1])[1:], fill)
    tk()
    ps = prescale_ops()
    nm = ['v_mov_b32 v%d, 0' % (vNM+r) for r in range(8)]
    pre = {0: rcps(p) + nm[:2], 1: epi_addr()[:3] + nm[2:4], 2: epi_addr()[3:] + nm[4:]}
    so = epi_soff() + ['s_lshl_b32 s%d, s%d, 17' % (sWq, sK1)] + next_k(sKrd[0], sX)
    for g in range(8):
        if g % 2 == 0: need('v%d' % (g+1))
        e(pv(g, vP[p]))
        for x in fill[:2]: e(x)
        del fill[:2]
        if g < 3:
            for x in pre[g]: e(x)
        else:
            if g == 3: need('q0')
            if g == 4: e(set_ka(sX))
            if g == 6: need('q4')
            for x in so[:2]: e(x)
            del so[:2]
            for x in ps[:6]: e(x)
            del ps[:6]
    assert not fill and not so
    e(m0k(sKrd[0]))
    for x in ps[:10]: e(x)
    del ps[:10]
    tk()
    drain(vm=2)
    e('s_barrier')
    tk()
    nk = next_k(sKrd[0], sKrd[0])
    N = {8: [dk(0)], 10: [dk(1)], 11: [KADV] + nk + [m0k(sKrd[0])], 12: [dk(0)], 14: [dk(1)], 15: [KADV] + nk + [m0k(sKrd[0])]}
    for g in range(8, 16):
        e(pv(g, vP[p]))
        for x in N.get(g, []): e(x)
        ns = norm_stage((g-8)//2)
        for x in (ns[:7] if g % 2 == 0 else ns[7:]): e(x)
    tk()
    for x in rdback(0): e(x)
    for f in KORD: e(kread(f, vV))
    ns = norm_stage(4) + norm_stage(5) + norm_stage(6) + norm_stage(7)
    spread(ns, {10: [lambda: store(0, 0)], 22: [lambda: store(0, 1)], 34: [lambda: store(0, 2)], 46: [lambda: store(0, 3)]})
    tk()
    for x in rdback(1): e(x)
    qk0_with_prescale(ps, {0: [dk(0)], 2: [dk(1)], 3: [KADV] + nk + [m0k(sKrd[0])],
                           4: [lambda: store(1, 0)], 6: [lambda: store(1, 1)], 8: [lambda: store(1, 2)], 10: [lambda: store(1, 3)],
                           12: [dk(0), 's_mov_b64 %s, %s' % (sr(sD, 2), sr(sD+4, 2)), 's_mov_b64 %s, %s' % (sr(sD+2, 2), sr(sD+6, 2))],
                           13: ['s_mov_b64 %s, 0' % sr(sD+4, 2), 's_mov_b64 %s, 0' % sr(sD+6, 2), 's_mov_b32 s%d, 0' % sFirst],
                           15: [dk(1), KADV]})
    tk(); tk()
    tflush()
    tkflush()
    stamp(4)
    tickA()
    e('s_waitcnt vmcnt(12)')
    e('s_branch L_pre0')

def mainloop():
    step0()
    body(1, 'F', '0', first=True)
    body(0, '0', '1')
    body(1, '1', '0', loop=True)
    handler('0', 0, 'L_ret0')
    handler('1', 1, 'L_ret1')
    handler('F', None, 'L_retFx')
    handler('S', None, 'L_retSx')
mainloop()
for p in (0, 1):
    tail1(p)
    tail2(p)
if not NOIDLE:
    IDLE[0] = True
    mainloop()
    for p in (0, 1):
        tail1(p)
        tail2(p)
    lab('L_p1')
    del dsq[:]
    p1()
    e('s_branch L_pre0')
    IDLE[0] = False
for tag, p in (('F', 1), ('0', 0), ('1', 1)):
    lab('L_fb%s' % tag)
    fallback(p, 'L_fbret%s' % tag)
for p in (0, 1):
    lab('L_fbT%d' % p)
    fallback(p, 'L_fbretT%d' % p, has_next=False)
lab('L_fbS')
fallback(0, 'L_fbretS', first=True)

lab('L_fin')
if REP:
    e('s_waitcnt vmcnt(0) lgkmcnt(0)')
    e('s_barrier')
    e('s_sub_u32 s79, s79, 1')
    e('s_cbranch_scc0 L_again')
if STAMP:
    stamp(6)
    e('s_waitcnt vmcnt(0)')
    stamp(7)
if PROF:
    e('s_waitcnt vmcnt(0)')
    e('s_memtime s[68:69]')
    e('s_memrealtime s[72:73]')
    e('s_waitcnt lgkmcnt(0)')
    e('v_writelane_b32 v253, s76, 62')
    e('v_writelane_b32 v254, s74, 62')
    e('v_writelane_b32 v253, s68, 63')
    e('v_writelane_b32 v254, s72, 63')
    e('v_writelane_b32 v253, s71, 61')
    e('s_and_b32 s65, s65, 0xffff')
    e('s_mov_b32 s66, 0x1000000')
    e('s_mov_b32 s67, 0x20000')
    e('s_lshl_b32 s70, s2, 2')
    e('s_add_u32 s70, s70, s%d' % sW)
    e('s_lshl_b32 s70, s70, 9')
    e('v_lshlrev_b32 v252, 2, v%d' % vLane)
    e('s_nop 4')
    e('buffer_store_dword v253, v252, s[64:67], s70 offen')
    e('buffer_store_dword v254, v252, s[64:67], s70 offen offset:256')
lab('L_end')
e('s_endpgm')
out.append('.p2align 6')
out.append('.type L_table,@object')
lab('L_table')
for row in table:
    out.append('    .long ' + ', '.join('0x%08x' % x for x in row))
out.append('.size L_table, %d' % (32*NWG))
out.append('''.section .rodata,"a"
.p2align 6
.amdhsa_kernel %s_kernel
  .amdhsa_next_free_vgpr %d
  .amdhsa_next_free_sgpr %d
  .amdhsa_accum_offset %d
  .amdhsa_group_segment_fixed_size 0
  .amdhsa_kernarg_size 56
  .amdhsa_user_sgpr_count 2
  .amdhsa_user_sgpr_kernarg_segment_ptr 1
  .amdhsa_system_sgpr_workgroup_id_x 1
.end_amdhsa_kernel''' % (NAME, NVGPR, NSGPR, NVGPR))
dst = [a for a in sys.argv[1:] if not a.startswith('--')]
open(dst[0] if dst else 'cdna_kernels/%s.s' % NAME, 'w').write('\n'.join(out) + '\n')
```

```python
import sys, math, struct, json
CU = [0, 321, 555, 878, 1299, 1551, 1670, 1878, 2181, 2351, 2646, 2810, 3248, 3471, 3811, 4169, 4391]
NAME = "standalone__varlen_attn_packed__ragged"
HEADER = open('cdna_kernels/%s.s.ref' % NAME).read().split('; Override launch')[0]

def opt(name, default=None):
    for a in sys.argv[1:]:
        if a.startswith('--%s=' % name): return a.split('=', 1)[1]
    return default
def flag(name): return ('--' + name) in sys.argv
STAMP = flag('stamp'); PROF = flag('prof'); CLK = flag('clk'); FINE = flag('fine')
QF = opt('qf', 'nt'); KF = opt('kf', 'nt'); SF = opt('sf', '')
QF = (' ' + QF.replace('+', ' ')) if QF else ''
KF = (' ' + KF.replace('+', ' ')) if KF else ''
SF = (' ' + SF.replace('+', ' ')) if SF else ''
THRLOG = int(opt('thr', 14))
LOWLOG = int(opt('low', 40))
SCHED = opt('sched', 'a')
CLS = opt('cls', '01')
PRI = opt('pri', '00')
PPRO = opt('ppro', None)
PEPI = opt('pepi', None)
PTR = opt('ptr', None)
USEPRI = PPRO is not None or PEPI is not None or PTR is not None
NOIDLE = flag('noidle')
XL = opt('xl', '')
BW = dict((int(a), int(b)) for a, b in (x.split(':') for x in opt('bw', '4:2').split(',') if x))
PK = opt('pk', '')

out = []
IDLE = [False]
INLOOP = [False]
dsq = []
def e(s, tag=None):
    if s is None: return
    if isinstance(s, tuple): s, tag = s
    if INLOOP[0] and XL:
        if 'd' in XL and s.startswith('buffer_load'): return
        if 'v' in XL and s.startswith('ds_read_b64'): return
        if 'k' in XL and s.startswith('ds_read_b128'): return
        if 'e' in XL and s.startswith('v_exp'): return
        if 'a' in XL and s.startswith('v_add_f32'): return
        if 'c' in XL and s.startswith('v_cvt'): return
        if 'b' in XL and s.startswith('s_barrier'): return
        if 'h' in XL and (s.startswith('v_max_f32') or s.startswith('v_cmp_lt_f32') or s.startswith('s_cbranch_vccnz')): return
    if s.startswith('ds_'): dsq.append(tag)
    if IDLE[0]:
        if s.startswith('ds_') or s.startswith('s_nop'): return
        if s.startswith('v_') and not s.startswith('v_add_u32') and not s.startswith('v_writelane') and not s.startswith('v_mov_b32 v25'): return
        if s.startswith('s_waitcnt lgkmcnt') and not (PROF or STAMP): return
        if s.startswith('s_cbranch_vccnz'): return
        if s.startswith('s_add_u32 m0'):
            out.append('    ' + s); s = 's_nop 0'
    out.append('    ' + s)
def need(*tags, vm=None):
    last = -1
    for t in tags:
        idx = [i for i, x in enumerate(dsq) if x == t]
        if idx: last = max(last, idx[-1])
    if last < 0:
        if vm is not None: e('s_waitcnt vmcnt(%d)' % vm)
        return
    n = min(15, len(dsq) - 1 - last)
    e('s_waitcnt %slgkmcnt(%d)' % ('vmcnt(%d) ' % vm if vm is not None else '', n))
    del dsq[:len(dsq) - n]
def drain(vm=None):
    e('s_waitcnt %slgkmcnt(0)' % ('vmcnt(%d) ' % vm if vm is not None else ''))
    del dsq[:]
def lab(s): out.append(s + ('I' if IDLE[0] else '') + ':')
def L(s): return s + ('I' if IDLE[0] else '')

NB = [(CU[s+1]-CU[s]+31)//32 for s in range(16)]
def make_schedule():
    byn = {}
    for s in range(16):
        for hs in range(2):
            for g in range((NB[s]+3)//4):
                byn.setdefault(NB[s], []).append((s, hs, g))
    def take(n): return byn[n].pop(0)
    plan = ([([14], [12])]*6 + [([14], [14])]*2 + [([14], [11])]*6 + [([7, 7], [11])]*6 + [([8, 6], [11])]*6
            + [([10, 4], [10])]*2 + [([10, 6], [10])]*2 + [([10, 8], [10])]*2)
    res = [[[None]*len(a), [None]*len(b)] for a, b in plan]
    for lane in (0, 1):
        for i, p in enumerate(plan):
            res[i][lane][0] = take(p[lane][0])
    for lane in (0, 1):
        for i, p in enumerate(plan):
            if len(p[lane]) > 1: res[i][lane][1] = take(p[lane][1])
    assert all(len(v) == 0 for v in byn.values())
    return [[dict(tasks=res[i][l], cls=int(CLS[l]), pri=int(PRI[l])) for l in (0, 1)] for i in range(32)]
if SCHED.endswith('.json'):
    sched = json.load(open(SCHED))
else:
    base = make_schedule()
    sched = [[[dict(tasks=[[s, ((x+s) & 7) + 8*hs, gq, 0] for (s, hs, gq) in ln['tasks']], cls=ln['cls'], pri=ln['pri']) for ln in cu] for cu in base] for x in range(8)]
seen = set()
for xs in sched:
    for cu in xs:
        for ln in cu:
            for t in ln['tasks']:
                assert tuple(t[:3]) not in seen and t[2] < (NB[t[0]]+3)//4; seen.add(tuple(t[:3]))
assert len(seen) == 82*8
NWG = 512
def desc(t, extra=0):
    if t is None: return [0, 0, 0, 0]
    s, head, g, rot = t
    Ls = CU[s+1]-CU[s]; n = NB[s]
    return [CU[s]*4096 + head*256, (CU[s]+128*g)*4096 + head*256, CU[s+1]*4096, n | ((Ls-32*(n-1)) << 8) | (rot << 22) | extra]
table = []
for wg in range(NWG):
    xcd = wg & 7; j = wg >> 3
    ln = sched[xcd][j % 32][j // 32]
    tk_ = ln['tasks']
    assert len(tk_) == 1 or NB[tk_[0][0]] >= 6
    table.append(desc(tk_[0], (ln['cls'] << 16) | (ln['pri'] << 20)) + desc(tk_[1] if len(tk_) > 1 else None))
FIXN = int(opt('fixn', 0))
if FIXN:
    NWG = int(opt('nwg', 512))
    table = []
    for wg in range(NWG):
        xcd = wg & 7; j = wg >> 3
        head = xcd + 8*(j & 1)
        r0 = ((j >> 1) % 2) * 2048
        table.append([r0*4096 + head*256, (128*(j >> 1))*4096 + head*256, 4391*4096, FIXN | (32 << 8) | ((j//32) << 16), 0, 0, 0, 0])

PS = 1056
SLOT = 8*PS
NK, NV = 5, 4
KBASE = NV*SLOT
KEND = KBASE + NK*SLOT
LDS = KEND
VX2 = 2*SLOT
assert (SLOT & VX2) == 0
BLK = 32*4096
def kb(i): return (KBASE + i*SLOT - KEND) & 0xffffffff

sQp, sKp, sVp, sOp = 4, 6, 8, 10
sD = 12
sKS, sVS, sOS = 20, 24, 28
sW = 32
sKoff, sVoff = 33, 34
sKrd = [35, 36]; sVrd = [37, 38]
sWc, sWcK = 39, 40
sEv, sState = 41, 42
sX, sVa = 43, 44
sT0, sT1, sT2, sT3 = 45, 46, 47, 48
sPri = 49
sC = 50
sK1 = 51
sThr = 52
sT4 = 53
sM = [54, 56, 58, 60]
sFirst = 62
sWq = 3
sLow = 63
NSGPR = 100 if FINE else 80

vG0, vG1 = 1, 2
vAKc, vAVc, vAK, vAV = 3, 4, 5, 6
vWc, vRDc, vST = 7, 8, 9
vLane = 10
vX, vY, vZ = 11, 12, 13
vX2, vY2 = 14, 15
vQ = 16
vO = 48
vS = [112, 128]
vP = [144, 152]
vK = 160
vV = 192
vNM = 224
vL = [[232, 233], [234, 235]]
vT = [236, 237, 238, 239]
vW = 240
vRD = 244
vR = [245, 246]
vAV2 = 247
NVGPR = 256 if (STAMP or PROF or 'm' in XL) else 248

def vr(b, n): return 'v[%d:%d]' % (b, b+n-1)
def sr(b, n): return 's[%d:%d]' % (b, b+n-1)
CC = 128 ** -0.5 * math.log2(math.e)
def f2u(x): return struct.unpack('<I', struct.pack('<f', x))[0]

def dk(which):
    if which == 0: return 'buffer_load_dwordx4 v%d, %s, s%d offen%s lds' % (vG0, sr(sKS, 4), sKoff, KF)
    return 'buffer_load_dwordx4 v%d, %s, s%d offen offset:%d%s lds' % (vG1, sr(sKS, 4), sKoff, PS, KF)
def dv(which):
    if which == 0: return 'buffer_load_dwordx4 v%d, %s, s%d offen%s lds' % (vG0, sr(sVS, 4), sVoff, KF)
    return 'buffer_load_dwordx4 v%d, %s, s%d offen offset:%d%s lds' % (vG1, sr(sVS, 4), sVoff, PS, KF)
def m0imm(addr): return 's_add_u32 m0, s%d, %d' % (sWc, addr)
def m0v(s): return 's_add_u32 m0, s%d, s%d' % (sWc, s)
def m0k(s): return 's_add_u32 m0, s%d, s%d' % (sWcK, s)
KADV = 's_add_u32 s%d, s%d, %d' % (sKoff, sKoff, BLK)
VADV = 's_add_u32 s%d, s%d, %d' % (sVoff, sVoff, BLK)
def next_k(dst, src):
    return ['s_add_u32 s%d, s%d, %d' % (dst, src, SLOT),
            's_cselect_b32 s%d, 0x%x, s%d' % (dst, kb(0), dst)]
def next_v(dst, src):
    return ['s_add_u32 s%d, s%d, %d' % (dst, src, SLOT),
            's_cmp_ge_u32 s%d, %d' % (dst, NV*SLOT),
            's_cselect_b32 s%d, 0, s%d' % (dst, dst)]
def xor_v(s): return 's_xor_b32 s%d, s%d, 0x%x' % (s, s, VX2)
def set_ka(s): return 'v_add_u32 v%d, s%d, v%d' % (vAK, s, vAKc)
def set_va(s): return 'v_add_u32 v%d, s%d, v%d' % (vAV, s, vAVc)
def kread(f, dst=vK, tag='k'):
    return ('ds_read_b128 %s, v%d offset:%d' % (vr(dst+4*f, 4), vAK, 512*(f//4) + 64*(f % 4)), '%s%d' % (tag, f))
KORD = [0, 4, 1, 5, 2, 6, 3, 7]
def vread(k, dst=vV, adr=vAV, tag='v'):
    dt, h = k//2, k % 2
    return ('ds_read_b64_tr_b16 %s, v%d offset:%d' % (vr(dst+4*dt+2*h, 2), adr, 32*dt + 512*h), '%s%d' % (tag, k))
VREADS = [vread(k) for k in range(16)]
IJ = [(0, 0), (0, 1), (1, 1), (1, 0)]
def qk(idx, S, A=vK, B=vQ):
    ks = idx//4; i, j = IJ[idx % 4]
    D = S + 8*j + 4*i
    c = vr(D, 4) if ks else vr(vNM+4*j, 4)
    return 'v_mfma_f32_16x16x32_bf16 %s, %s, %s, %s' % (vr(D, 4), vr(A+4*(4*i+ks), 4), vr(B+4*(4*j+ks), 4), c)
def qk_frag(idx): return 4*IJ[idx % 4][0] + idx//4
def pv(idx, P, zero=False, A=vV):
    if isinstance(idx, tuple): dt, j = idx
    else: dt = idx//2; j = (idx % 2) ^ (dt & 1)
    D = vO + 8*dt + 4*j
    return 'v_mfma_f32_16x16x32_bf16 %s, %s, %s, %s' % (vr(D, 4), vr(A+4*dt, 4), vr(P+4*j, 4), '0' if zero else vr(D, 4))
def ex(p, x): return 'v_exp_f32 v%d, v%d' % (vT[x % 4], vS[p]+x)
def ad(p, x, first=False):
    j = x//8
    if x % 8 == 0:
        if first: return 'v_mov_b32 v%d, v%d' % (vL[p][j], vT[x % 4])
        return 'v_add_f32 v%d, v%d, v%d' % (vL[p][j], vL[1-p][j], vT[x % 4])
    return 'v_add_f32 v%d, v%d, v%d' % (vL[p][j], vL[p][j], vT[x % 4])
def cv(p, k): return 'v_cvt_pk_bf16_f32 v%d, v%d, v%d' % (vP[p]+k, vT[(2*k) % 4], vT[(2*k+1) % 4])
def sm_slot(p, x, first=False):
    ops = [ex(p, x)]
    if x >= 1: ops.append(ad(p, x-1, first))
    if x >= 2 and x % 2 == 0: ops.append(cv(p, (x-2)//2))
    return ops
def sm_fin(p): return [ad(p, 15), cv(p, 7)]
def check_ops(p):
    return ['v_max_f32 v%d, v%d, v%d' % (vX, vL[p][0], vL[p][1]),
            'v_cmp_lt_f32 vcc, s%d, v%d' % (sThr, vX)]
def max8(S, a, b):
    return ['v_max3_f32 v%d, v%d, v%d, v%d' % (a, S, S+1, S+2),
            'v_max3_f32 v%d, v%d, v%d, v%d' % (b, S+8, S+9, S+10),
            'v_max3_f32 v%d, v%d, v%d, v%d' % (a, a, S+3, S+4),
            'v_max3_f32 v%d, v%d, v%d, v%d' % (b, b, S+11, S+12),
            'v_max3_f32 v%d, v%d, v%d, v%d' % (a, a, S+5, S+6),
            'v_max3_f32 v%d, v%d, v%d, v%d' % (b, b, S+13, S+14),
            'v_max_f32 v%d, v%d, v%d' % (a, a, S+7),
            'v_max_f32 v%d, v%d, v%d' % (b, b, S+15)]
def xlane(op, a, b):
    return [None,
            'v_permlane32_swap_b32 v%d, v%d' % (a, b), None,
            '%s v%d, v%d, v%d' % (op, a, a, b),
            'v_mov_b32 v%d, v%d' % (b, a), None,
            'v_permlane16_swap_b32 v%d, v%d' % (a, b), None,
            '%s v%d, v%d, v%d' % (op, a, a, b),
            'v_mov_b32 v%d, v%d' % (b, a), None,
            'v_permlane32_swap_b32 v%d, v%d' % (a, b), None]
def emit_fill(seq, fill):
    for x in seq:
        if x is None:
            if len(fill) >= 2: e(fill.pop(0)); e(fill.pop(0))
            else: e('s_nop 1')
        else: e(x)
def prescale_ops():
    seq = []
    n = 0
    for f in KORD:
        for h in range(2):
            ops = []
            for i in (4*f+2*h, 4*f+2*h+1):
                t = vS[1] + 2*(n % 8); n += 1
                ops.append(['v_lshlrev_b32 v%d, 16, v%d' % (t, vK+i),
                            'v_and_b32 v%d, 0xffff0000, v%d' % (t+1, vK+i),
                            'v_mul_f32 v%d, s%d, v%d' % (t, sC, t),
                            'v_mul_f32 v%d, s%d, v%d' % (t+1, sC, t+1),
                            'v_cvt_pk_bf16_f32 v%d, v%d, v%d' % (vQ+i, t, t+1)])
            a, b = ops
            if 'p' in PK:
                for o in (a, b):
                    t = int(o[2].split()[1][1:-1])
                    o[2] = 'v_pk_mul_f32 %s, %s, %s op_sel_hi:[1,0]' % (vr(t, 2), vr(t, 2), sr(sC, 2)); o[3] = None
            seq += [a[0], a[1], b[0], b[1], a[2], a[3], b[2], b[3], a[4], b[4]]
    return seq

def stamp(slot):
    if not STAMP: return
    e('s_memrealtime s[68:69]')
    drain()
    e('v_mov_b32 v250, s68')
    e('v_mov_b32 v251, s69')
    e('v_mov_b32 v252, s70')
    e('s_mov_b64 s[72:73], exec')
    e('s_mov_b64 exec, 1')
    e('buffer_store_dwordx2 v[250:251], v252, s[64:67], 0 offen offset:%d' % (slot*8))
    e('s_mov_b64 exec, s[72:73]')
    e('s_nop 3')
def tickA():
    if PROF: e('s_memtime s[68:69]')
    if PROF and CLK: e('s_memrealtime s[72:73]')
def tickB():
    if PROF and not CLK: e('s_memtime s[72:73]')
def tflush():
    if not PROF: return
    drain()
    e('s_mov_b32 m0, s71')
    e('s_add_u32 s71, s71, 1')
    e('v_writelane_b32 v253, s68, m0')
    e('v_writelane_b32 v254, s72, m0')
_tk = [0]
def tk():
    if FINE:
        e('s_memtime s[%d:%d]' % (80+2*_tk[0], 81+2*_tk[0])); _tk[0] += 1
def tkflush():
    if not FINE: return
    drain()
    n = _tk[0]
    for i in range(0, n, 2):
        e('s_mov_b32 m0, s71')
        e('s_add_u32 s71, s71, 1')
        e('v_writelane_b32 v253, s%d, m0' % (80+2*i))
        e('v_writelane_b32 v254, s%d, m0' % (80+2*min(i+1, n-1)))
    _tk[0] = 0
_pn = [0]
def prio_loop():
    _pn[0] += 1
    e('s_cmp_eq_u32 s%d, 0' % sPri)
    if USEPRI: e('s_setprio 1')
    e('s_cbranch_scc1 L_pr%d' % _pn[0])
    e('s_setprio %d' % (2 if USEPRI else 1))
    out.append('L_pr%d:' % _pn[0])

out.append(HEADER.rstrip())
out.append('; @launch grid=(%d,1,1) block=(256,1,1) lds=%d' % (NWG, LDS))
out.append('.amdgcn_target "amdgcn-amd-amdhsa--gfx950"')
out.append('.text')
out.append('.globl %s_kernel' % NAME)
out.append('.p2align 8')
out.append('.type %s_kernel,@function' % NAME)
lab('%s_kernel' % NAME)
e('s_cmp_ge_u32 s2, %d' % NWG)
e('s_cbranch_scc1 L_end')
REP = int(opt('rep', 0))
if REP:
    e('s_mov_b32 s79, %d' % REP)
    lab('L_again')
e('s_getpc_b64 s[46:47]')
lab('L_pc')
e('s_load_dwordx4 s[4:7], s[0:1], 0')
e('s_lshl_b32 s3, s2, 5')
e('s_add_u32 s3, s3, L_table-L_pc')
e('s_add_u32 s46, s46, s3')
e('s_addc_u32 s47, s47, 0')
e('s_load_dwordx8 s[12:19], s[46:47], 0')
e('s_load_dwordx2 s[8:9], s[0:1], 16')
e('s_load_dwordx2 s[10:11], s[0:1], 32')
if STAMP or PROF:
    e('s_load_dwordx2 s[64:65], s[0:1], 48')
    e('s_memrealtime s[74:75]')
if PROF:
    e('s_memtime s[76:77]')
    e('s_mov_b32 s71, 0')
e('v_and_b32 v%d, 63, v0' % vLane)
e('v_lshrrev_b32 v%d, 6, v0' % vX)
e('v_lshrrev_b32 v%d, 4, v%d' % (vY, vLane))
e('v_readfirstlane_b32 s%d, v%d' % (sW, vX))
e('v_and_b32 v%d, 15, v%d' % (vZ, vLane))
e('v_lshlrev_b32 v%d, 4, v%d' % (vG0, vZ))
e('v_lshl_add_u32 v%d, v%d, 15, v%d' % (vT[0], vY, vG0))
e('s_lshl_b32 s%d, s%d, 13' % (sT0, sW))
e('v_add_u32 v%d, s%d, v%d' % (vG0, sT0, vT[0]))
e('v_add_u32 v%d, %d, v%d' % (vG1, 4096-PS, vG0))
e('s_mul_i32 s%d, s%d, %d' % (sWc, sW, 2*PS))
e('s_add_u32 s%d, s%d, %d' % (sWcK, sWc, KEND))
e('s_add_u32 s%d, s%d, 7' % (sX, sW))
e('s_cmp_ge_u32 s%d, 2' % sW)
e('s_cselect_b32 s%d, s%d, s%d' % (sX, sW, sX))
e('s_mul_i32 s%d, s%d, %d' % (sX, sX, SLOT))
e('s_mov_b32 s%d, 0x20000' % (sKS+3))
e('s_mov_b32 s%d, 0x20000' % (sVS+3))
e('s_mov_b32 s%d, 0x20000' % (sOS+3))
e('s_waitcnt lgkmcnt(0)')
e('s_and_b32 s%d, s%d, 0xffff' % (sKp+1, sKp+1))
e('s_mov_b64 %s, %s' % (sr(sKS, 2), sr(sKp, 2)))
e('s_mov_b32 s%d, s%d' % (sKS+2, sD+2))
e('s_mov_b32 s%d, s%d' % (sKoff, sD))
e('s_bfe_u32 s%d, s%d, 0x40010' % (sT2, sD+3))
e('s_and_b32 s%d, s%d, 0xffff' % (sQp+1, sQp+1))
def ldseq(waits):
    cnt = [0]
    def ld(s):
        e(s); cnt[0] += 1
        if cnt[0] in waits: e('s_waitcnt vmcnt(%d)' % waits[cnt[0]])
    e(m0imm(KBASE)); e('s_mov_b64 %s, %s' % (sr(sOS, 2), sr(sQp, 2))); ld(dk(0))
    e('s_mov_b32 s%d, s%d' % (sOS+2, sD+2))
    e('s_lshr_b32 s%d, s%d, 22' % (sWq, sD+3))
    ld(dk(1)); e(KADV)
    e(m0imm(KBASE+SLOT)); e('s_mov_b32 s%d, s%d' % (sVS, sVp)); ld(dk(0))
    e('s_and_b32 s%d, s%d, 0xffff' % (sVS+1, sVp+1))
    ld(dk(1)); e(KADV)
    e('s_add_u32 s%d, s%d, s%d' % (sWq, sWq, sW))
    e('s_and_b32 s%d, s%d, 3' % (sWq, sWq))
    e('s_lshl_b32 s%d, s%d, 17' % (sWq, sWq))
    e('s_add_u32 s%d, s%d, s%d' % (sT1, sD+1, sWq))
    e('s_mov_b32 s%d, s%d' % (sVS+2, sD+2))
    e('s_mov_b32 s%d, s%d' % (sVoff, sD))
    for j in range(8):
        e('s_add_u32 m0, s%d, %d' % (sX, j*PS))
        if j: e('s_add_u32 s%d, s%d, 4096' % (sT1, sT1))
        else: e('s_nop 0')
        ld('buffer_load_dwordx4 v%d, %s, s%d offen%s lds' % (vT[0], sr(sOS, 4), sT1, QF))
    e(m0imm(0)); e('s_sub_u32 s%d, s%d, %d' % (sX, sX, KEND)); ld(dv(0)); ld(dv(1)); e(VADV)
    e(m0imm(KBASE+2*SLOT)); e('s_nop 0'); ld(dk(0)); ld(dk(1)); e(KADV)
    e(m0imm(SLOT)); e('s_nop 0'); ld(dv(0)); ld(dv(1)); e(VADV)
e('s_cmp_eq_u32 s%d, 0' % sT2)
e('s_cbranch_scc0 L_ldB')
ldseq({})
e('s_branch L_ldone')
lab('L_ldB')
ldseq(BW)
lab('L_ldone')
if STAMP:
    e('s_and_b32 s65, s65, 0xffff')
    e('s_mov_b32 s66, 0x1000000')
    e('s_mov_b32 s67, 0x20000')
    e('s_lshl_b32 s70, s2, 2')
    e('s_add_u32 s70, s70, s%d' % sW)
    e('s_lshl_b32 s70, s70, 6')
e('s_bfe_u32 s%d, s%d, 0x20014' % (sPri, sD+3))
if PPRO is not None: e('s_setprio %d' % int(PPRO))
else: prio_loop()
e('v_and_b32 v%d, 7, v%d' % (vX, vLane))
e('v_mul_u32_u24 v%d, %d, v%d' % (vAKc, PS, vX))
e('v_bfe_u32 v%d, v%d, 3, 1' % (vT[1], vLane))
e('v_lshl_add_u32 v%d, v%d, 8, v%d' % (vAKc, vT[1], vAKc))
e('v_lshl_add_u32 v%d, v%d, 4, v%d' % (vAKc, vY, vAKc))
e('v_add_u32 v%d, %d, v%d' % (vAKc, KEND, vAKc))
e(set_ka(sX))
e('v_bfe_u32 v%d, v%d, 2, 3' % (vAVc, vLane))
e('v_mul_u32_u24 v%d, %d, v%d' % (vAVc, PS, vAVc))
e('v_lshrrev_b32 v%d, 5, v%d' % (vX2, vLane))
e('v_lshl_add_u32 v%d, v%d, 8, v%d' % (vAVc, vX2, vAVc))
e('v_and_b32 v%d, 3, v%d' % (vY2, vLane))
e('v_lshl_add_u32 v%d, v%d, 3, v%d' % (vAVc, vY2, vAVc))
e('v_xor_b32 v%d, v%d, v%d' % (vWc, vX2, vX))
e('v_lshlrev_b32 v%d, 4, v%d' % (vWc, vWc))
e('v_lshl_add_u32 v%d, v%d, 7, v%d' % (vWc, vZ, vWc))
e('v_and_b32 v%d, 1, v%d' % (vY2, vY))
e('v_xor_b32 v%d, v%d, v%d' % (vY2, vY2, vT[1]))
e('v_lshl_add_u32 v%d, v%d, 3, v%d' % (vWc, vY2, vWc))
e('s_and_b32 s%d, s%d, 1' % (sT0, sW))
e('s_lshl_b32 s%d, s%d, 12' % (sT0, sT0))
e('v_add_u32 v%d, s%d, v%d' % (vWc, sT0, vWc))
e('v_lshrrev_b32 v%d, 3, v%d' % (vY2, vLane))
e('v_xor_b32 v%d, v%d, v%d' % (vRDc, vY2, vX))
e('v_lshlrev_b32 v%d, 4, v%d' % (vRDc, vRDc))
e('v_lshl_add_u32 v%d, v%d, 7, v%d' % (vRDc, vY2, vRDc))
e('v_add_u32 v%d, s%d, v%d' % (vRDc, sT0, vRDc))
e('v_lshlrev_b32 v%d, 12, v%d' % (vST, vY2))
e('v_lshl_add_u32 v%d, v%d, 4, v%d' % (vST, vX, vST))
for r in range(8): e('v_mov_b32 v%d, 0' % (vNM+r))
e('s_mov_b32 s%d, 0x%08x' % (sC, f2u(CC)))
e('s_mov_b32 s%d, 0x%08x' % (sThr, f2u(2.0**THRLOG)))
e('s_mov_b32 s%d, 0x%08x' % (sLow, f2u(2.0**-LOWLOG)))
e('s_mov_b32 s%d, s%d' % (sOS, sOp))
e('s_and_b32 s%d, s%d, 0xffff' % (sOS+1, sOp+1))
e('s_mov_b32 s%d, 0x%x' % (sX, kb(0)))
e('s_mov_b32 s%d, %d' % (sVa, 2*SLOT))
e('s_mov_b32 s%d, %d' % (sVrd[0], 3*SLOT))
e('s_mov_b32 s%d, 1' % sFirst)
def qk0_with_prescale(ps, extra):
    for idx in range(16):
        if idx % 4 == 0: e('s_nop 1')
        need('k%d' % qk_frag(idx))
        e(qk(idx, vS[0], A=vV))
        for x in extra.get(idx, []):
            if callable(x): x()
            else: e(x)
        for x in ps[:10]: e(x)
        del ps[:10]
def p1():
    e('s_waitcnt vmcnt(6)')
    tickA()
    for f in KORD: e(kread(f, tag='q'))
    if STAMP:
        e('s_getreg_b32 s75, hwreg(HW_REG_HW_ID)')
        e('s_getreg_b32 s76, hwreg(HW_REG_XCC_ID)')
        e('s_and_b32 s75, s75, 0xffff')
        e('s_lshl_b32 s76, s76, 16')
        e('s_or_b32 s75, s75, s76')
        e('v_mov_b32 v250, s74')
        e('v_mov_b32 v251, s75')
        e('v_mov_b32 v252, s70')
        e('s_mov_b64 s[72:73], exec')
        e('s_mov_b64 exec, 1')
        e('buffer_store_dwordx2 v[250:251], v252, s[64:67], 0 offen')
        e('s_mov_b64 exec, s[72:73]')
        stamp(1)
    e(set_ka(sX))
    drain()
    e('s_barrier')
    tickB()
    tflush()
    for f in KORD: e(kread(f, vV))

    ps = prescale_ops()
    for i, x in enumerate(ps[:40]):
        e(x)
        if i == 9: e(m0imm(KBASE+3*SLOT))
        if i == 14: e(dk(0))
        if i == 29: e(dk(1)); e(KADV)
    del ps[:40]
    qk0_with_prescale(ps, {1: [m0imm(KBASE+4*SLOT)], 2: [dk(0)], 5: [dk(1)], 6: [KADV]})
    tickA()
    e('s_waitcnt vmcnt(6)')


if not NOIDLE:
    e('s_add_u32 s%d, s%d, s%d' % (sT0, sWq, sD+1))
    e('s_cmp_ge_u32 s%d, s%d' % (sT0, sD+2))
    e('s_cbranch_scc1 L_p1I')
p1()

lab('L_pre0')
del dsq[:]
for x in next_k(sK1, sX): e(x)
e(set_ka(sK1))
e(m0v(sVa))
if USEPRI: prio_loop()
e('s_barrier')
tickB()
for f in KORD: e(kread(f))
e(dv(0))
e('s_and_b32 s%d, s%d, 0xff' % (sT0, sD+3))
e('s_cmp_eq_u32 s%d, 0' % (sD+7))
e('s_cselect_b32 s%d, 2, 6' % sT1)
e('s_cselect_b32 s%d, 1, 0' % sState)
e('s_sub_u32 s%d, s%d, s%d' % (sEv, sT0, sT1))
for x in next_v(sVrd[1], sVrd[0]): e(x)
e(set_va(sVrd[1]))
for x in next_k(sKrd[0], sK1): e(x)
e(set_ka(sKrd[0]))
e(dv(1)); e(VADV)
tflush()
stamp(2)
if not NOIDLE:
    e('s_add_u32 s%d, s%d, s%d' % (sT0, sWq, sD+1))
    e('s_cmp_ge_u32 s%d, s%d' % (sT0, sD+2))
    e('s_cbranch_scc1 L_step0I')
dsq0 = list(dsq)

handlers = []
def step0():
    lab('L_step0')
    dsq[:] = dsq0
    N = [[] for _ in range(16)]
    G = [sm_slot(0, g, True) for g in range(16)]
    for ks in range(4):
        if ks < 3: N[4*ks+4] += [kread(ks, tag='n')]; N[4*ks+5] += [kread(4+ks, tag='n')]
    N[14] += [kread(3, tag='n')]
    N[15] += [kread(7, tag='n')]
    N[1] += [m0k(sX)]
    N[2] += [dk(0)]
    N[6] += [dk(1)]
    N[7] += [KADV]
    N[10] += next_k(sKrd[1], sKrd[0])
    N[11] += ['s_sub_u32 s%d, s%d, 1' % (sEv, sEv), 's_cbranch_scc1 %s' % L('L_evS'), ('LABEL', 'L_retSx')]
    for g in range(16):
        need('k%d' % qk_frag(g))
        e(qk(g, vS[1]))
        for x in N[g] + G[g]:
            if x[0] == 'LABEL': lab(x[1])
            else: e(x)
    e(m0k(sK1))
    e(ad(0, 15)); e(cv(0, 7))
    e(set_ka(sKrd[1]))
    e('v_subrev_u32 v%d, s%d, v%d' % (vX, sLow, vL[0][0]))
    e('v_subrev_u32 v%d, s%d, v%d' % (vY, sLow, vL[0][1]))
    e('s_sub_u32 s%d, s%d, s%d' % (sT0, sThr, sLow))
    e('v_max_u32 v%d, v%d, v%d' % (vX, vX, vY))
    e('v_cmp_lt_u32 vcc, s%d, v%d' % (sT0, vX))
    e('s_cmp_eq_u32 s%d, 0' % sFirst)
    e('s_cbranch_scc1 %s' % L('L_s0w'))
    e('s_waitcnt vmcnt(6)')
    lab('L_s0w')
    e('s_cbranch_vccnz L_fbS')
    lab('L_fbretS')

def body(p, tag, nxt, first=False, loop=False):
    lab('L_ret%s' % tag)
    INLOOP[0] = not first
    tickA()
    drain(vm=10)
    e('s_barrier')
    tickB()
    N = [[] for _ in range(32)]
    G = [[] for _ in range(32)]
    for q in range(4):
        x = 4*q; g = 7*q
        G[g] = [ex(p, x)]; G[g+1] = [ex(p, x+1)]; G[g+2] = [ad(p, x), cv(p, 2*q)]
        G[g+3] = [ex(p, x+2)]; G[g+4] = [ex(p, x+3)]; G[g+5] = [ad(p, x+1), ad(p, x+2)]; G[g+6] = [ad(p, x+3), cv(p, 2*q+1)]
    G[28] = check_ops(p)
    for g in range(16): N[g].append(VREADS[g])
    for g in range(8): N[16+g].append(kread(KORD[g]))
    N[23] += [m0v(sVrd[1-p])]
    N[24] += [dv(0)]
    N[25] += [xor_v(sVrd[1-p])]
    N[26] += [dv(1)]
    N[27] += [m0k(sKrd[1-p])]
    N[28] += [dk(0)]
    N[29] += [VADV]
    G[29] = [set_va(sVrd[1-p])]
    N[30] += [dk(1)] + next_k(sKrd[1-p], sKrd[p])
    N[31] += [KADV]
    G[31] = [set_ka(sKrd[1-p])]
    if first:
        N[1] += [dk(0)]; N[4] += [dk(1)]; N[5] += [KADV]
        N[6] += ['s_sub_u32 s%d, s%d, 1' % (sEv, sEv), 's_cbranch_scc1 %s' % L('L_evF'), ('LABEL', 'L_retFx')]
    for g in range(32):
        if g == 16: need('v7')
        if g == 24: need('v15')
        if g < 16: e(qk(g, vS[1-p]))
        else: e(pv(g-16, vP[1-p], zero=first))
        if 'm' in XL and g in (21, 27) and not IDLE[0]:
            j = int(g == 27)
            e('v_mfma_f32_16x16x32_bf16 %s, %s, %s, %s' % (vr(248+4*j, 4), vr(vNM+4, 4), vr(vP[1-p]+4*j, 4), vr(248+4*j, 4)))
        for x in N[g] + G[g]:
            if x[0] == 'LABEL': lab(x[1])
            else: e(x)
    tflush()
    e('s_sub_u32 s%d, s%d, 1' % (sEv, sEv))
    e('s_cbranch_vccnz L_fb%s' % tag)
    INLOOP[0] = False
    lab('L_fbret%s' % tag)
    if loop: e('s_cbranch_scc0 %s' % L('L_ret%s' % nxt))
    else: e('s_cbranch_scc1 %s' % L('L_ev%s' % nxt))

def fallback(p, ret, has_next=True, first=False, ret2=None):
    e('s_nop 7'); e('s_nop 1')
    for x in max8(vS[p], vX, vY): e(x)
    emit_fill(xlane('v_max_f32', vX, vY), [])
    if not first:
        e('v_max_f32 v%d, 0, v%d' % (vX, vX))
        e('v_max_f32 v%d, 0, v%d' % (vY, vY))
        e('v_exp_f32 v%d, -v%d' % (vX2, vX))
        e('v_exp_f32 v%d, -v%d' % (vY2, vY))
    for x in range(16):
        e('v_sub_f32 v%d, v%d, v%d' % (vS[p]+x, vS[p]+x, vX if x < 8 else vY))
    if has_next:
        for x in range(16):
            e('v_sub_f32 v%d, v%d, v%d' % (vS[1-p]+x, vS[1-p]+x, vX if x < 8 else vY))
        for r in range(8):
            e('v_sub_f32 v%d, v%d, v%d' % (vNM+r, vNM+r, vX if r < 4 else vY))
    if not first:
        e('v_mul_f32 v%d, v%d, v%d' % (vL[1-p][0], vL[1-p][0], vX2))
        e('v_mul_f32 v%d, v%d, v%d' % (vL[1-p][1], vL[1-p][1], vY2))
        for r in range(64):
            e('v_mul_f32 v%d, v%d, v%d' % (vO+r, vO+r, vX2 if (r % 8) < 4 else vY2))
    for x in range(16):
        for y in sm_slot(p, x, first): e(y)
        e('s_nop 0')
    for x in sm_fin(p): e(x)
    if ret2: e('s_cbranch_scc1 %s' % ret2)
    e('s_branch %s' % ret)

def handler(tag, p, ret):
    lab('L_ev%s' % tag)
    e('s_cmp_eq_u32 s%d, 1' % sState)
    e('s_cbranch_scc1 %s' % L('L_evB%s' % tag))
    if p is not None:
        e('s_cmp_eq_u32 s%d, 2' % sState)
        e('s_cbranch_scc1 %s' % L('L_tail%d' % p))
    e('s_mov_b64 %s, %s' % (sr(sKS, 2), sr(sQp, 2)))
    e('s_mov_b32 s%d, s%d' % (sKS+2, sD+6))
    e('s_mov_b32 s%d, s%d' % (sKoff, sD+5))
    e('s_mov_b32 s%d, 3' % sEv)
    e('s_mov_b32 s%d, 1' % sState)
    e('s_branch %s' % L(ret))
    lab('L_evB%s' % tag)
    e('s_mov_b64 %s, %s' % (sr(sKS, 2), sr(sKp, 2)))
    e('s_mov_b32 s%d, s%d' % (sKS+2, sD+6))
    e('s_mov_b32 s%d, s%d' % (sVS+2, sD+6))
    e('s_mov_b32 s%d, s%d' % (sKoff, sD+4))
    e('s_mov_b32 s%d, s%d' % (sVoff, sD+4))
    e('s_mov_b32 s%d, 0' % sEv)
    e('s_mov_b32 s%d, 2' % sState)
    e('s_branch %s' % L(ret))

def masks(p):
    mk = []
    for i in range(2):
        for r in range(4):
            mk.append('v_cmp_lt_i32 %s, %d, v%d' % (sr(sM[r], 2), 16*i+r, vX))
        for j in range(2):
            for r in range(4):
                x = vS[p]+8*j+4*i+r
                mk.append('v_cndmask_b32 v%d, v%d, v%d, %s' % (x, vY, x, sr(sM[r], 2)))
    return mk
def tail1(p, last):
    if last: lab('L_tailE%d' % p)
    else:
        lab('L_tail%d' % p)
        e('s_cmp_eq_u32 s%d, 0' % (sD+7))
        e('s_cbranch_scc1 %s' % L('L_tailE%d' % p))
    del dsq[:]
    if last and IDLE[0]:
        tickA()
        e('s_waitcnt vmcnt(6)')
        e('s_barrier')
        tickB()
        tflush()
        e('s_branch L_fin')
        return
    if last: e('s_xor_b32 s%d, s%d, 0x%x' % (sT1, sVrd[1-p], VX2))
    else: e(m0v(sVrd[1-p]))
    e('s_bfe_u32 s%d, s%d, 0x80008' % (sT0, sD+3))
    e('v_lshrrev_b32 v%d, 4, v%d' % (vX, vLane))
    e('v_lshlrev_b32 v%d, 2, v%d' % (vX, vX))
    e('v_sub_u32 v%d, s%d, v%d' % (vX, sT0, vX))
    e('v_mov_b32 v%d, 0xff800000' % vY)
    if last: e('v_add_u32 v%d, s%d, v%d' % (vAV2, sT1, vAVc))
    tickA()
    drain(vm=6 if last else 10)
    e('s_barrier')
    tickB()
    mk = masks(p)
    for g in range(4):
        e(VREADS[2*g]); e(VREADS[2*g+1])
        for x in mk[6*g:6*g+6]: e(x)
    N = [[] for _ in range(16)]
    G = [sm_slot(p, g) for g in range(16)]
    for g in range(8): N[g] += [VREADS[8+g]]
    if last:
        for g in range(8): N[8+g] += [vread(2*g, vK, vAV2, 'u'), vread(2*g+1, vK, vAV2, 'u')]
        nk = next_k(sX, sKrd[p])
        sl = [nk[0], nk[1],
              's_cmp_eq_u32 s%d, 1' % sW, 's_cselect_b32 s%d, s%d, s%d' % (sX, sKrd[p], sX),
              's_cmp_eq_u32 s%d, 0' % sW, 's_cselect_b32 s%d, s%d, s%d' % (sX, sKrd[1-p], sX),
              's_add_u32 s%d, s%d, %d' % (sX, sX, KEND),
              's_cmp_eq_u32 s%d, 3' % sW, 's_cselect_b32 s%d, s%d, s%d' % (sX, sVrd[1-p], sX),
              's_and_b32 s%d, s%d, 1' % (sT0, sW), 's_lshl_b32 s%d, s%d, 12' % (sT0, sT0), 's_sub_u32 s%d, s%d, s%d' % (sT0, sX, sT0)] + epi_soff()
        for g in range(9):
            N[g] += sl[:2]; del sl[:2]
        assert not sl
        ea = epi_addr()
        for g, x in zip((9, 11, 13, 15, 15), ea): G[g] += [x]
    else:
        N[8] += [dv(0)]
        N[9] += [xor_v(sVrd[1-p])]
        N[10] += ['s_sub_u32 s%d, s%d, %d' % (sX, sKrd[1-p], SLOT)]
        N[11] += ['s_cmp_lt_u32 s%d, 0x%x' % (sX, kb(0))]
        N[12] += ['s_cselect_b32 s%d, 0x%x, s%d' % (sX, kb(NK-1), sX)]
        N[13] += [dv(1)]
        N[14] += ['s_mov_b32 s%d, s%d' % (sVa, sVrd[p])]
        N[15] += [VADV]
        G[15] += [set_va(sVrd[1-p])]
    for g in range(16):
        if g % 2 == 0: need('v%d' % (g+1))
        e(pv(g, vP[1-p]))
        if last:
            for x in G[g][:1] + N[g] + G[g][1:]: e(x)
        else:
            for x in N[g] + G[g]: e(x)
    for x in sm_fin(p): e(x)
    for x in check_ops(p): e(x)
    if p == 0 and not last:
        e('s_mov_b32 s%d, s%d' % (sVrd[0], sVrd[1]))
    tflush()
    e('s_cmp_eq_u32 s%d, 0' % (sD+7))
    e('s_cbranch_vccnz L_fbT%d' % p)
    if last:
        lab('L_fbretE%d' % p)
        final(p)
    else:
        lab('L_fbretT%d' % p)
        trans(p)

def norm_stage(dt, off=0):
    ops = []
    for j in range(2):
        b = vO + 8*dt + 4*j
        for r in range(4): ops.append('v_mul_f32 v%d, v%d, v%d' % (b+r, b+r, vR[j]))
        if 'n' in PK:
            sel = 'op_sel:[0,1] op_sel_hi:[1,1]' if vR[j] % 2 else 'op_sel_hi:[1,0]'
            for r in (0, 2):
                ops[-4+r] = 'v_pk_mul_f32 %s, %s, %s %s' % (vr(b+r, 2), vr(b+r, 2), vr(vR[j] & ~1, 2), sel)
                ops[-3+r] = None
        ops.append('v_cvt_pk_bf16_f32 v%d, v%d, v%d' % (b, b, b+1))
        ops.append('v_cvt_pk_bf16_f32 v%d, v%d, v%d' % (b+1, b+2, b+3))
    a, b_ = ops[:6], ops[6:]
    seq = a[:4] + b_[:2] + a[4:] + b_[2:4]
    seq.append(('ds_write_b64 v%d, %s offset:%d' % (vW + dt % 4, vr(vO+8*dt, 2), off), 'w'))
    seq += b_[4:]
    seq.append(('ds_write_b64 v%d, %s offset:%d' % (vW + dt % 4, vr(vO+8*dt+4, 2), off + 2048), 'w'))
    return seq
def rdback(rho, off=0):
    ops = []
    for k in range(4):
        b = vO+32*rho+4*k
        if k % 2 == 0: ops.append(('ds_read_b128 %s, v%d offset:%d' % (vr(b, 4), vRD, off + 1024*k), 'r%d' % k))
        else:
            ops.append(('ds_read_b64 %s, v%d offset:%d' % (vr(b, 2), vRD, off + 1024*k + 8), 'r%d' % k))
            ops.append(('ds_read_b64 %s, v%d offset:%d' % (vr(b+2, 2), vRD, off + 1024*k), 'r%d' % k))
    return ops
SOFF = [sT1, sT2, sT3, sT4]
def store(rho, k):
    need('r%d' % k)
    e('buffer_store_dwordx4 %s, v%d, %s, s%d offen offset:%d%s' % (vr(vO+32*rho+4*k, 4), vST, sr(sOS, 4), SOFF[k], 128*rho, SF))
def epi_addr():
    return ['v_add_u32 v%d, s%d, v%d' % (vW, sT0, vWc),
            'v_add_u32 v%d, s%d, v%d' % (vRD, sT0, vRDc),
            'v_xor_b32 v%d, 32, v%d' % (vW+1, vW),
            'v_xor_b32 v%d, 64, v%d' % (vW+2, vW),
            'v_xor_b32 v%d, 96, v%d' % (vW+3, vW)]
def epi_soff():
    return ['s_add_u32 s%d, s%d, s%d' % (sT1, sWq, sD+1),
            's_mov_b32 s%d, s%d' % (sOS+2, sD+2),
            's_add_u32 s%d, s%d, %d' % (sT2, sT1, 8*4096),
            's_add_u32 s%d, s%d, %d' % (sT3, sT1, 16*4096),
            's_add_u32 s%d, s%d, %d' % (sT4, sT1, 24*4096)]
def rcps(p):
    return ['v_rcp_f32 v%d, v%d' % (vR[0], vL[p][0]), 'v_rcp_f32 v%d, v%d' % (vR[1], vL[p][1])]
def spread(main, extra):
    for i, x in enumerate(main):
        for y in extra.get(i, []):
            if callable(y): y()
            else: e(y)
        e(x)

def final(p):
    if PEPI is not None: e('s_setprio %d' % int(PEPI))
    stamp(5)
    a, b = vL[p]
    U = [(4*(q//2) + t, q % 2) for q in range(4) for t in range(4)]
    def M(g): return lambda: (need('u%d' % (2*U[g][0]+1)), e(pv(U[g], vP[p], A=vK)))
    head = [M(0), 'v_permlane32_swap_b32 v%d, v%d' % (a, b), 'v_add_f32 v%d, v%d, v%d' % (a, a, b), 'v_mov_b32 v%d, v%d' % (b, a),
            M(1), 's_nop 0', 'v_permlane16_swap_b32 v%d, v%d' % (a, b), 'v_add_f32 v%d, v%d, v%d' % (a, a, b), 'v_mov_b32 v%d, v%d' % (b, a),
            M(2), 's_nop 0', 'v_permlane32_swap_b32 v%d, v%d' % (a, b), rcps(p)[0], M(3), rcps(p)[1], M(4)]
    for x in head:
        if callable(x): x()
        else: e(x)
    tk()
    seq = []
    for (dt, j) in U:
        x = vO + 8*dt + 4*j
        u = ['v_mul_f32 v%d, v%d, v%d' % (x+r, x+r, vR[j]) for r in range(4)]
        u += ['v_cvt_pk_bf16_f32 v%d, v%d, v%d' % (x, x, x+1), 'v_cvt_pk_bf16_f32 v%d, v%d, v%d' % (x+1, x+2, x+3)]
        u += [('ds_write_b64 v%d, %s offset:%d' % (vW + dt % 4, vr(x, 2), 4096*(dt//4) + 2048*j), 'w')]
        seq += u
    def rd(q):
        rho, j = q//2, q % 2; off = 4096*rho + 2048*j; x = vS[0] + 8*q
        return [('ds_read_b128 %s, v%d offset:%d' % (vr(x, 4), vRD, off), 'r%d' % (2*q)),
                ('ds_read_b64 %s, v%d offset:%d' % (vr(x+4, 2), vRD, off + 1024 + 8), 'r%d' % (2*q+1)),
                ('ds_read_b64 %s, v%d offset:%d' % (vr(x+6, 2), vRD, off + 1024), 'r%d' % (2*q+1))]
    def st(k):
        q = k//2; rho, j = q//2, q % 2
        def f():
            need('r%d' % k)
            e('buffer_store_dwordx4 %s, v%d, %s, s%d offen offset:%d%s' % (vr(vS[0]+4*k, 4), vST, sr(sOS, 4), SOFF[2*j + k % 2], 128*rho, SF))
        return f
    ex_ = {}
    for g in range(5, 16): ex_.setdefault(4*(g-5) + 3, []).append(M(g))
    for q in range(3):
        ex_.setdefault(28*(q+1), []).extend(rd(q))
        ex_.setdefault(28*(q+1) + 18, []).append(st(2*q))
        ex_.setdefault(28*(q+1) + 24, []).append(st(2*q+1))
    spread(seq, ex_)
    tk()
    for x in rd(3): e(x)
    st(6)(); st(7)()
    tk(); tk()
    tflush()
    tkflush()
    e('s_branch L_fin')
def trans(p):
    lab('L_trans%d' % p)
    del dsq[:]
    if PTR is not None: e('s_setprio %d' % int(PTR))
    e('s_lshr_b32 s%d, s%d, 22' % (sK1, sD+7))
    e('s_add_u32 s%d, s%d, s%d' % (sK1, sK1, sW))
    e('s_and_b32 s%d, s%d, 3' % (sK1, sK1))
    if IDLE[0]:
        e('s_lshl_b32 s%d, s%d, 17' % (sT0, sK1))
        e('s_add_u32 s%d, s%d, s%d' % (sT0, sT0, sD+5))
        e('s_cmp_ge_u32 s%d, s%d' % (sT0, sD+6))
        e('s_cbranch_scc0 L_trans%d' % p)
    e('s_add_u32 s%d, s%d, 1' % (sT0, sK1))
    e('s_mul_i32 s%d, s%d, %d' % (sT0, sT0, SLOT))
    e('s_add_u32 s%d, s%d, s%d' % (sT0, sT0, sX))
    e('s_cselect_b32 s%d, 0x%x, 0' % (sT1, kb(0)))
    e('s_add_u32 s%d, s%d, s%d' % (sT0, sT0, sT1))
    e(set_ka(sT0))
    e('s_cmp_ge_u32 s%d, 2' % sW)
    e('s_cselect_b32 s%d, s%d, s%d' % (sT0, sVrd[0], sVa))
    tickA()
    e('s_waitcnt vmcnt(6)')
    e('s_barrier')
    tickB()
    stamp(3)
    qr = [kread(f, tag='q') for f in KORD]
    fill = VREADS[:6] + qr[:2] + VREADS[6:] + qr[2:]
    for _ in range(6): e(fill.pop(0))
    emit_fill(xlane('v_add_f32', vL[p][0], vL[p][1])[1:], fill)
    tk()
    ps = prescale_ops()
    nm = ['v_mov_b32 v%d, 0' % (vNM+r) for r in range(8)]
    pre = {0: rcps(p) + nm[:2], 1: epi_addr()[:3] + nm[2:4], 2: epi_addr()[3:] + nm[4:]}
    so = epi_soff() + ['s_lshl_b32 s%d, s%d, 17' % (sWq, sK1)] + next_k(sKrd[0], sX)
    for g in range(8):
        if g % 2 == 0: need('v%d' % (g+1))
        e(pv(g, vP[p]))
        for x in fill[:2]: e(x)
        del fill[:2]
        if g < 3:
            for x in pre[g]: e(x)
        else:
            if g == 3: need('q0')
            if g == 4: e(set_ka(sX))
            if g == 6: need('q4')
            for x in so[:2]: e(x)
            del so[:2]
            for x in ps[:6]: e(x)
            del ps[:6]
    assert not fill and not so
    e(m0k(sKrd[0]))
    for x in ps[:10]: e(x)
    del ps[:10]
    tk()
    drain(vm=2)
    e('s_barrier')
    tk()
    nk = next_k(sKrd[0], sKrd[0])
    N = {8: [dk(0)], 10: [dk(1)], 11: [KADV] + nk + [m0k(sKrd[0])], 12: [dk(0)], 14: [dk(1)], 15: [KADV] + nk + [m0k(sKrd[0])]}
    for g in range(8, 16):
        e(pv(g, vP[p]))
        for x in N.get(g, []): e(x)
        ns = norm_stage((g-8)//2)
        for x in (ns[:7] if g % 2 == 0 else ns[7:]): e(x)
    tk()
    for x in rdback(0): e(x)
    for f in KORD: e(kread(f, vV))
    ns = norm_stage(4) + norm_stage(5) + norm_stage(6) + norm_stage(7)
    spread(ns, {10: [lambda: store(0, 0)], 22: [lambda: store(0, 1)], 34: [lambda: store(0, 2)], 46: [lambda: store(0, 3)]})
    tk()
    for x in rdback(1): e(x)
    qk0_with_prescale(ps, {0: [dk(0)], 2: [dk(1)], 3: [KADV] + nk + [m0k(sKrd[0])],
                           4: [lambda: store(1, 0)], 6: [lambda: store(1, 1)], 8: [lambda: store(1, 2)], 10: [lambda: store(1, 3)],
                           12: [dk(0), 's_mov_b64 %s, %s' % (sr(sD, 2), sr(sD+4, 2)), 's_mov_b64 %s, %s' % (sr(sD+2, 2), sr(sD+6, 2))],
                           13: ['s_mov_b64 %s, 0' % sr(sD+4, 2), 's_mov_b64 %s, 0' % sr(sD+6, 2), 's_mov_b32 s%d, 0' % sFirst],
                           15: [dk(1), KADV]})
    tk(); tk()
    tflush()
    tkflush()
    stamp(4)
    tickA()
    e('s_waitcnt vmcnt(12)')
    e('s_branch L_pre0')

def mainloop():
    step0()
    body(1, 'F', '0', first=True)
    body(0, '0', '1')
    body(1, '1', '0', loop=True)
    handler('0', 0, 'L_ret0')
    handler('1', 1, 'L_ret1')
    handler('F', None, 'L_retFx')
    handler('S', None, 'L_retSx')
mainloop()
for p in (0, 1):
    tail1(p, False)
    tail1(p, True)
if not NOIDLE:
    IDLE[0] = True
    mainloop()
    for p in (0, 1):
        tail1(p, False)
        tail1(p, True)
    lab('L_p1')
    del dsq[:]
    p1()
    e('s_branch L_pre0')
    IDLE[0] = False
for tag, p in (('F', 1), ('0', 0), ('1', 1)):
    lab('L_fb%s' % tag)
    fallback(p, 'L_fbret%s' % tag)
for p in (0, 1):
    lab('L_fbT%d' % p)
    fallback(p, 'L_fbretT%d' % p, has_next=False, ret2='L_fbretE%d' % p)
lab('L_fbS')
fallback(0, 'L_fbretS', first=True)

lab('L_fin')
if REP:
    e('s_waitcnt vmcnt(0) lgkmcnt(0)')
    e('s_barrier')
    e('s_sub_u32 s79, s79, 1')
    e('s_cbranch_scc0 L_again')
if STAMP:
    stamp(6)
    e('s_waitcnt vmcnt(0)')
    stamp(7)
if PROF:
    e('s_waitcnt vmcnt(0)')
    e('s_memtime s[68:69]')
    e('s_memrealtime s[72:73]')
    e('s_waitcnt lgkmcnt(0)')
    e('v_writelane_b32 v253, s76, 62')
    e('v_writelane_b32 v254, s74, 62')
    e('v_writelane_b32 v253, s68, 63')
    e('v_writelane_b32 v254, s72, 63')
    e('v_writelane_b32 v253, s71, 61')
    e('s_and_b32 s65, s65, 0xffff')
    e('s_mov_b32 s66, 0x1000000')
    e('s_mov_b32 s67, 0x20000')
    e('s_lshl_b32 s70, s2, 2')
    e('s_add_u32 s70, s70, s%d' % sW)
    e('s_lshl_b32 s70, s70, 9')
    e('v_lshlrev_b32 v252, 2, v%d' % vLane)
    e('s_nop 4')
    e('buffer_store_dword v253, v252, s[64:67], s70 offen')
    e('buffer_store_dword v254, v252, s[64:67], s70 offen offset:256')
lab('L_end')
e('s_endpgm')
out.append('.p2align 6')
out.append('.type L_table,@object')
lab('L_table')
for row in table:
    out.append('    .long ' + ', '.join('0x%08x' % x for x in row))
out.append('.size L_table, %d' % (32*NWG))
out.append('''.section .rodata,"a"
.p2align 6
.amdhsa_kernel %s_kernel
  .amdhsa_next_free_vgpr %d
  .amdhsa_next_free_sgpr %d
  .amdhsa_accum_offset %d
  .amdhsa_group_segment_fixed_size 0
  .amdhsa_kernarg_size 56
  .amdhsa_user_sgpr_count 2
  .amdhsa_user_sgpr_kernarg_segment_ptr 1
  .amdhsa_system_sgpr_workgroup_id_x 1
.end_amdhsa_kernel''' % (NAME, NVGPR, NSGPR, NVGPR))
dst = [a for a in sys.argv[1:] if not a.startswith('--')]
open(dst[0] if dst else 'cdna_kernels/%s.s' % NAME, 'w').write('\n'.join(out) + '\n')
```

```python
import sys, math, struct, json
CU = [0, 321, 555, 878, 1299, 1551, 1670, 1878, 2181, 2351, 2646, 2810, 3248, 3471, 3811, 4169, 4391]
NAME = "standalone__varlen_attn_packed__ragged"
HEADER = open('cdna_kernels/%s.s.ref' % NAME).read().split('; Override launch')[0]

def opt(name, default=None):
    for a in sys.argv[1:]:
        if a.startswith('--%s=' % name): return a.split('=', 1)[1]
    return default
def flag(name): return ('--' + name) in sys.argv
STAMP = flag('stamp'); PROF = flag('prof'); CLK = flag('clk'); FINE = flag('fine')
QF = opt('qf', 'nt'); KF = opt('kf', 'nt'); SF = opt('sf', '')
QF = (' ' + QF.replace('+', ' ')) if QF else ''
KF = (' ' + KF.replace('+', ' ')) if KF else ''
SF = (' ' + SF.replace('+', ' ')) if SF else ''
THRLOG = int(opt('thr', 14))
LOWLOG = int(opt('low', 40))
SCHED = opt('sched', 'a')
CLS = opt('cls', '01')
PRI = opt('pri', '00')
PPRO = opt('ppro', None)
PEPI = opt('pepi', None)
PTR = opt('ptr', None)
USEPRI = PPRO is not None or PEPI is not None or PTR is not None
NOIDLE = flag('noidle')
XL = opt('xl', '')
BW = dict((int(a), int(b)) for a, b in (x.split(':') for x in opt('bw', '4:2').split(',') if x))
WMD = int(opt('wmd', '10'))
K1LATE = flag('k1late')
PK = opt('pk', '')

out = []
IDLE = [False]
INLOOP = [False]
dsq = []
def e(s, tag=None):
    if s is None: return
    if isinstance(s, tuple): s, tag = s
    if INLOOP[0] and XL:
        if 'd' in XL and s.startswith('buffer_load'): return
        if 'v' in XL and s.startswith('ds_read_b64'): return
        if 'k' in XL and s.startswith('ds_read_b128'): return
        if 'e' in XL and s.startswith('v_exp'): return
        if 'a' in XL and s.startswith('v_add_f32'): return
        if 'c' in XL and s.startswith('v_cvt'): return
        if 'b' in XL and s.startswith('s_barrier'): return
        if 'h' in XL and (s.startswith('v_max_f32') or s.startswith('v_cmp_lt_f32') or s.startswith('s_cbranch_vccnz')): return
    if s.startswith('ds_'): dsq.append(tag)
    if IDLE[0]:
        if s.startswith('ds_') or s.startswith('s_nop'): return
        if s.startswith('v_') and not s.startswith('v_add_u32') and not s.startswith('v_writelane') and not s.startswith('v_mov_b32 v25'): return
        if s.startswith('s_waitcnt lgkmcnt') and not (PROF or STAMP): return
        if s.startswith('s_cbranch_vccnz'): return
        if s.startswith('s_add_u32 m0'):
            out.append('    ' + s); s = 's_nop 0'
    out.append('    ' + s)
def need(*tags, vm=None):
    last = -1
    for t in tags:
        idx = [i for i, x in enumerate(dsq) if x == t]
        if idx: last = max(last, idx[-1])
    if last < 0:
        if vm is not None: e('s_waitcnt vmcnt(%d)' % vm)
        return
    n = min(15, len(dsq) - 1 - last)
    e('s_waitcnt %slgkmcnt(%d)' % ('vmcnt(%d) ' % vm if vm is not None else '', n))
    del dsq[:len(dsq) - n]
def drain(vm=None):
    e('s_waitcnt %slgkmcnt(0)' % ('vmcnt(%d) ' % vm if vm is not None else ''))
    del dsq[:]
def lab(s): out.append(s + ('I' if IDLE[0] else '') + ':')
def L(s): return s + ('I' if IDLE[0] else '')

NB = [(CU[s+1]-CU[s]+31)//32 for s in range(16)]
def make_schedule():
    byn = {}
    for s in range(16):
        for hs in range(2):
            for g in range((NB[s]+3)//4):
                byn.setdefault(NB[s], []).append((s, hs, g))
    def take(n): return byn[n].pop(0)
    plan = ([([14], [12])]*6 + [([14], [14])]*2 + [([14], [11])]*6 + [([7, 7], [11])]*6 + [([8, 6], [11])]*6
            + [([10, 4], [10])]*2 + [([10, 6], [10])]*2 + [([10, 8], [10])]*2)
    res = [[[None]*len(a), [None]*len(b)] for a, b in plan]
    for lane in (0, 1):
        for i, p in enumerate(plan):
            res[i][lane][0] = take(p[lane][0])
    for lane in (0, 1):
        for i, p in enumerate(plan):
            if len(p[lane]) > 1: res[i][lane][1] = take(p[lane][1])
    assert all(len(v) == 0 for v in byn.values())
    return [[dict(tasks=res[i][l], cls=int(CLS[l]), pri=int(PRI[l])) for l in (0, 1)] for i in range(32)]
if SCHED.endswith('.json'):
    sched = json.load(open(SCHED))
else:
    base = make_schedule()
    sched = [[[dict(tasks=[[s, ((x+s) & 7) + 8*hs, gq, 0] for (s, hs, gq) in ln['tasks']], cls=ln['cls'], pri=ln['pri']) for ln in cu] for cu in base] for x in range(8)]
seen = set()
for xs in sched:
    for cu in xs:
        for ln in cu:
            for t in ln['tasks']:
                assert tuple(t[:3]) not in seen and t[2] < (NB[t[0]]+3)//4; seen.add(tuple(t[:3]))
assert len(seen) == 82*8
NWG = 512
def desc(t, extra=0):
    if t is None: return [0, 0, 0, 0]
    s, head, g, rot = t[:4]
    Ls = CU[s+1]-CU[s]; n = NB[s]
    if len(t) > 4 and flag('fakeh'):
        return [CU[s]*4096 + head*256, (CU[s+1]-128)*4096 + head*256, CU[s+1]*4096, {14: 8, 10: 6, 6: 3}[n] | ((Ls-32*(n-1)) << 8) | extra]
    return [CU[s]*4096 + head*256, (CU[s]+128*g)*4096 + head*256, CU[s+1]*4096, n | ((Ls-32*(n-1)) << 8) | (rot << 22) | extra]
table = []
for wg in range(NWG):
    xcd = wg & 7; j = wg >> 3
    ln = sched[xcd][j % 32][j // 32]
    tk_ = ln['tasks']
    assert len(tk_) == 1 or NB[tk_[0][0]] >= 6
    pk_, pv_ = ln.get('pe', (0, 0))
    assert 0 <= pk_ <= min(15, NB[tk_[-1][0]] - 2)
    pe = (pk_ << 16) | (pv_ << 30)
    x0 = (ln.get('wm', WMD if ln['cls'] else 0) << 24) | (ln['pri'] << 20)
    table.append(desc(tk_[0], x0 | pe) + desc(None) if len(tk_) == 1 else desc(tk_[0], x0) + desc(tk_[1], pe))
if flag('kvsame'):
    for wg, row in enumerate(table):
        row[0] = (wg & 7)*256
        if row[7]: row[4] = (wg & 7)*256
if flag('qsame'):
    for wg, row in enumerate(table):
        if wg >= 256: row[1] = table[wg-256][1]; row[2] = max(row[2], table[wg-256][2])
PF = opt('pf', None)
PFG = int(opt('pfg', 64))
PFB = flag('pfb')
PFN = int(opt('pfn', 1))
NT = 2*PFN if PF else 0
ROW = 64 if PF else 32
if PF:
    k0_, k1_, v0_, v1_ = [int(x) for x in PF.split(':')]
    upt = 128//PFG if PFG <= 128 else 1
    ext = [[0xff]*(8*PFN) for _ in range(NWG)]
    grp = {}
    for wg in range(NWG):
        t = sched[wg & 7][(wg >> 3) % 32][wg >> 8]['tasks'][0]
        if wg >= 256 and not PFB: continue
        grp.setdefault((wg & 7, wg >> 8, t[0], t[1]), []).append(wg)
    for key, ws in grp.items():
        n = NB[key[2]]
        if key[1] == 1 and (key[0], 0, key[2], key[3]) in grp: continue
        for b, (a0, a1) in enumerate(((k0_, k1_), (v0_, v1_))):
            units = [u for u in range(a0*upt, min(a1, n)*upt)]
            slots = [(r, w, wg) for r in range(PFN) for w in range(4) for wg in (ws if b == 0 else ws[::-1])]
            for u, (r, w, wg) in zip(units, slots): ext[wg][(2*r+b)*4 + w] = u
    for wg in range(NWG):
        x = ext[wg]
        table[wg] = table[wg] + [x[4*i] | x[4*i+1] << 8 | x[4*i+2] << 16 | x[4*i+3] << 24 for i in range(2*PFN)] + [0]*(8-2*PFN)
PEV = any((row[3] | row[7]) & 0xf0000 for row in table)
FIXN = int(opt('fixn', 0))
if FIXN:
    NWG = int(opt('nwg', 512))
    table = []
    for wg in range(NWG):
        xcd = wg & 7; j = wg >> 3
        head = xcd + 8*(j & 1)
        r0 = ((j >> 1) % 2) * 2048
        table.append([r0*4096 + head*256, (128*(j >> 1))*4096 + head*256, 4391*4096, (FIXN if xcd < 4 else int(opt('fixhi', FIXN))) | (32 << 8) | ((WMD*(j//32)) << 24), 0, 0, 0, 0])

PS = 1056
SLOT = 8*PS
NK, NV = 5, 4
KBASE = NV*SLOT
KEND = KBASE + NK*SLOT
LDS = KEND
VX2 = 2*SLOT
assert (SLOT & VX2) == 0
BLK = 32*4096
def kb(i): return (KBASE + i*SLOT - KEND) & 0xffffffff

sQp, sKp, sVp, sOp = 4, 6, 8, 10
sD = 12
sKS, sVS, sOS = 20, 24, 28
sW = 32
sKoff, sVoff = 33, 34
sKrd = [35, 36]; sVrd = [37, 38]
sWc, sWcK = 39, 40
sEv, sState = 41, 42
sX, sVa = 43, 44
sT0, sT1, sT2, sT3 = 45, 46, 47, 48
sPri = 49
sC = 50
sK1 = 51
sThr = 52
sT4 = 53
sM = [54, 56, 58, 60]
sFirst = 62
sWq = 3
sLow = 63
NSGPR = 100 if FINE else 80

vG0, vG1 = 1, 2
vAKc, vAVc, vAK, vAV = 3, 4, 5, 6
vWc, vRDc, vST = 7, 8, 9
vLane = 10
vX, vY, vZ = 11, 12, 13
vX2, vY2 = 14, 15
vQ = 16
vO = 48
vS = [112, 128]
vP = [144, 152]
vK = 160
vV = 192
vNM = 224
vL = [[232, 233], [234, 235]]
vT = [236, 237, 238, 239]
vW = 240
vRD = 244
vR = [245, 246]
vAV2 = 247
NVGPR = 256 if (STAMP or PROF or 'm' in XL) else 248

def vr(b, n): return 'v[%d:%d]' % (b, b+n-1)
def sr(b, n): return 's[%d:%d]' % (b, b+n-1)
CC = 128 ** -0.5 * math.log2(math.e)
def f2u(x): return struct.unpack('<I', struct.pack('<f', x))[0]

def dk(which):
    if which == 0: return 'buffer_load_dwordx4 v%d, %s, s%d offen%s lds' % (vG0, sr(sKS, 4), sKoff, KF)
    return 'buffer_load_dwordx4 v%d, %s, s%d offen offset:%d%s lds' % (vG1, sr(sKS, 4), sKoff, PS, KF)
def dv(which):
    if which == 0: return 'buffer_load_dwordx4 v%d, %s, s%d offen%s lds' % (vG0, sr(sVS, 4), sVoff, KF)
    return 'buffer_load_dwordx4 v%d, %s, s%d offen offset:%d%s lds' % (vG1, sr(sVS, 4), sVoff, PS, KF)
def m0imm(addr): return 's_add_u32 m0, s%d, %d' % (sWc, addr)
def m0v(s): return 's_add_u32 m0, s%d, s%d' % (sWc, s)
def m0k(s): return 's_add_u32 m0, s%d, s%d' % (sWcK, s)
KADV = 's_add_u32 s%d, s%d, %d' % (sKoff, sKoff, BLK)
VADV = 's_add_u32 s%d, s%d, %d' % (sVoff, sVoff, BLK)
def next_k(dst, src):
    return ['s_add_u32 s%d, s%d, %d' % (dst, src, SLOT),
            's_cselect_b32 s%d, 0x%x, s%d' % (dst, kb(0), dst)]
def next_v(dst, src):
    return ['s_add_u32 s%d, s%d, %d' % (dst, src, SLOT),
            's_cmp_ge_u32 s%d, %d' % (dst, NV*SLOT),
            's_cselect_b32 s%d, 0, s%d' % (dst, dst)]
def xor_v(s): return 's_xor_b32 s%d, s%d, 0x%x' % (s, s, VX2)
def set_ka(s): return 'v_add_u32 v%d, s%d, v%d' % (vAK, s, vAKc)
def set_va(s): return 'v_add_u32 v%d, s%d, v%d' % (vAV, s, vAVc)
def kread(f, dst=vK, tag='k'):
    return ('ds_read_b128 %s, v%d offset:%d' % (vr(dst+4*f, 4), vAK, 512*(f//4) + 64*(f % 4)), '%s%d' % (tag, f))
KORD = [0, 4, 1, 5, 2, 6, 3, 7]
def vread(k, dst=vV, adr=vAV, tag='v'):
    dt, h = k//2, k % 2
    return ('ds_read_b64_tr_b16 %s, v%d offset:%d' % (vr(dst+4*dt+2*h, 2), adr, 32*dt + 512*h), '%s%d' % (tag, k))
VREADS = [vread(k) for k in range(16)]
IJ = [(0, 0), (0, 1), (1, 1), (1, 0)]
def qk(idx, S, A=vK, B=vQ):
    ks = idx//4; i, j = IJ[idx % 4]
    D = S + 8*j + 4*i
    c = vr(D, 4) if ks else vr(vNM+4*j, 4)
    return 'v_mfma_f32_16x16x32_bf16 %s, %s, %s, %s' % (vr(D, 4), vr(A+4*(4*i+ks), 4), vr(B+4*(4*j+ks), 4), c)
def qk_frag(idx): return 4*IJ[idx % 4][0] + idx//4
def pv(idx, P, zero=False, A=vV):
    if isinstance(idx, tuple): dt, j = idx
    else: dt = idx//2; j = (idx % 2) ^ (dt & 1)
    D = vO + 8*dt + 4*j
    return 'v_mfma_f32_16x16x32_bf16 %s, %s, %s, %s' % (vr(D, 4), vr(A+4*dt, 4), vr(P+4*j, 4), '0' if zero else vr(D, 4))
def ex(p, x): return 'v_exp_f32 v%d, v%d' % (vT[x % 4], vS[p]+x)
def ad(p, x, first=False):
    j = x//8
    if x % 8 == 0:
        if first: return 'v_mov_b32 v%d, v%d' % (vL[p][j], vT[x % 4])
        return 'v_add_f32 v%d, v%d, v%d' % (vL[p][j], vL[1-p][j], vT[x % 4])
    return 'v_add_f32 v%d, v%d, v%d' % (vL[p][j], vL[p][j], vT[x % 4])
def cv(p, k): return 'v_cvt_pk_bf16_f32 v%d, v%d, v%d' % (vP[p]+k, vT[(2*k) % 4], vT[(2*k+1) % 4])
def sm_slot(p, x, first=False):
    ops = [ex(p, x)]
    if x >= 1: ops.append(ad(p, x-1, first))
    if x >= 2 and x % 2 == 0: ops.append(cv(p, (x-2)//2))
    return ops
def sm_fin(p): return [ad(p, 15), cv(p, 7)]
def check_ops(p):
    return ['v_max_f32 v%d, v%d, v%d' % (vX, vL[p][0], vL[p][1]),
            'v_cmp_lt_f32 vcc, s%d, v%d' % (sThr, vX)]
def max8(S, a, b):
    return ['v_max3_f32 v%d, v%d, v%d, v%d' % (a, S, S+1, S+2),
            'v_max3_f32 v%d, v%d, v%d, v%d' % (b, S+8, S+9, S+10),
            'v_max3_f32 v%d, v%d, v%d, v%d' % (a, a, S+3, S+4),
            'v_max3_f32 v%d, v%d, v%d, v%d' % (b, b, S+11, S+12),
            'v_max3_f32 v%d, v%d, v%d, v%d' % (a, a, S+5, S+6),
            'v_max3_f32 v%d, v%d, v%d, v%d' % (b, b, S+13, S+14),
            'v_max_f32 v%d, v%d, v%d' % (a, a, S+7),
            'v_max_f32 v%d, v%d, v%d' % (b, b, S+15)]
def xlane(op, a, b):
    return [None,
            'v_permlane32_swap_b32 v%d, v%d' % (a, b), None,
            '%s v%d, v%d, v%d' % (op, a, a, b),
            'v_mov_b32 v%d, v%d' % (b, a), None,
            'v_permlane16_swap_b32 v%d, v%d' % (a, b), None,
            '%s v%d, v%d, v%d' % (op, a, a, b),
            'v_mov_b32 v%d, v%d' % (b, a), None,
            'v_permlane32_swap_b32 v%d, v%d' % (a, b), None]
def emit_fill(seq, fill):
    for x in seq:
        if x is None:
            if len(fill) >= 2: e(fill.pop(0)); e(fill.pop(0))
            else: e('s_nop 1')
        else: e(x)
def prescale_ops():
    seq = []
    n = 0
    for f in KORD:
        for h in range(2):
            ops = []
            for i in (4*f+2*h, 4*f+2*h+1):
                t = vS[1] + 2*(n % 8); n += 1
                ops.append(['v_lshlrev_b32 v%d, 16, v%d' % (t, vK+i),
                            'v_and_b32 v%d, 0xffff0000, v%d' % (t+1, vK+i),
                            'v_mul_f32 v%d, s%d, v%d' % (t, sC, t),
                            'v_mul_f32 v%d, s%d, v%d' % (t+1, sC, t+1),
                            'v_cvt_pk_bf16_f32 v%d, v%d, v%d' % (vQ+i, t, t+1)])
            a, b = ops
            if 'p' in PK:
                for o in (a, b):
                    t = int(o[2].split()[1][1:-1])
                    o[2] = 'v_pk_mul_f32 %s, %s, %s op_sel_hi:[1,0]' % (vr(t, 2), vr(t, 2), sr(sC, 2)); o[3] = None
            seq += [a[0], a[1], b[0], b[1], a[2], a[3], b[2], b[3], a[4], b[4]]
    return seq

def stamp(slot):
    if not STAMP: return
    e('s_memrealtime s[68:69]')
    drain()
    e('v_mov_b32 v250, s68')
    e('v_mov_b32 v251, s69')
    e('v_mov_b32 v252, s70')
    e('s_mov_b64 s[72:73], exec')
    e('s_mov_b64 exec, 1')
    e('buffer_store_dwordx2 v[250:251], v252, s[64:67], 0 offen offset:%d' % (slot*8))
    e('s_mov_b64 exec, s[72:73]')
    e('s_nop 3')
def tickA():
    if PROF: e('s_memtime s[68:69]')
    if PROF and CLK: e('s_memrealtime s[72:73]')
def tickB():
    if PROF and not CLK: e('s_memtime s[72:73]')
def tflush():
    if not PROF: return
    drain()
    e('s_mov_b32 m0, s71')
    e('s_add_u32 s71, s71, 1')
    e('v_writelane_b32 v253, s68, m0')
    e('v_writelane_b32 v254, s72, m0')
_tk = [0]
def tk():
    if FINE:
        e('s_memtime s[%d:%d]' % (80+2*_tk[0], 81+2*_tk[0])); _tk[0] += 1
def tkflush():
    if not FINE: return
    drain()
    n = _tk[0]
    for i in range(0, n, 2):
        e('s_mov_b32 m0, s71')
        e('s_add_u32 s71, s71, 1')
        e('v_writelane_b32 v253, s%d, m0' % (80+2*i))
        e('v_writelane_b32 v254, s%d, m0' % (80+2*min(i+1, n-1)))
    _tk[0] = 0
_pn = [0]
def prio_loop():
    _pn[0] += 1
    e('s_cmp_eq_u32 s%d, 0' % sPri)
    if USEPRI: e('s_setprio 1')
    e('s_cbranch_scc1 L_pr%d' % _pn[0])
    e('s_setprio %d' % (2 if USEPRI else 1))
    out.append('L_pr%d:' % _pn[0])

out.append(HEADER.rstrip())
out.append('; @launch grid=(%d,1,1) block=(256,1,1) lds=%d' % (NWG, LDS))
out.append('.amdgcn_target "amdgcn-amd-amdhsa--gfx950"')
out.append('.text')
out.append('.globl %s_kernel' % NAME)
out.append('.p2align 8')
out.append('.type %s_kernel,@function' % NAME)
lab('%s_kernel' % NAME)
e('s_cmp_ge_u32 s2, %d' % NWG)
e('s_cbranch_scc1 L_end')
REP = int(opt('rep', 0))
if REP:
    e('s_mov_b32 s79, %d' % REP)
    lab('L_again')
e('s_getpc_b64 s[46:47]')
lab('L_pc')
e('s_load_dwordx4 s[4:7], s[0:1], 0')
e('s_lshl_b32 s3, s2, %d' % (6 if PF else 5))
e('s_add_u32 s3, s3, L_table-L_pc')
e('s_add_u32 s46, s46, s3')
e('s_addc_u32 s47, s47, 0')
e('s_load_dwordx8 s[12:19], s[46:47], 0')
if PF: e('s_load_dwordx%d s[56:%d], s[46:47], 32' % (2*PFN, 55+2*PFN))
e('s_load_dwordx2 s[8:9], s[0:1], 16')
e('s_load_dwordx2 s[10:11], s[0:1], 32')
if STAMP or PROF:
    e('s_load_dwordx2 s[64:65], s[0:1], 48')
    e('s_memrealtime s[74:75]')
if PROF:
    e('s_memtime s[76:77]')
    e('s_mov_b32 s71, 0')
e('v_and_b32 v%d, 63, v0' % vLane)
e('v_lshrrev_b32 v%d, 6, v0' % vX)
e('v_lshrrev_b32 v%d, 4, v%d' % (vY, vLane))
e('v_readfirstlane_b32 s%d, v%d' % (sW, vX))
e('v_and_b32 v%d, 15, v%d' % (vZ, vLane))
e('v_lshlrev_b32 v%d, 4, v%d' % (vG0, vZ))
e('v_lshl_add_u32 v%d, v%d, 15, v%d' % (vT[0], vY, vG0))
e('s_lshl_b32 s%d, s%d, 13' % (sT0, sW))
e('v_add_u32 v%d, s%d, v%d' % (vG0, sT0, vT[0]))
e('v_add_u32 v%d, %d, v%d' % (vG1, 4096-PS, vG0))
e('s_mul_i32 s%d, s%d, %d' % (sWc, sW, 2*PS))
e('s_add_u32 s%d, s%d, %d' % (sWcK, sWc, KEND))
e('s_add_u32 s%d, s%d, 7' % (sX, sW))
e('s_cmp_ge_u32 s%d, 2' % sW)
e('s_cselect_b32 s%d, s%d, s%d' % (sX, sW, sX))
e('s_mul_i32 s%d, s%d, %d' % (sX, sX, SLOT))
e('s_mov_b32 s%d, 0x20000' % (sKS+3))
e('s_mov_b32 s%d, 0x20000' % (sVS+3))
e('s_mov_b32 s%d, 0x20000' % (sOS+3))
e('s_waitcnt lgkmcnt(0)')
e('s_and_b32 s%d, s%d, 0xffff' % (sKp+1, sKp+1))
e('s_mov_b64 %s, %s' % (sr(sKS, 2), sr(sKp, 2)))
e('s_mov_b32 s%d, s%d' % (sKS+2, sD+2))
e('s_mov_b32 s%d, s%d' % (sKoff, sD))
e('s_and_b32 s%d, s%d, 0xffff' % (sQp+1, sQp+1))
TOUCH = int(opt('touch', 0)); TST = int(opt('tst', 20))
def touch():
    e('s_mov_b32 s56, s%d' % sOp)
    e('s_and_b32 s57, s%d, 0xffff' % (sOp+1))
    e('s_mov_b32 s58, %d' % (4391*4096))
    e('s_mov_b32 s59, 0x20000')
    e('v_lshlrev_b32 v%d, %d, v%d' % (vX2, TST, vLane))
    e('v_min_u32 v%d, %d, v%d' % (vX2, 4391*4096-4, vX2))
    e('buffer_load_dword v%d, v%d, s[56:59], 0 offen' % (vY2, vX2))
def ldseq(waits):
    cnt = [0]
    def ld(s):
        e(s); cnt[0] += 1
        if cnt[0] % 2 == 0 and cnt[0] <= 12 and (WMUSE >> (cnt[0]//2-1)) & 1:
            e('s_bitcmp1_b32 s%d, %d' % (sD+3, 23 + cnt[0]//2))
            e('s_cbranch_scc0 L_lw%d' % cnt[0])
            e('s_waitcnt vmcnt(0)')
            if TOUCH == cnt[0]: touch()
            lab('L_lw%d' % cnt[0])
    if TOUCH == 1:
        e('s_bitcmp1_b32 s%d, 25' % (sD+3))
        e('s_cbranch_scc0 L_lw1')
        touch()
        lab('L_lw1')
    e(m0imm(KBASE)); e('s_mov_b64 %s, %s' % (sr(sOS, 2), sr(sQp, 2))); ld(dk(0))
    e('s_mov_b32 s%d, s%d' % (sOS+2, sD+2))
    e('s_lshr_b32 s%d, s%d, 22' % (sWq, sD+3))
    ld(dk(1)); e(KADV)
    def k1():
        e(m0imm(KBASE+SLOT)); e('s_mov_b32 s%d, s%d' % (sVS, sVp)); ld(dk(0))
        e('s_and_b32 s%d, s%d, 0xffff' % (sVS+1, sVp+1))
        ld(dk(1)); e(KADV)
    if not K1LATE: k1()
    e('s_add_u32 s%d, s%d, s%d' % (sWq, sWq, sW))
    e('s_and_b32 s%d, s%d, 3' % (sWq, sWq))
    e('s_lshl_b32 s%d, s%d, 17' % (sWq, sWq))
    e('s_add_u32 s%d, s%d, s%d' % (sT1, sD+1, sWq))
    e('s_mov_b32 s%d, s%d' % (sVS+2, sD+2))
    e('s_mov_b32 s%d, s%d' % (sVoff, sD))
    for j in range(8):
        e('s_add_u32 m0, s%d, %d' % (sX, j*PS))
        if j: e('s_add_u32 s%d, s%d, 4096' % (sT1, sT1))
        else: e('s_nop 0')
        ld('buffer_load_dwordx4 v%d, %s, s%d offen%s lds' % (vT[0], sr(sOS, 4), sT1, QF))
    if K1LATE: k1()
    e(m0imm(0)); e('s_sub_u32 s%d, s%d, %d' % (sX, sX, KEND)); ld(dv(0)); ld(dv(1)); e(VADV)
    e(m0imm(KBASE+2*SLOT)); e('s_nop 0'); ld(dk(0)); ld(dk(1)); e(KADV)
    e(m0imm(SLOT)); e('s_nop 0'); ld(dv(0)); ld(dv(1)); e(VADV)
WMUSE = 0
for row in table: WMUSE |= (row[3] >> 24) & 63
CPF = opt('cpf', '')
def cpf():
    e('s_getpc_b64 s[58:59]')
    e('s_lshr_b32 s%d, s2, 3' % sT2)
    e('s_lshl_b32 s%d, s%d, 2' % (sT2, sT2))
    e('s_add_u32 s%d, s%d, s%d' % (sT2, sT2, sW))
    e('s_lshl_b32 s%d, s%d, 7' % (sT2, sT2))
    e('s_add_u32 s58, s58, s%d' % sT2)
    e('s_addc_u32 s59, s59, 0')
    e('s_load_dword s60, s[58:59], 0')
    if '2' in CPF: e('s_load_dword s61, s[58:59], 64')
if 'e' in CPF: cpf()
ldseq({})
if 'l' in CPF: cpf()
if PF:
    sh = {64: 2, 128: 1}[PFG]
    e('v_lshrrev_b32 v%d, %d, v%d' % (vRD, sh, vLane))
    e('v_and_b32 v%d, %d, v%d' % (vX, (1 << sh)-1, vLane))
    e('v_lshlrev_b32 v%d, 12, v%d' % (vRD, vRD))
    e('s_lshl_b32 s%d, s%d, 3' % (sT0, sW))
    e('v_lshl_add_u32 v%d, v%d, %d, v%d' % (vRD, vX, 8-sh, vRD))
    for i in range(NT):
        e('s_lshr_b32 s%d, s%d, s%d' % (sT1, 56+i, sT0))
        e('s_and_b32 s%d, s%d, 0xff' % (sT1, sT1))
        e('s_lshl_b32 s%d, s%d, %d' % (sT1, sT1, 18-sh))
        e('s_add_u32 s%d, s%d, s%d' % (sT1, sT1, sD))
        e('buffer_load_dword v%d, v%d, %s, s%d offen' % (vR[i % 2], vRD, sr(sVS if i % 2 else sKS, 4), sT1))
if STAMP:
    e('s_and_b32 s65, s65, 0xffff')
    e('s_mov_b32 s66, 0x1000000')
    e('s_mov_b32 s67, 0x20000')
    e('s_lshl_b32 s70, s2, 2')
    e('s_add_u32 s70, s70, s%d' % sW)
    e('s_lshl_b32 s70, s70, 6')
e('s_bfe_u32 s%d, s%d, 0x20014' % (sPri, sD+3))
if PPRO is not None: e('s_setprio %d' % int(PPRO))
else: prio_loop()
e('v_and_b32 v%d, 7, v%d' % (vX, vLane))
e('v_mul_u32_u24 v%d, %d, v%d' % (vAKc, PS, vX))
e('v_bfe_u32 v%d, v%d, 3, 1' % (vT[1], vLane))
e('v_lshl_add_u32 v%d, v%d, 8, v%d' % (vAKc, vT[1], vAKc))
e('v_lshl_add_u32 v%d, v%d, 4, v%d' % (vAKc, vY, vAKc))
e('v_add_u32 v%d, %d, v%d' % (vAKc, KEND, vAKc))
e(set_ka(sX))
e('v_bfe_u32 v%d, v%d, 2, 3' % (vAVc, vLane))
e('v_mul_u32_u24 v%d, %d, v%d' % (vAVc, PS, vAVc))
e('v_lshrrev_b32 v%d, 5, v%d' % (vX2, vLane))
e('v_lshl_add_u32 v%d, v%d, 8, v%d' % (vAVc, vX2, vAVc))
e('v_and_b32 v%d, 3, v%d' % (vY2, vLane))
e('v_lshl_add_u32 v%d, v%d, 3, v%d' % (vAVc, vY2, vAVc))
e('v_xor_b32 v%d, v%d, v%d' % (vWc, vX2, vX))
e('v_lshlrev_b32 v%d, 4, v%d' % (vWc, vWc))
e('v_lshl_add_u32 v%d, v%d, 7, v%d' % (vWc, vZ, vWc))
e('v_and_b32 v%d, 1, v%d' % (vY2, vY))
e('v_xor_b32 v%d, v%d, v%d' % (vY2, vY2, vT[1]))
e('v_lshl_add_u32 v%d, v%d, 3, v%d' % (vWc, vY2, vWc))
e('s_and_b32 s%d, s%d, 1' % (sT0, sW))
e('s_lshl_b32 s%d, s%d, 12' % (sT0, sT0))
e('v_add_u32 v%d, s%d, v%d' % (vWc, sT0, vWc))
e('v_lshrrev_b32 v%d, 3, v%d' % (vY2, vLane))
e('v_xor_b32 v%d, v%d, v%d' % (vRDc, vY2, vX))
e('v_lshlrev_b32 v%d, 4, v%d' % (vRDc, vRDc))
e('v_lshl_add_u32 v%d, v%d, 7, v%d' % (vRDc, vY2, vRDc))
e('v_add_u32 v%d, s%d, v%d' % (vRDc, sT0, vRDc))
e('v_lshlrev_b32 v%d, 12, v%d' % (vST, vY2))
e('v_lshl_add_u32 v%d, v%d, 4, v%d' % (vST, vX, vST))
for r in range(8): e('v_mov_b32 v%d, 0' % (vNM+r))
e('s_mov_b32 s%d, 0x%08x' % (sC, f2u(CC)))
e('s_mov_b32 s%d, 0x%08x' % (sThr, f2u(2.0**THRLOG)))
e('s_mov_b32 s%d, 0x%08x' % (sLow, f2u(2.0**-LOWLOG)))
e('s_mov_b32 s%d, s%d' % (sOS, sOp))
e('s_and_b32 s%d, s%d, 0xffff' % (sOS+1, sOp+1))
e('s_mov_b32 s%d, 0x%x' % (sX, kb(0)))
e('s_mov_b32 s%d, %d' % (sVa, 2*SLOT))
e('s_mov_b32 s%d, %d' % (sVrd[0], 3*SLOT))
e('s_mov_b32 s%d, 1' % sFirst)
def qk0_with_prescale(ps, extra):
    for idx in range(16):
        if idx % 4 == 0: e('s_nop 1')
        need('k%d' % qk_frag(idx))
        e(qk(idx, vS[0], A=vV))
        for x in extra.get(idx, []):
            if callable(x): x()
            else: e(x)
        for x in ps[:10]: e(x)
        del ps[:10]
def p1():
    e('s_waitcnt vmcnt(%d)' % ((8 if K1LATE else 6) + NT))
    tickA()
    for f in KORD: e(kread(f, tag='q'))
    if STAMP:
        e('s_getreg_b32 s75, hwreg(HW_REG_HW_ID)')
        e('s_getreg_b32 s76, hwreg(HW_REG_XCC_ID)')
        e('s_and_b32 s75, s75, 0xffff')
        e('s_lshl_b32 s76, s76, 16')
        e('s_or_b32 s75, s75, s76')
        e('v_mov_b32 v250, s74')
        e('v_mov_b32 v251, s75')
        e('v_mov_b32 v252, s70')
        e('s_mov_b64 s[72:73], exec')
        e('s_mov_b64 exec, 1')
        e('buffer_store_dwordx2 v[250:251], v252, s[64:67], 0 offen')
        e('s_mov_b64 exec, s[72:73]')
        stamp(1)
    e(set_ka(sX))
    drain()
    e('s_barrier')
    tickB()
    tflush()
    for f in KORD: e(kread(f, vV))

    ps = prescale_ops()
    for i, x in enumerate(ps[:40]):
        e(x)
        if i == 9: e(m0imm(KBASE+3*SLOT))
        if i == 14: e(dk(0))
        if i == 29: e(dk(1)); e(KADV)
    del ps[:40]
    qk0_with_prescale(ps, {1: [m0imm(KBASE+4*SLOT)], 2: [dk(0)], 5: [dk(1)], 6: [KADV]})
    tickA()
    e('s_waitcnt vmcnt(%d)' % (6 + NT))


if not NOIDLE:
    e('s_add_u32 s%d, s%d, s%d' % (sT0, sWq, sD+1))
    e('s_cmp_ge_u32 s%d, s%d' % (sT0, sD+2))
    e('s_cbranch_scc1 L_p1I')
p1()

lab('L_pre0')
del dsq[:]
for x in next_k(sK1, sX): e(x)
e(set_ka(sK1))
e(m0v(sVa))
if USEPRI: prio_loop()
e('s_barrier')
tickB()
for f in KORD: e(kread(f))
e(dv(0))
e('s_and_b32 s%d, s%d, 0xff' % (sT0, sD+3))
e('s_cmp_eq_u32 s%d, 0' % (sD+7))
e('s_cselect_b32 s%d, 2, 6' % sT1)
e('s_cselect_b32 s%d, 1, 0' % sState)
e('s_sub_u32 s%d, s%d, s%d' % (sEv, sT0, sT1))
if PEV:
    e('s_bfe_u32 s%d, s%d, 0x40010' % (sT1, sD+3))
    e('s_sub_u32 s%d, s%d, s%d' % (sEv, sEv, sT1))
    e('s_cmp_eq_u32 s%d, 0' % sT1)
    e('s_cselect_b32 s%d, s%d, 3' % (sState, sState))
for x in next_v(sVrd[1], sVrd[0]): e(x)
e(set_va(sVrd[1]))
for x in next_k(sKrd[0], sK1): e(x)
e(set_ka(sKrd[0]))
e(dv(1)); e(VADV)
tflush()
stamp(2)
if not NOIDLE:
    e('s_add_u32 s%d, s%d, s%d' % (sT0, sWq, sD+1))
    e('s_cmp_ge_u32 s%d, s%d' % (sT0, sD+2))
    e('s_cbranch_scc1 L_step0I')
dsq0 = list(dsq)

handlers = []
def step0():
    lab('L_step0')
    dsq[:] = dsq0
    N = [[] for _ in range(16)]
    G = [sm_slot(0, g, True) for g in range(16)]
    for ks in range(4):
        if ks < 3: N[4*ks+4] += [kread(ks, tag='n')]; N[4*ks+5] += [kread(4+ks, tag='n')]
    N[14] += [kread(3, tag='n')]
    N[15] += [kread(7, tag='n')]
    N[1] += [m0k(sX)]
    N[2] += [dk(0)]
    N[6] += [dk(1)]
    N[7] += [KADV]
    N[10] += next_k(sKrd[1], sKrd[0])
    N[11] += ['s_sub_u32 s%d, s%d, 1' % (sEv, sEv), 's_cbranch_scc1 %s' % L('L_evS'), ('LABEL', 'L_retSx')]
    for g in range(16):
        need('k%d' % qk_frag(g))
        e(qk(g, vS[1]))
        for x in N[g] + G[g]:
            if x[0] == 'LABEL': lab(x[1])
            else: e(x)
    e(m0k(sK1))
    e(ad(0, 15)); e(cv(0, 7))
    e(set_ka(sKrd[1]))
    e('v_subrev_u32 v%d, s%d, v%d' % (vX, sLow, vL[0][0]))
    e('v_subrev_u32 v%d, s%d, v%d' % (vY, sLow, vL[0][1]))
    e('s_sub_u32 s%d, s%d, s%d' % (sT0, sThr, sLow))
    e('v_max_u32 v%d, v%d, v%d' % (vX, vX, vY))
    e('v_cmp_lt_u32 vcc, s%d, v%d' % (sT0, vX))
    e('s_cmp_eq_u32 s%d, 0' % sFirst)
    e('s_cbranch_scc1 %s' % L('L_s0w'))
    e('s_waitcnt vmcnt(6)')
    lab('L_s0w')
    e('s_cbranch_vccnz L_fbS')
    lab('L_fbretS')

DPOS0 = [23, 24, 26, 27, 28, 30, 0]
DPOS = [int(x) for x in opt('dp', '23,24,26,27,28,30,0').split(',')]
def body(p, tag, nxt, first=False, loop=False):
    lab('L_ret%s' % tag)
    INLOOP[0] = not first
    tickA()
    drain(vm=10)
    e('s_barrier')
    tickB()
    N = [[] for _ in range(32)]
    G = [[] for _ in range(32)]
    for q in range(4):
        x = 4*q; g = 7*q
        G[g] = [ex(p, x)]; G[g+1] = [ex(p, x+1)]; G[g+2] = [ad(p, x), cv(p, 2*q)]
        G[g+3] = [ex(p, x+2)]; G[g+4] = [ex(p, x+3)]; G[g+5] = [ad(p, x+1), ad(p, x+2)]; G[g+6] = [ad(p, x+3), cv(p, 2*q+1)]
    G[28] = check_ops(p)
    dp = DPOS if not first else DPOS0
    if dp[6]:
        for g in range(8): N[g] += [VREADS[2*g], VREADS[2*g+1]]
    else:
        for g in range(16): N[g].append(VREADS[g])
    for g in range(8): N[16+g].append(kread(KORD[g]))
    N[dp[0]] += [m0v(sVrd[1-p])]
    N[dp[1]] += [dv(0)]
    N[dp[1]+1] += [xor_v(sVrd[1-p])]
    N[dp[2]] += [dv(1)]
    N[dp[3]] += [m0k(sKrd[1-p])]
    N[dp[4]] += [dk(0)]
    N[29] += [VADV]
    G[29] = [set_va(sVrd[1-p])]
    N[dp[5]] += [dk(1)]
    N[30] += next_k(sKrd[1-p], sKrd[p])
    N[31] += [KADV]
    G[31] = [set_ka(sKrd[1-p])]
    if first:
        N[1] += [dk(0)]; N[4] += [dk(1)]; N[5] += [KADV]
        N[6] += ['s_sub_u32 s%d, s%d, 1' % (sEv, sEv), 's_cbranch_scc1 %s' % L('L_evF'), ('LABEL', 'L_retFx')]
    for g in range(32):
        if g == 16: need('v7')
        if g == 24: need('v15')
        if g < 16: e(qk(g, vS[1-p]))
        else: e(pv(g-16, vP[1-p], zero=first))
        if 'm' in XL and g in (21, 27) and not IDLE[0]:
            j = int(g == 27)
            e('v_mfma_f32_16x16x32_bf16 %s, %s, %s, %s' % (vr(248+4*j, 4), vr(vNM+4, 4), vr(vP[1-p]+4*j, 4), vr(248+4*j, 4)))
        for x in N[g] + G[g]:
            if x[0] == 'LABEL': lab(x[1])
            else: e(x)
    tflush()
    e('s_sub_u32 s%d, s%d, 1' % (sEv, sEv))
    e('s_cbranch_vccnz L_fb%s' % tag)
    INLOOP[0] = False
    lab('L_fbret%s' % tag)
    if loop: e('s_cbranch_scc0 %s' % L('L_ret%s' % nxt))
    else: e('s_cbranch_scc1 %s' % L('L_ev%s' % nxt))

RT = flag('rt')
def body_short(p):
    tag = 'R%d' % p
    lab('L_ret%s' % tag)
    tickA()
    drain(vm=10)
    e('s_barrier')
    tickB()
    M = [qk(g, vS[1-p]) for g in range(16) if IJ[g % 4][0] == 0] + [pv(g, vP[1-p]) for g in range(16)]
    N = [[] for _ in range(24)]
    G0 = []
    for q in range(4):
        x = 4*q
        G0 += [[ex(p, x)], [ex(p, x+1)], [ad(p, x), cv(p, 2*q)], [ex(p, x+2)], [ex(p, x+3)], [ad(p, x+1), ad(p, x+2)], [ad(p, x+3), cv(p, 2*q+1)]]
    G = [[] for _ in range(24)]
    for k, x in enumerate(G0): G[k*22//28] += x
    G[22] = check_ops(p)
    for g in range(8): N[g] += [VREADS[2*g], VREADS[2*g+1]]
    N[13] += [m0v(sVrd[1-p])]
    N[14] += [dv(0)]
    N[15] += [xor_v(sVrd[1-p])]
    N[17] += [dv(1)]
    N[18] += [m0k(sKrd[1-p])]
    N[19] += [dk(0)]
    N[20] += [VADV]
    G[23] += [set_va(sVrd[1-p])]
    N[22] += [dk(1)] + next_k(sKrd[1-p], sKrd[p])
    N[23] += [KADV]
    for g in range(24):
        if g == 8: need('v7')
        if g == 16: need('v15')
        e(M[g])
        for x in N[g] + G[g]: e(x)
    tflush()
    e('s_cbranch_vccnz L_fb%s' % tag)
    lab('L_fbret%s' % tag)

def fallback(p, ret, has_next=True, first=False, ret2=None):
    e('s_nop 7'); e('s_nop 1')
    for x in max8(vS[p], vX, vY): e(x)
    emit_fill(xlane('v_max_f32', vX, vY), [])
    if not first:
        e('v_max_f32 v%d, 0, v%d' % (vX, vX))
        e('v_max_f32 v%d, 0, v%d' % (vY, vY))
        e('v_exp_f32 v%d, -v%d' % (vX2, vX))
        e('v_exp_f32 v%d, -v%d' % (vY2, vY))
    for x in range(16):
        e('v_sub_f32 v%d, v%d, v%d' % (vS[p]+x, vS[p]+x, vX if x < 8 else vY))
    if has_next:
        for x in range(16):
            e('v_sub_f32 v%d, v%d, v%d' % (vS[1-p]+x, vS[1-p]+x, vX if x < 8 else vY))
        for r in range(8):
            e('v_sub_f32 v%d, v%d, v%d' % (vNM+r, vNM+r, vX if r < 4 else vY))
    if not first:
        e('v_mul_f32 v%d, v%d, v%d' % (vL[1-p][0], vL[1-p][0], vX2))
        e('v_mul_f32 v%d, v%d, v%d' % (vL[1-p][1], vL[1-p][1], vY2))
        for r in range(64):
            e('v_mul_f32 v%d, v%d, v%d' % (vO+r, vO+r, vX2 if (r % 8) < 4 else vY2))
    for x in range(16):
        for y in sm_slot(p, x, first): e(y)
        e('s_nop 0')
    for x in sm_fin(p): e(x)
    if ret2: e('s_cbranch_scc1 %s' % ret2)
    e('s_branch %s' % ret)

def handler(tag, p, ret):
    lab('L_ev%s' % tag)
    e('s_cmp_eq_u32 s%d, 1' % sState)
    e('s_cbranch_scc1 %s' % L('L_evB%s' % tag))
    if p is not None:
        e('s_cmp_eq_u32 s%d, 2' % sState)
        e('s_cbranch_scc1 %s' % L('L_tail%d' % p))
    if PEV:
        e('s_cmp_eq_u32 s%d, 3' % sState)
        e('s_cbranch_scc0 %s' % L('L_evQ%s' % tag))
        e('s_bfe_u32 s%d, s%d, 0x40010' % (sEv, sD+3))
        e('s_sub_u32 s%d, s%d, 1' % (sEv, sEv))
        e('s_mov_b32 s%d, 1' % sState)
        e('s_setprio 0')
        e('s_bitcmp1_b32 s%d, 30' % (sD+3))
        e('s_cbranch_scc0 %s' % L('L_evP%s' % tag))
        e('s_setprio 1')
        lab('L_evP%s' % tag)
        e('s_bitcmp1_b32 s%d, 31' % (sD+3))
        e('s_cbranch_scc0 %s' % L(ret))
        e('s_setprio 2')
        e('s_branch %s' % L(ret))
        lab('L_evQ%s' % tag)
    e('s_mov_b64 %s, %s' % (sr(sKS, 2), sr(sQp, 2)))
    e('s_mov_b32 s%d, s%d' % (sKS+2, sD+6))
    e('s_mov_b32 s%d, s%d' % (sKoff, sD+5))
    e('s_mov_b32 s%d, 3' % sEv)
    e('s_mov_b32 s%d, 1' % sState)
    e('s_branch %s' % L(ret))
    lab('L_evB%s' % tag)
    e('s_mov_b64 %s, %s' % (sr(sKS, 2), sr(sKp, 2)))
    e('s_mov_b32 s%d, s%d' % (sKS+2, sD+6))
    e('s_mov_b32 s%d, s%d' % (sVS+2, sD+6))
    e('s_mov_b32 s%d, s%d' % (sKoff, sD+4))
    e('s_mov_b32 s%d, s%d' % (sVoff, sD+4))
    e('s_mov_b32 s%d, 0' % sEv)
    if RT and p is not None and not IDLE[0]:
        e('s_bfe_u32 s%d, s%d, 0x80008' % (sT0, sD+3))
        e('s_cmp_le_u32 s%d, 16' % sT0)
        e('s_cbranch_scc1 L_retR%d' % p)
    e('s_mov_b32 s%d, 2' % sState)
    e('s_branch %s' % L(ret))

def masks(p, ni=2):
    mk = []
    for i in range(ni):
        for r in range(4):
            mk.append('v_cmp_lt_i32 %s, %d, v%d' % (sr(sM[r], 2), 16*i+r, vX))
        for j in range(2):
            for r in range(4):
                x = vS[p]+8*j+4*i+r
                mk.append('v_cndmask_b32 v%d, v%d, v%d, %s' % (x, vY, x, sr(sM[r], 2)))
    return mk
def tail1(p, last, short=False):
    sfx = 'R' if short else ''
    if last: lab('L_tailE%s%d' % (sfx, p))
    else:
        lab('L_tail%s%d' % (sfx, p))
        e('s_cmp_eq_u32 s%d, 0' % (sD+7))
        e('s_cbranch_scc1 %s' % L('L_tailE%s%d' % (sfx, p)))
    del dsq[:]
    if last and IDLE[0]:
        tickA()
        e('s_waitcnt vmcnt(6)')
        e('s_barrier')
        tickB()
        tflush()
        e('s_branch L_fin')
        return
    if last: e('s_xor_b32 s%d, s%d, 0x%x' % (sT1, sVrd[1-p], VX2))
    else: e(m0v(sVrd[1-p]))
    e('s_bfe_u32 s%d, s%d, 0x80008' % (sT0, sD+3))
    e('v_lshrrev_b32 v%d, 4, v%d' % (vX, vLane))
    e('v_lshlrev_b32 v%d, 2, v%d' % (vX, vX))
    e('v_sub_u32 v%d, s%d, v%d' % (vX, sT0, vX))
    e('v_mov_b32 v%d, 0xff800000' % vY)
    if last: e('v_add_u32 v%d, s%d, v%d' % (vAV2, sT1, vAVc))
    tickA()
    drain(vm=6 if last else 10)
    e('s_barrier')
    tickB()
    mk = masks(p, 1 if short else 2)
    nm_ = len(mk)//4
    for g in range(4):
        e(VREADS[2*g]); e(VREADS[2*g+1])
        for x in mk[nm_*g:nm_*g+nm_]: e(x)
    N = [[] for _ in range(16)]
    G = [sm_slot(p, g) for g in range(16)]
    fin_ = sm_fin(p)
    if short:
        xs = [0, 1, 2, 3, 8, 9, 10, 11]
        G = [[] for _ in range(16)]
        for m_, x in enumerate(xs):
            G[m_] += [ex(p, x)]
            if m_ >= 1: G[m_] += [ad(p, xs[m_-1])]
            if m_ >= 2 and m_ % 2 == 0: G[m_] += [cv(p, xs[m_-2]//2)]
        G[8] += [ad(p, 11), cv(p, 5)]
        for g, k in zip((10, 10, 12, 12), (2, 3, 6, 7)): G[g] += ['v_mov_b32 v%d, 0' % (vP[p]+k)]
        fin_ = []
    for g in range(8): N[g] += [VREADS[8+g]]
    if last:
        for g in range(8): N[8+g] += [vread(2*g, vK, vAV2, 'u'), vread(2*g+1, vK, vAV2, 'u')]
        nk = next_k(sX, sKrd[p])
        sl = [nk[0], nk[1],
              's_cmp_eq_u32 s%d, 1' % sW, 's_cselect_b32 s%d, s%d, s%d' % (sX, sKrd[p], sX),
              's_cmp_eq_u32 s%d, 0' % sW, 's_cselect_b32 s%d, s%d, s%d' % (sX, sKrd[1-p], sX),
              's_add_u32 s%d, s%d, %d' % (sX, sX, KEND),
              's_cmp_eq_u32 s%d, 3' % sW, 's_cselect_b32 s%d, s%d, s%d' % (sX, sVrd[1-p], sX),
              's_and_b32 s%d, s%d, 1' % (sT0, sW), 's_lshl_b32 s%d, s%d, 12' % (sT0, sT0), 's_sub_u32 s%d, s%d, s%d' % (sT0, sX, sT0)] + epi_soff()
        for g in range(9):
            N[g] += sl[:2]; del sl[:2]
        assert not sl
        ea = epi_addr()
        for g, x in zip((9, 11, 13, 15, 15), ea): G[g] += [x]
    else:
        N[8] += [dv(0)]
        N[9] += [xor_v(sVrd[1-p])]
        N[10] += ['s_sub_u32 s%d, s%d, %d' % (sX, sKrd[1-p], SLOT)]
        N[11] += ['s_cmp_lt_u32 s%d, 0x%x' % (sX, kb(0))]
        N[12] += ['s_cselect_b32 s%d, 0x%x, s%d' % (sX, kb(NK-1), sX)]
        N[13] += [dv(1)]
        N[14] += ['s_mov_b32 s%d, s%d' % (sVa, sVrd[p])]
        N[15] += [VADV]
        G[15] += [set_va(sVrd[1-p])]
    for g in range(16):
        if g % 2 == 0: need('v%d' % (g+1))
        e(pv(g, vP[1-p]))
        if last:
            for x in G[g][:1] + N[g] + G[g][1:]: e(x)
        else:
            for x in N[g] + G[g]: e(x)
    for x in fin_: e(x)
    for x in check_ops(p): e(x)
    if p == 0 and not last:
        e('s_mov_b32 s%d, s%d' % (sVrd[0], sVrd[1]))
    tflush()
    e('s_cmp_eq_u32 s%d, 0' % (sD+7))
    e('s_cbranch_vccnz L_fbT%s%d' % (sfx, p))
    if short:
        e('s_branch L_fbret%s%d' % ('E' if last else 'T', p))
        return
    if last:
        lab('L_fbretE%d' % p)
        final(p)
    else:
        lab('L_fbretT%d' % p)
        trans(p)

def norm_stage(dt, off=0):
    ops = []
    for j in range(2):
        b = vO + 8*dt + 4*j
        for r in range(4): ops.append('v_mul_f32 v%d, v%d, v%d' % (b+r, b+r, vR[j]))
        if 'n' in PK:
            sel = 'op_sel:[0,1] op_sel_hi:[1,1]' if vR[j] % 2 else 'op_sel_hi:[1,0]'
            for r in (0, 2):
                ops[-4+r] = 'v_pk_mul_f32 %s, %s, %s %s' % (vr(b+r, 2), vr(b+r, 2), vr(vR[j] & ~1, 2), sel)
                ops[-3+r] = None
        ops.append('v_cvt_pk_bf16_f32 v%d, v%d, v%d' % (b, b, b+1))
        ops.append('v_cvt_pk_bf16_f32 v%d, v%d, v%d' % (b+1, b+2, b+3))
    a, b_ = ops[:6], ops[6:]
    seq = a[:4] + b_[:2] + a[4:] + b_[2:4]
    seq.append(('ds_write_b64 v%d, %s offset:%d' % (vW + dt % 4, vr(vO+8*dt, 2), off), 'w'))
    seq += b_[4:]
    seq.append(('ds_write_b64 v%d, %s offset:%d' % (vW + dt % 4, vr(vO+8*dt+4, 2), off + 2048), 'w'))
    return seq
def rdback(rho, off=0):
    ops = []
    for k in range(4):
        b = vO+32*rho+4*k
        if k % 2 == 0: ops.append(('ds_read_b128 %s, v%d offset:%d' % (vr(b, 4), vRD, off + 1024*k), 'r%d' % k))
        else:
            ops.append(('ds_read_b64 %s, v%d offset:%d' % (vr(b, 2), vRD, off + 1024*k + 8), 'r%d' % k))
            ops.append(('ds_read_b64 %s, v%d offset:%d' % (vr(b+2, 2), vRD, off + 1024*k), 'r%d' % k))
    return ops
SOFF = [sT1, sT2, sT3, sT4]
def store(rho, k):
    need('r%d' % k)
    e('buffer_store_dwordx4 %s, v%d, %s, s%d offen offset:%d%s' % (vr(vO+32*rho+4*k, 4), vST, sr(sOS, 4), SOFF[k], 128*rho, SF))
def epi_addr():
    return ['v_add_u32 v%d, s%d, v%d' % (vW, sT0, vWc),
            'v_add_u32 v%d, s%d, v%d' % (vRD, sT0, vRDc),
            'v_xor_b32 v%d, 32, v%d' % (vW+1, vW),
            'v_xor_b32 v%d, 64, v%d' % (vW+2, vW),
            'v_xor_b32 v%d, 96, v%d' % (vW+3, vW)]
def epi_soff():
    return ['s_add_u32 s%d, s%d, s%d' % (sT1, sWq, sD+1),
            's_mov_b32 s%d, s%d' % (sOS+2, sD+2),
            's_add_u32 s%d, s%d, %d' % (sT2, sT1, 8*4096),
            's_add_u32 s%d, s%d, %d' % (sT3, sT1, 16*4096),
            's_add_u32 s%d, s%d, %d' % (sT4, sT1, 24*4096)]
def rcps(p):
    return ['v_rcp_f32 v%d, v%d' % (vR[0], vL[p][0]), 'v_rcp_f32 v%d, v%d' % (vR[1], vL[p][1])]
def spread(main, extra):
    for i, x in enumerate(main):
        for y in extra.get(i, []):
            if callable(y): y()
            else: e(y)
        e(x)

def final(p):
    if PEPI is not None: e('s_setprio %d' % int(PEPI))
    stamp(5)
    a, b = vL[p]
    U = [(4*(q//2) + t, q % 2) for q in range(4) for t in range(4)]
    def M(g): return lambda: (need('u%d' % (2*U[g][0]+1)), e(pv(U[g], vP[p], A=vK)))
    head = [M(0), 'v_permlane32_swap_b32 v%d, v%d' % (a, b), 'v_add_f32 v%d, v%d, v%d' % (a, a, b), 'v_mov_b32 v%d, v%d' % (b, a),
            M(1), 's_nop 0', 'v_permlane16_swap_b32 v%d, v%d' % (a, b), 'v_add_f32 v%d, v%d, v%d' % (a, a, b), 'v_mov_b32 v%d, v%d' % (b, a),
            M(2), 's_nop 0', 'v_permlane32_swap_b32 v%d, v%d' % (a, b), rcps(p)[0], M(3), rcps(p)[1], M(4)]
    for x in head:
        if callable(x): x()
        else: e(x)
    tk()
    seq = []
    for (dt, j) in U:
        x = vO + 8*dt + 4*j
        u = ['v_mul_f32 v%d, v%d, v%d' % (x+r, x+r, vR[j]) for r in range(4)]
        u += ['v_cvt_pk_bf16_f32 v%d, v%d, v%d' % (x, x, x+1), 'v_cvt_pk_bf16_f32 v%d, v%d, v%d' % (x+1, x+2, x+3)]
        u += [('ds_write_b64 v%d, %s offset:%d' % (vW + dt % 4, vr(x, 2), 4096*(dt//4) + 2048*j), 'w')]
        seq += u
    def rd(q):
        rho, j = q//2, q % 2; off = 4096*rho + 2048*j; x = vS[0] + 8*q
        return [('ds_read_b128 %s, v%d offset:%d' % (vr(x, 4), vRD, off), 'r%d' % (2*q)),
                ('ds_read_b64 %s, v%d offset:%d' % (vr(x+4, 2), vRD, off + 1024 + 8), 'r%d' % (2*q+1)),
                ('ds_read_b64 %s, v%d offset:%d' % (vr(x+6, 2), vRD, off + 1024), 'r%d' % (2*q+1))]
    def st(k):
        q = k//2; rho, j = q//2, q % 2
        def f():
            need('r%d' % k)
            e('buffer_store_dwordx4 %s, v%d, %s, s%d offen offset:%d%s' % (vr(vS[0]+4*k, 4), vST, sr(sOS, 4), SOFF[2*j + k % 2], 128*rho, SF))
        return f
    ex_ = {}
    for g in range(5, 16): ex_.setdefault(4*(g-5) + 3, []).append(M(g))
    for q in range(3):
        ex_.setdefault(28*(q+1), []).extend(rd(q))
        ex_.setdefault(28*(q+1) + 18, []).append(st(2*q))
        ex_.setdefault(28*(q+1) + 24, []).append(st(2*q+1))
    spread(seq, ex_)
    tk()
    for x in rd(3): e(x)
    st(6)(); st(7)()
    tk(); tk()
    tflush()
    tkflush()
    e('s_branch L_fin')
def trans(p):
    lab('L_trans%d' % p)
    del dsq[:]
    if PTR is not None: e('s_setprio %d' % int(PTR))
    e('s_lshr_b32 s%d, s%d, 22' % (sK1, sD+7))
    e('s_add_u32 s%d, s%d, s%d' % (sK1, sK1, sW))
    e('s_and_b32 s%d, s%d, 3' % (sK1, sK1))
    if IDLE[0]:
        e('s_lshl_b32 s%d, s%d, 17' % (sT0, sK1))
        e('s_add_u32 s%d, s%d, s%d' % (sT0, sT0, sD+5))
        e('s_cmp_ge_u32 s%d, s%d' % (sT0, sD+6))
        e('s_cbranch_scc0 L_trans%d' % p)
    e('s_add_u32 s%d, s%d, 1' % (sT0, sK1))
    e('s_mul_i32 s%d, s%d, %d' % (sT0, sT0, SLOT))
    e('s_add_u32 s%d, s%d, s%d' % (sT0, sT0, sX))
    e('s_cselect_b32 s%d, 0x%x, 0' % (sT1, kb(0)))
    e('s_add_u32 s%d, s%d, s%d' % (sT0, sT0, sT1))
    e(set_ka(sT0))
    e('s_cmp_ge_u32 s%d, 2' % sW)
    e('s_cselect_b32 s%d, s%d, s%d' % (sT0, sVrd[0], sVa))
    tickA()
    e('s_waitcnt vmcnt(6)')
    e('s_barrier')
    tickB()
    stamp(3)
    qr = [kread(f, tag='q') for f in KORD]
    fill = VREADS[:6] + qr[:2] + VREADS[6:] + qr[2:]
    for _ in range(6): e(fill.pop(0))
    emit_fill(xlane('v_add_f32', vL[p][0], vL[p][1])[1:], fill)
    tk()
    ps = prescale_ops()
    nm = ['v_mov_b32 v%d, 0' % (vNM+r) for r in range(8)]
    pre = {0: rcps(p) + nm[:2], 1: epi_addr()[:3] + nm[2:4], 2: epi_addr()[3:] + nm[4:]}
    so = epi_soff() + ['s_lshl_b32 s%d, s%d, 17' % (sWq, sK1)] + next_k(sKrd[0], sX)
    for g in range(8):
        if g % 2 == 0: need('v%d' % (g+1))
        e(pv(g, vP[p]))
        for x in fill[:2]: e(x)
        del fill[:2]
        if g < 3:
            for x in pre[g]: e(x)
        else:
            if g == 3: need('q0')
            if g == 4: e(set_ka(sX))
            if g == 6: need('q4')
            for x in so[:2]: e(x)
            del so[:2]
            for x in ps[:6]: e(x)
            del ps[:6]
    assert not fill and not so
    e(m0k(sKrd[0]))
    for x in ps[:10]: e(x)
    del ps[:10]
    tk()
    drain(vm=2)
    e('s_barrier')
    tk()
    nk = next_k(sKrd[0], sKrd[0])
    N = {8: [dk(0)], 10: [dk(1)], 11: [KADV] + nk + [m0k(sKrd[0])], 12: [dk(0)], 14: [dk(1)], 15: [KADV] + nk + [m0k(sKrd[0])]}
    for g in range(8, 16):
        e(pv(g, vP[p]))
        for x in N.get(g, []): e(x)
        ns = norm_stage((g-8)//2)
        for x in (ns[:7] if g % 2 == 0 else ns[7:]): e(x)
    tk()
    for x in rdback(0): e(x)
    for f in KORD: e(kread(f, vV))
    ns = norm_stage(4) + norm_stage(5) + norm_stage(6) + norm_stage(7)
    spread(ns, {10: [lambda: store(0, 0)], 22: [lambda: store(0, 1)], 34: [lambda: store(0, 2)], 46: [lambda: store(0, 3)]})
    tk()
    for x in rdback(1): e(x)
    qk0_with_prescale(ps, {0: [dk(0)], 2: [dk(1)], 3: [KADV] + nk + [m0k(sKrd[0])],
                           4: [lambda: store(1, 0)], 6: [lambda: store(1, 1)], 8: [lambda: store(1, 2)], 10: [lambda: store(1, 3)],
                           12: [dk(0), 's_mov_b64 %s, %s' % (sr(sD, 2), sr(sD+4, 2)), 's_mov_b64 %s, %s' % (sr(sD+2, 2), sr(sD+6, 2))],
                           13: ['s_mov_b64 %s, 0' % sr(sD+4, 2), 's_mov_b64 %s, 0' % sr(sD+6, 2), 's_mov_b32 s%d, 0' % sFirst],
                           15: [dk(1), KADV]})
    tk(); tk()
    tflush()
    tkflush()
    stamp(4)
    tickA()
    e('s_waitcnt vmcnt(12)')
    e('s_branch L_pre0')

def mainloop():
    step0()
    body(1, 'F', '0', first=True)
    body(0, '0', '1')
    body(1, '1', '0', loop=True)
    handler('0', 0, 'L_ret0')
    handler('1', 1, 'L_ret1')
    handler('F', None, 'L_retFx')
    handler('S', None, 'L_retSx')
mainloop()
for p in (0, 1):
    tail1(p, False)
    tail1(p, True)
if RT:
    for p in (0, 1):
        body_short(p)
        tail1(1-p, False, True)
        tail1(1-p, True, True)
if not NOIDLE:
    IDLE[0] = True
    mainloop()
    for p in (0, 1):
        tail1(p, False)
        tail1(p, True)
    lab('L_p1')
    del dsq[:]
    p1()
    e('s_branch L_pre0')
    IDLE[0] = False
for tag, p in (('F', 1), ('0', 0), ('1', 1)):
    lab('L_fb%s' % tag)
    fallback(p, 'L_fbret%s' % tag)
if RT:
    for p in (0, 1):
        lab('L_fbR%d' % p)
        fallback(p, 'L_fbretR%d' % p)
for p in (0, 1):
    if RT:
        lab('L_fbTR%d' % p)
        for x in (4, 5, 6, 7, 12, 13, 14, 15): e('v_mov_b32 v%d, 0xff800000' % (vS[p]+x))
    lab('L_fbT%d' % p)
    fallback(p, 'L_fbretT%d' % p, has_next=False, ret2='L_fbretE%d' % p)
lab('L_fbS')
fallback(0, 'L_fbretS', first=True)

lab('L_fin')
if REP:
    e('s_waitcnt vmcnt(0) lgkmcnt(0)')
    e('s_barrier')
    e('s_sub_u32 s79, s79, 1')
    e('s_cbranch_scc0 L_again')
if STAMP:
    stamp(6)
    e('s_waitcnt vmcnt(0)')
    stamp(7)
if PROF:
    e('s_waitcnt vmcnt(0)')
    e('s_memtime s[68:69]')
    e('s_memrealtime s[72:73]')
    e('s_waitcnt lgkmcnt(0)')
    e('v_writelane_b32 v253, s76, 62')
    e('v_writelane_b32 v254, s74, 62')
    e('v_writelane_b32 v253, s68, 63')
    e('v_writelane_b32 v254, s72, 63')
    e('v_writelane_b32 v253, s71, 61')
    e('s_and_b32 s65, s65, 0xffff')
    e('s_mov_b32 s66, 0x1000000')
    e('s_mov_b32 s67, 0x20000')
    e('s_lshl_b32 s70, s2, 2')
    e('s_add_u32 s70, s70, s%d' % sW)
    e('s_lshl_b32 s70, s70, 9')
    e('v_lshlrev_b32 v252, 2, v%d' % vLane)
    e('s_nop 4')
    e('buffer_store_dword v253, v252, s[64:67], s70 offen')
    e('buffer_store_dword v254, v252, s[64:67], s70 offen offset:256')
lab('L_end')
e('s_endpgm')
out.append('.p2align 6')
out.append('.type L_table,@object')
lab('L_table')
for row in table:
    out.append('    .long ' + ', '.join('0x%08x' % x for x in row))
out.append('.size L_table, %d' % (ROW*NWG))
out.append('''.section .rodata,"a"
.p2align 6
.amdhsa_kernel %s_kernel
  .amdhsa_next_free_vgpr %d
  .amdhsa_next_free_sgpr %d
  .amdhsa_accum_offset %d
  .amdhsa_group_segment_fixed_size 0
  .amdhsa_kernarg_size 56
  .amdhsa_user_sgpr_count 2
  .amdhsa_user_sgpr_kernarg_segment_ptr 1
  .amdhsa_system_sgpr_workgroup_id_x 1
.end_amdhsa_kernel''' % (NAME, NVGPR, NSGPR, NVGPR))
dst = [a for a in sys.argv[1:] if not a.startswith('--')]
open(dst[0] if dst else 'cdna_kernels/%s.s' % NAME, 'w').write('\n'.join(out) + '\n')
```

```python
import sys, math, struct, json
CU = [0, 321, 555, 878, 1299, 1551, 1670, 1878, 2181, 2351, 2646, 2810, 3248, 3471, 3811, 4169, 4391]
NAME = "standalone__varlen_attn_packed__ragged"
HEADER = open('cdna_kernels/%s.s.ref' % NAME).read().split('; Override launch')[0]

def opt(name, default=None):
    for a in sys.argv[1:]:
        if a.startswith('--%s=' % name): return a.split('=', 1)[1]
    return default
def flag(name): return ('--' + name) in sys.argv
STAMP = flag('stamp'); PROF = flag('prof'); CLK = flag('clk'); FINE = flag('fine')
QF = opt('qf', 'nt'); KF = opt('kf', 'nt'); SF = opt('sf', '')
QF = (' ' + QF.replace('+', ' ')) if QF else ''
KF = (' ' + KF.replace('+', ' ')) if KF else ''
SF = (' ' + SF.replace('+', ' ')) if SF else ''
THRLOG = int(opt('thr', 14))
LOWLOG = int(opt('low', 40))
SCHED = opt('sched', 'a')
CLS = opt('cls', '01')
PRI = opt('pri', '00')
PPRO = opt('ppro', None)
PEPI = opt('pepi', None)
PTR = opt('ptr', None)
USEPRI = PPRO is not None or PEPI is not None or PTR is not None
NOIDLE = flag('noidle')
XL = opt('xl', '')
BW = dict((int(a), int(b)) for a, b in (x.split(':') for x in opt('bw', '4:2').split(',') if x))
WMD = int(opt('wmd', '10'))
K1LATE = flag('k1late')
PK = opt('pk', '')

out = []
IDLE = [False]
INLOOP = [False]
INFIN = [False]
FX = opt('fx', '')
dsq = []
def e(s, tag=None):
    if s is None: return
    if isinstance(s, tuple): s, tag = s
    if INLOOP[0] and XL:
        if 'd' in XL and s.startswith('buffer_load'): return
        if 'v' in XL and s.startswith('ds_read_b64'): return
        if 'k' in XL and s.startswith('ds_read_b128'): return
        if 'e' in XL and s.startswith('v_exp'): return
        if 'a' in XL and s.startswith('v_add_f32'): return
        if 'c' in XL and s.startswith('v_cvt'): return
        if 'b' in XL and s.startswith('s_barrier'): return
        if 'h' in XL and (s.startswith('v_max_f32') or s.startswith('v_cmp_lt_f32') or s.startswith('s_cbranch_vccnz')): return
    if INFIN[0] and FX:
        if 's' in FX and s.startswith('buffer_store'): return
        if 'w' in FX and s.startswith('ds_write'): return
        if 'r' in FX and s.startswith('ds_read'): return
        if 'm' in FX and s.startswith('v_mfma'): return
        if 'v' in FX and (s.startswith('v_mul') or s.startswith('v_pk_mul')): return
        if 'c' in FX and s.startswith('v_cvt'): return
    if s.startswith('ds_'): dsq.append(tag)
    if IDLE[0]:
        if s.startswith('ds_') or s.startswith('s_nop'): return
        if s.startswith('v_') and not s.startswith('v_add_u32') and not s.startswith('v_writelane') and not s.startswith('v_mov_b32 v25'): return
        if s.startswith('s_waitcnt lgkmcnt') and not (PROF or STAMP): return
        if s.startswith('s_cbranch_vccnz'): return
        if s.startswith('s_add_u32 m0'):
            out.append('    ' + s); s = 's_nop 0'
    out.append('    ' + s)
def need(*tags, vm=None):
    last = -1
    for t in tags:
        idx = [i for i, x in enumerate(dsq) if x == t]
        if idx: last = max(last, idx[-1])
    if last < 0:
        if vm is not None: e('s_waitcnt vmcnt(%d)' % vm)
        return
    n = min(15, len(dsq) - 1 - last)
    e('s_waitcnt %slgkmcnt(%d)' % ('vmcnt(%d) ' % vm if vm is not None else '', n))
    del dsq[:len(dsq) - n]
def drain(vm=None):
    e('s_waitcnt %slgkmcnt(0)' % ('vmcnt(%d) ' % vm if vm is not None else ''))
    del dsq[:]
def lab(s): out.append(s + ('I' if IDLE[0] else '') + ':')
def L(s): return s + ('I' if IDLE[0] else '')

NB = [(CU[s+1]-CU[s]+31)//32 for s in range(16)]
def make_schedule():
    byn = {}
    for s in range(16):
        for hs in range(2):
            for g in range((NB[s]+3)//4):
                byn.setdefault(NB[s], []).append((s, hs, g))
    def take(n): return byn[n].pop(0)
    plan = ([([14], [12])]*6 + [([14], [14])]*2 + [([14], [11])]*6 + [([7, 7], [11])]*6 + [([8, 6], [11])]*6
            + [([10, 4], [10])]*2 + [([10, 6], [10])]*2 + [([10, 8], [10])]*2)
    res = [[[None]*len(a), [None]*len(b)] for a, b in plan]
    for lane in (0, 1):
        for i, p in enumerate(plan):
            res[i][lane][0] = take(p[lane][0])
    for lane in (0, 1):
        for i, p in enumerate(plan):
            if len(p[lane]) > 1: res[i][lane][1] = take(p[lane][1])
    assert all(len(v) == 0 for v in byn.values())
    return [[dict(tasks=res[i][l], cls=int(CLS[l]), pri=int(PRI[l])) for l in (0, 1)] for i in range(32)]
if SCHED.endswith('.json'):
    sched = json.load(open(SCHED))
else:
    base = make_schedule()
    sched = [[[dict(tasks=[[s, ((x+s) & 7) + 8*hs, gq, 0] for (s, hs, gq) in ln['tasks']], cls=ln['cls'], pri=ln['pri']) for ln in cu] for cu in base] for x in range(8)]
seen = set()
for xs in sched:
    for cu in xs:
        for ln in cu:
            for t in ln['tasks']:
                assert tuple(t[:3]) not in seen and t[2] < (NB[t[0]]+3)//4; seen.add(tuple(t[:3]))
assert len(seen) == 82*8
NWG = 512
def desc(t, extra=0):
    if t is None: return [0, 0, 0, 0]
    s, head, g, rot = t[:4]
    Ls = CU[s+1]-CU[s]; n = NB[s]
    if len(t) > 4 and flag('fakeh'):
        return [CU[s]*4096 + head*256, (CU[s+1]-128)*4096 + head*256, CU[s+1]*4096, {14: 8, 10: 6, 6: 3}[n] | ((Ls-32*(n-1)) << 8) | extra]
    return [CU[s]*4096 + head*256, (CU[s]+128*g)*4096 + head*256, CU[s+1]*4096, n | ((Ls-32*(n-1)) << 8) | (rot << 22) | extra]
table = []
for wg in range(NWG):
    xcd = wg & 7; j = wg >> 3
    ln = sched[xcd][j % 32][j // 32]
    tk_ = ln['tasks']
    assert len(tk_) == 1 or NB[tk_[0][0]] >= 6
    pk_, pv_ = ln.get('pe', (0, 0))
    assert 0 <= pk_ <= min(15, NB[tk_[-1][0]] - 2)
    pe = (pk_ << 16) | (pv_ << 30)
    x0 = (ln.get('wm', WMD if ln['cls'] else 0) << 24) | (ln['pri'] << 20)
    table.append(desc(tk_[0], x0 | pe) + desc(None) if len(tk_) == 1 else desc(tk_[0], x0) + desc(tk_[1], pe))
if flag('kvsame'):
    for wg, row in enumerate(table):
        row[0] = (wg & 7)*256
        if row[7]: row[4] = (wg & 7)*256
if flag('qsame'):
    for wg, row in enumerate(table):
        if wg >= 256: row[1] = table[wg-256][1]; row[2] = max(row[2], table[wg-256][2])
PF = opt('pf', None)
PFG = int(opt('pfg', 64))
PFB = flag('pfb')
PFN = int(opt('pfn', 1))
NT = 2*PFN if PF else 0
ROW = 64 if PF else 32
if PF:
    k0_, k1_, v0_, v1_ = [int(x) for x in PF.split(':')]
    upt = 128//PFG if PFG <= 128 else 1
    ext = [[0xff]*(8*PFN) for _ in range(NWG)]
    grp = {}
    for wg in range(NWG):
        t = sched[wg & 7][(wg >> 3) % 32][wg >> 8]['tasks'][0]
        if wg >= 256 and not PFB: continue
        grp.setdefault((wg & 7, wg >> 8, t[0], t[1]), []).append(wg)
    for key, ws in grp.items():
        n = NB[key[2]]
        if key[1] == 1 and (key[0], 0, key[2], key[3]) in grp: continue
        for b, (a0, a1) in enumerate(((k0_, k1_), (v0_, v1_))):
            units = [u for u in range(a0*upt, min(a1, n)*upt)]
            slots = [(r, w, wg) for r in range(PFN) for w in range(4) for wg in (ws if b == 0 else ws[::-1])]
            for u, (r, w, wg) in zip(units, slots): ext[wg][(2*r+b)*4 + w] = u
    for wg in range(NWG):
        x = ext[wg]
        table[wg] = table[wg] + [x[4*i] | x[4*i+1] << 8 | x[4*i+2] << 16 | x[4*i+3] << 24 for i in range(2*PFN)] + [0]*(8-2*PFN)
PEV = any((row[3] | row[7]) & 0xf0000 for row in table)
FIXN = int(opt('fixn', 0))
if FIXN:
    NWG = int(opt('nwg', 512))
    table = []
    for wg in range(NWG):
        xcd = wg & 7; j = wg >> 3
        head = xcd + 8*(j & 1)
        r0 = ((j >> 1) % 2) * 2048
        table.append([r0*4096 + head*256, (128*(j >> 1))*4096 + head*256, 4391*4096, (FIXN if xcd < 4 else int(opt('fixhi', FIXN))) | (32 << 8) | ((WMD*(j//32)) << 24), 0, 0, 0, 0])

PS = 1056
SLOT = 8*PS
NK, NV = 5, 4
KBASE = NV*SLOT
KEND = KBASE + NK*SLOT
LDS = KEND
VX2 = 2*SLOT
assert (SLOT & VX2) == 0
BLK = 32*4096
def kb(i): return (KBASE + i*SLOT - KEND) & 0xffffffff

sQp, sKp, sVp, sOp = 4, 6, 8, 10
sD = 12
sKS, sVS, sOS = 20, 24, 28
sW = 32
sKoff, sVoff = 33, 34
sKrd = [35, 36]; sVrd = [37, 38]
sWc, sWcK = 39, 40
sEv, sState = 41, 42
sX, sVa = 43, 44
sT0, sT1, sT2, sT3 = 45, 46, 47, 48
sPri = 49
sC = 50
sK1 = 51
sThr = 52
sT4 = 53
sM = [54, 56, 58, 60]
sFirst = 62
sWq = 3
sLow = 63
NSGPR = 100 if FINE else 80

vG0, vG1 = 1, 2
vAKc, vAVc, vAK, vAV = 3, 4, 5, 6
vWc, vRDc, vST = 7, 8, 9
vLane = 10
vX, vY, vZ = 11, 12, 13
vX2, vY2 = 14, 15
vQ = 16
vO = 48
vS = [112, 128]
vP = [144, 152]
vK = 160
vV = 192
vNM = 224
vL = [[232, 233], [234, 235]]
vT = [236, 237, 238, 239]
vW = 240
vRD = 244
vR = [245, 246]
vAV2 = 247
NVGPR = 256 if (STAMP or PROF or 'm' in XL) else 248

def vr(b, n): return 'v[%d:%d]' % (b, b+n-1)
def sr(b, n): return 's[%d:%d]' % (b, b+n-1)
CC = 128 ** -0.5 * math.log2(math.e)
def f2u(x): return struct.unpack('<I', struct.pack('<f', x))[0]

def dk(which):
    if which == 0: return 'buffer_load_dwordx4 v%d, %s, s%d offen%s lds' % (vG0, sr(sKS, 4), sKoff, KF)
    return 'buffer_load_dwordx4 v%d, %s, s%d offen offset:%d%s lds' % (vG1, sr(sKS, 4), sKoff, PS, KF)
def dv(which):
    if which == 0: return 'buffer_load_dwordx4 v%d, %s, s%d offen%s lds' % (vG0, sr(sVS, 4), sVoff, KF)
    return 'buffer_load_dwordx4 v%d, %s, s%d offen offset:%d%s lds' % (vG1, sr(sVS, 4), sVoff, PS, KF)
def m0imm(addr): return 's_add_u32 m0, s%d, %d' % (sWc, addr)
def m0v(s): return 's_add_u32 m0, s%d, s%d' % (sWc, s)
def m0k(s): return 's_add_u32 m0, s%d, s%d' % (sWcK, s)
KADV = 's_add_u32 s%d, s%d, %d' % (sKoff, sKoff, BLK)
VADV = 's_add_u32 s%d, s%d, %d' % (sVoff, sVoff, BLK)
def next_k(dst, src):
    return ['s_add_u32 s%d, s%d, %d' % (dst, src, SLOT),
            's_cselect_b32 s%d, 0x%x, s%d' % (dst, kb(0), dst)]
def next_v(dst, src):
    return ['s_add_u32 s%d, s%d, %d' % (dst, src, SLOT),
            's_cmp_ge_u32 s%d, %d' % (dst, NV*SLOT),
            's_cselect_b32 s%d, 0, s%d' % (dst, dst)]
def xor_v(s): return 's_xor_b32 s%d, s%d, 0x%x' % (s, s, VX2)
def set_ka(s): return 'v_add_u32 v%d, s%d, v%d' % (vAK, s, vAKc)
def set_va(s): return 'v_add_u32 v%d, s%d, v%d' % (vAV, s, vAVc)
def kread(f, dst=vK, tag='k'):
    return ('ds_read_b128 %s, v%d offset:%d' % (vr(dst+4*f, 4), vAK, 512*(f//4) + 64*(f % 4)), '%s%d' % (tag, f))
KORD = [0, 4, 1, 5, 2, 6, 3, 7]
def vread(k, dst=vV, adr=vAV, tag='v'):
    dt, h = k//2, k % 2
    return ('ds_read_b64_tr_b16 %s, v%d offset:%d' % (vr(dst+4*dt+2*h, 2), adr, 32*dt + 512*h), '%s%d' % (tag, k))
VREADS = [vread(k) for k in range(16)]
IJ = [(0, 0), (0, 1), (1, 1), (1, 0)]
def qk(idx, S, A=vK, B=vQ):
    ks = idx//4; i, j = IJ[idx % 4]
    D = S + 8*j + 4*i
    c = vr(D, 4) if ks else vr(vNM+4*j, 4)
    return 'v_mfma_f32_16x16x32_bf16 %s, %s, %s, %s' % (vr(D, 4), vr(A+4*(4*i+ks), 4), vr(B+4*(4*j+ks), 4), c)
def qk_frag(idx): return 4*IJ[idx % 4][0] + idx//4
def pv(idx, P, zero=False, A=vV):
    if isinstance(idx, tuple): dt, j = idx
    else: dt = idx//2; j = (idx % 2) ^ (dt & 1)
    D = vO + 8*dt + 4*j
    return 'v_mfma_f32_16x16x32_bf16 %s, %s, %s, %s' % (vr(D, 4), vr(A+4*dt, 4), vr(P+4*j, 4), '0' if zero else vr(D, 4))
def ex(p, x): return 'v_exp_f32 v%d, v%d' % (vT[x % 4], vS[p]+x)
def ad(p, x, first=False):
    j = x//8
    if x % 8 == 0:
        if first: return 'v_mov_b32 v%d, v%d' % (vL[p][j], vT[x % 4])
        return 'v_add_f32 v%d, v%d, v%d' % (vL[p][j], vL[1-p][j], vT[x % 4])
    return 'v_add_f32 v%d, v%d, v%d' % (vL[p][j], vL[p][j], vT[x % 4])
def cv(p, k): return 'v_cvt_pk_bf16_f32 v%d, v%d, v%d' % (vP[p]+k, vT[(2*k) % 4], vT[(2*k+1) % 4])
def sm_slot(p, x, first=False):
    ops = [ex(p, x)]
    if x >= 1: ops.append(ad(p, x-1, first))
    if x >= 2 and x % 2 == 0: ops.append(cv(p, (x-2)//2))
    return ops
def sm_fin(p): return [ad(p, 15), cv(p, 7)]
def check_ops(p):
    return ['v_max_f32 v%d, v%d, v%d' % (vX, vL[p][0], vL[p][1]),
            'v_cmp_lt_f32 vcc, s%d, v%d' % (sThr, vX)]
def max8(S, a, b):
    return ['v_max3_f32 v%d, v%d, v%d, v%d' % (a, S, S+1, S+2),
            'v_max3_f32 v%d, v%d, v%d, v%d' % (b, S+8, S+9, S+10),
            'v_max3_f32 v%d, v%d, v%d, v%d' % (a, a, S+3, S+4),
            'v_max3_f32 v%d, v%d, v%d, v%d' % (b, b, S+11, S+12),
            'v_max3_f32 v%d, v%d, v%d, v%d' % (a, a, S+5, S+6),
            'v_max3_f32 v%d, v%d, v%d, v%d' % (b, b, S+13, S+14),
            'v_max_f32 v%d, v%d, v%d' % (a, a, S+7),
            'v_max_f32 v%d, v%d, v%d' % (b, b, S+15)]
def xlane(op, a, b):
    return [None,
            'v_permlane32_swap_b32 v%d, v%d' % (a, b), None,
            '%s v%d, v%d, v%d' % (op, a, a, b),
            'v_mov_b32 v%d, v%d' % (b, a), None,
            'v_permlane16_swap_b32 v%d, v%d' % (a, b), None,
            '%s v%d, v%d, v%d' % (op, a, a, b),
            'v_mov_b32 v%d, v%d' % (b, a), None,
            'v_permlane32_swap_b32 v%d, v%d' % (a, b), None]
def emit_fill(seq, fill):
    for x in seq:
        if x is None:
            if len(fill) >= 2: e(fill.pop(0)); e(fill.pop(0))
            else: e('s_nop 1')
        else: e(x)
def prescale_ops():
    seq = []
    n = 0
    for f in KORD:
        for h in range(2):
            ops = []
            for i in (4*f+2*h, 4*f+2*h+1):
                t = vS[1] + 2*(n % 8); n += 1
                ops.append(['v_lshlrev_b32 v%d, 16, v%d' % (t, vK+i),
                            'v_and_b32 v%d, 0xffff0000, v%d' % (t+1, vK+i),
                            'v_mul_f32 v%d, s%d, v%d' % (t, sC, t),
                            'v_mul_f32 v%d, s%d, v%d' % (t+1, sC, t+1),
                            'v_cvt_pk_bf16_f32 v%d, v%d, v%d' % (vQ+i, t, t+1)])
            a, b = ops
            if 'p' in PK:
                for o in (a, b):
                    t = int(o[2].split()[1][1:-1])
                    o[2] = 'v_pk_mul_f32 %s, %s, %s op_sel_hi:[1,0]' % (vr(t, 2), vr(t, 2), sr(sC, 2)); o[3] = None
            seq += [a[0], a[1], b[0], b[1], a[2], a[3], b[2], b[3], a[4], b[4]]
    return seq

def stamp(slot):
    if not STAMP: return
    if flag('st0') and slot == 3: return
    e('s_memrealtime s[68:69]')
    drain()
    e('v_mov_b32 v250, s68')
    e('v_mov_b32 v251, s69')
    e('v_mov_b32 v252, s70')
    e('s_mov_b64 s[72:73], exec')
    e('s_mov_b64 exec, 1')
    e('buffer_store_dwordx2 v[250:251], v252, s[64:67], 0 offen offset:%d' % (slot*8))
    e('s_mov_b64 exec, s[72:73]')
    e('s_nop 3')
def tickA():
    if PROF: e('s_memtime s[68:69]')
    if PROF and CLK: e('s_memrealtime s[72:73]')
def tickB():
    if PROF and not CLK: e('s_memtime s[72:73]')
def tflush():
    if not PROF: return
    drain()
    e('s_mov_b32 m0, s71')
    e('s_add_u32 s71, s71, 1')
    e('v_writelane_b32 v253, s68, m0')
    e('v_writelane_b32 v254, s72, m0')
_tk = [0]
def tk():
    if FINE:
        e('s_memtime s[%d:%d]' % (80+2*_tk[0], 81+2*_tk[0])); _tk[0] += 1
def tkflush():
    if not FINE: return
    drain()
    n = _tk[0]
    for i in range(0, n, 2):
        e('s_mov_b32 m0, s71')
        e('s_add_u32 s71, s71, 1')
        e('v_writelane_b32 v253, s%d, m0' % (80+2*i))
        e('v_writelane_b32 v254, s%d, m0' % (80+2*min(i+1, n-1)))
    _tk[0] = 0
_pn = [0]
def prio_loop():
    _pn[0] += 1
    e('s_cmp_eq_u32 s%d, 0' % sPri)
    if USEPRI: e('s_setprio 1')
    e('s_cbranch_scc1 L_pr%d' % _pn[0])
    e('s_setprio %d' % (2 if USEPRI else 1))
    out.append('L_pr%d:' % _pn[0])

out.append(HEADER.rstrip())
out.append('; @launch grid=(%d,1,1) block=(256,1,1) lds=%d' % (NWG, LDS))
out.append('.amdgcn_target "amdgcn-amd-amdhsa--gfx950"')
out.append('.text')
out.append('.globl %s_kernel' % NAME)
out.append('.p2align 8')
out.append('.type %s_kernel,@function' % NAME)
lab('%s_kernel' % NAME)
e('s_cmp_ge_u32 s2, %d' % NWG)
e('s_cbranch_scc1 L_end')
REP = int(opt('rep', 0))
if REP:
    e('s_mov_b32 s79, %d' % REP)
    lab('L_again')
e('s_getpc_b64 s[46:47]')
lab('L_pc')
e('s_load_dwordx4 s[4:7], s[0:1], 0')
e('s_lshl_b32 s3, s2, %d' % (6 if PF else 5))
e('s_add_u32 s3, s3, L_table-L_pc')
e('s_add_u32 s46, s46, s3')
e('s_addc_u32 s47, s47, 0')
e('s_load_dwordx8 s[12:19], s[46:47], 0')
if PF: e('s_load_dwordx%d s[56:%d], s[46:47], 32' % (2*PFN, 55+2*PFN))
e('s_load_dwordx2 s[8:9], s[0:1], 16')
e('s_load_dwordx2 s[10:11], s[0:1], 32')
if STAMP or PROF:
    e('s_load_dwordx2 s[64:65], s[0:1], 48')
    e('s_memrealtime s[74:75]')
if PROF:
    e('s_memtime s[76:77]')
    e('s_mov_b32 s71, 0')
e('v_and_b32 v%d, 63, v0' % vLane)
e('v_lshrrev_b32 v%d, 6, v0' % vX)
e('v_lshrrev_b32 v%d, 4, v%d' % (vY, vLane))
e('v_readfirstlane_b32 s%d, v%d' % (sW, vX))
e('v_and_b32 v%d, 15, v%d' % (vZ, vLane))
e('v_lshlrev_b32 v%d, 4, v%d' % (vG0, vZ))
e('v_lshl_add_u32 v%d, v%d, 15, v%d' % (vT[0], vY, vG0))
e('s_lshl_b32 s%d, s%d, 13' % (sT0, sW))
e('v_add_u32 v%d, s%d, v%d' % (vG0, sT0, vT[0]))
e('v_add_u32 v%d, %d, v%d' % (vG1, 4096-PS, vG0))
e('s_mul_i32 s%d, s%d, %d' % (sWc, sW, 2*PS))
e('s_add_u32 s%d, s%d, %d' % (sWcK, sWc, KEND))
e('s_add_u32 s%d, s%d, 7' % (sX, sW))
e('s_cmp_ge_u32 s%d, 2' % sW)
e('s_cselect_b32 s%d, s%d, s%d' % (sX, sW, sX))
e('s_mul_i32 s%d, s%d, %d' % (sX, sX, SLOT))
e('s_mov_b32 s%d, 0x20000' % (sKS+3))
e('s_mov_b32 s%d, 0x20000' % (sVS+3))
e('s_mov_b32 s%d, 0x20000' % (sOS+3))
e('s_waitcnt lgkmcnt(0)')
if flag('st0'): e('s_memrealtime s[78:79]')
e('s_and_b32 s%d, s%d, 0xffff' % (sKp+1, sKp+1))
e('s_mov_b64 %s, %s' % (sr(sKS, 2), sr(sKp, 2)))
e('s_mov_b32 s%d, s%d' % (sKS+2, sD+2))
e('s_mov_b32 s%d, s%d' % (sKoff, sD))
e('s_and_b32 s%d, s%d, 0xffff' % (sQp+1, sQp+1))
TOUCH = int(opt('touch', 0)); TST = int(opt('tst', 20))
def touch():
    e('s_mov_b32 s56, s%d' % sOp)
    e('s_and_b32 s57, s%d, 0xffff' % (sOp+1))
    e('s_mov_b32 s58, %d' % (4391*4096))
    e('s_mov_b32 s59, 0x20000')
    e('v_lshlrev_b32 v%d, %d, v%d' % (vX2, TST, vLane))
    e('v_min_u32 v%d, %d, v%d' % (vX2, 4391*4096-4, vX2))
    e('buffer_load_dword v%d, v%d, s[56:59], 0 offen' % (vY2, vX2))
def ldseq(waits):
    cnt = [0]
    if flag('iss'): tk()
    def ld(s):
        e(s); cnt[0] += 1
        if flag('iss') and cnt[0] % 2 == 0: tk()
        if cnt[0] % 2 == 0 and cnt[0] <= (10 if opt('gate', '') else 12) and (WMUSE >> (cnt[0]//2-1)) & 1:
            e('s_bitcmp1_b32 s%d, %d' % (sD+3, 23 + cnt[0]//2))
            e('s_cbranch_scc0 L_lw%d' % cnt[0])
            e('s_waitcnt vmcnt(0)')
            if TOUCH == cnt[0]: touch()
            lab('L_lw%d' % cnt[0])
    if TOUCH == 1:
        e('s_bitcmp1_b32 s%d, 25' % (sD+3))
        e('s_cbranch_scc0 L_lw1')
        touch()
        lab('L_lw1')
    TQ = opt('tq', '')
    def tq():
        e('s_mov_b64 %s, %s' % (sr(sOS, 2), sr(sQp, 2)))
        e('s_mov_b32 s%d, s%d' % (sOS+2, sD+2))
        e('s_mov_b32 s%d, s%d' % (sVS, sVp))
        e('s_and_b32 s%d, s%d, 0xffff' % (sVS+1, sVp+1))
        e('s_mov_b32 s%d, s%d' % (sVS+2, sD+2))
        if 'q' in TQ: e('buffer_load_dword v%d, off, %s, s%d' % (vR[0], sr(sOS, 4), sD+1))
        if 'v' in TQ: e('buffer_load_dword v%d, off, %s, s%d' % (vR[1], sr(sVS, 4), sD))
    if 'e' in TQ: tq()
    GATE = opt('gate', '')
    if GATE:
        e('s_bitcmp1_b32 s%d, 29' % (sD+3))
        e('s_cbranch_scc0 L_gate')
        for gi in range(int(GATE)):
            e('buffer_load_dword v%d, off, %s, s%d' % (vR[0], sr(sKS, 4), sKoff))
            e('s_waitcnt vmcnt(0)')
        lab('L_gate')
    e(m0imm(KBASE)); e('s_mov_b64 %s, %s' % (sr(sOS, 2), sr(sQp, 2))); ld(dk(0))
    if TQ and 'e' not in TQ: tq()
    e('s_mov_b32 s%d, s%d' % (sOS+2, sD+2))
    e('s_lshr_b32 s%d, s%d, 22' % (sWq, sD+3))
    ld(dk(1)); e(KADV)
    def k1():
        e(m0imm(KBASE+SLOT)); e('s_mov_b32 s%d, s%d' % (sVS, sVp)); ld(dk(0))
        e('s_and_b32 s%d, s%d, 0xffff' % (sVS+1, sVp+1))
        ld(dk(1)); e(KADV)
    if not K1LATE: k1()
    e('s_add_u32 s%d, s%d, s%d' % (sWq, sWq, sW))
    e('s_and_b32 s%d, s%d, 3' % (sWq, sWq))
    e('s_lshl_b32 s%d, s%d, 17' % (sWq, sWq))
    e('s_add_u32 s%d, s%d, s%d' % (sT1, sD+1, sWq))
    e('s_mov_b32 s%d, s%d' % (sVS+2, sD+2))
    e('s_mov_b32 s%d, s%d' % (sVoff, sD))
    for j in range(8):
        e('s_add_u32 m0, s%d, %d' % (sX, j*PS))
        if j: e('s_add_u32 s%d, s%d, 4096' % (sT1, sT1))
        else: e('s_nop 0')
        ld('buffer_load_dwordx4 v%d, %s, s%d offen%s lds' % (vT[0], sr(sOS, 4), sT1, QF))
    if K1LATE: k1()
    e(m0imm(0)); e('s_sub_u32 s%d, s%d, %d' % (sX, sX, KEND)); ld(dv(0)); ld(dv(1)); e(VADV)
    e(m0imm(KBASE+2*SLOT)); e('s_nop 0'); ld(dk(0)); ld(dk(1)); e(KADV)
    e(m0imm(SLOT)); e('s_nop 0'); ld(dv(0)); ld(dv(1)); e(VADV)
WMUSE = 0
for row in table: WMUSE |= (row[3] >> 24) & 63
CPF = opt('cpf', '')
def cpf():
    e('s_getpc_b64 s[58:59]')
    e('s_lshr_b32 s%d, s2, 3' % sT2)
    e('s_lshl_b32 s%d, s%d, 2' % (sT2, sT2))
    e('s_add_u32 s%d, s%d, s%d' % (sT2, sT2, sW))
    e('s_lshl_b32 s%d, s%d, 7' % (sT2, sT2))
    e('s_add_u32 s58, s58, s%d' % sT2)
    e('s_addc_u32 s59, s59, 0')
    e('s_load_dword s60, s[58:59], 0')
    if '2' in CPF: e('s_load_dword s61, s[58:59], 64')
if 'e' in CPF: cpf()
ldseq({})
if 'l' in CPF: cpf()
if flag('iss'): tkflush(); FINE = False
if flag('st0'): e('s_memrealtime s[76:77]'); e('s_waitcnt lgkmcnt(0)'); e('s_mov_b32 s79, s76')
if PF:
    sh = {64: 2, 128: 1}[PFG]
    e('v_lshrrev_b32 v%d, %d, v%d' % (vRD, sh, vLane))
    e('v_and_b32 v%d, %d, v%d' % (vX, (1 << sh)-1, vLane))
    e('v_lshlrev_b32 v%d, 12, v%d' % (vRD, vRD))
    e('s_lshl_b32 s%d, s%d, 3' % (sT0, sW))
    e('v_lshl_add_u32 v%d, v%d, %d, v%d' % (vRD, vX, 8-sh, vRD))
    for i in range(NT):
        e('s_lshr_b32 s%d, s%d, s%d' % (sT1, 56+i, sT0))
        e('s_and_b32 s%d, s%d, 0xff' % (sT1, sT1))
        e('s_lshl_b32 s%d, s%d, %d' % (sT1, sT1, 18-sh))
        e('s_add_u32 s%d, s%d, s%d' % (sT1, sT1, sD))
        e('buffer_load_dword v%d, v%d, %s, s%d offen' % (vR[i % 2], vRD, sr(sVS if i % 2 else sKS, 4), sT1))
if STAMP:
    e('s_and_b32 s65, s65, 0xffff')
    e('s_mov_b32 s66, 0x1000000')
    e('s_mov_b32 s67, 0x20000')
    e('s_lshl_b32 s70, s2, 2')
    e('s_add_u32 s70, s70, s%d' % sW)
    e('s_lshl_b32 s70, s70, 6')
e('s_bfe_u32 s%d, s%d, 0x20014' % (sPri, sD+3))
if PPRO is not None: e('s_setprio %d' % int(PPRO))
else: prio_loop()
e('v_and_b32 v%d, 7, v%d' % (vX, vLane))
e('v_mul_u32_u24 v%d, %d, v%d' % (vAKc, PS, vX))
e('v_bfe_u32 v%d, v%d, 3, 1' % (vT[1], vLane))
e('v_lshl_add_u32 v%d, v%d, 8, v%d' % (vAKc, vT[1], vAKc))
e('v_lshl_add_u32 v%d, v%d, 4, v%d' % (vAKc, vY, vAKc))
e('v_add_u32 v%d, %d, v%d' % (vAKc, KEND, vAKc))
e(set_ka(sX))
e('v_bfe_u32 v%d, v%d, 2, 3' % (vAVc, vLane))
e('v_mul_u32_u24 v%d, %d, v%d' % (vAVc, PS, vAVc))
e('v_lshrrev_b32 v%d, 5, v%d' % (vX2, vLane))
e('v_lshl_add_u32 v%d, v%d, 8, v%d' % (vAVc, vX2, vAVc))
e('v_and_b32 v%d, 3, v%d' % (vY2, vLane))
e('v_lshl_add_u32 v%d, v%d, 3, v%d' % (vAVc, vY2, vAVc))
e('v_xor_b32 v%d, v%d, v%d' % (vWc, vX2, vX))
e('v_lshlrev_b32 v%d, 4, v%d' % (vWc, vWc))
e('v_lshl_add_u32 v%d, v%d, 7, v%d' % (vWc, vZ, vWc))
e('v_and_b32 v%d, 1, v%d' % (vY2, vY))
e('v_xor_b32 v%d, v%d, v%d' % (vY2, vY2, vT[1]))
e('v_lshl_add_u32 v%d, v%d, 3, v%d' % (vWc, vY2, vWc))
e('s_and_b32 s%d, s%d, 1' % (sT0, sW))
e('s_lshl_b32 s%d, s%d, 12' % (sT0, sT0))
e('v_add_u32 v%d, s%d, v%d' % (vWc, sT0, vWc))
e('v_lshrrev_b32 v%d, 3, v%d' % (vY2, vLane))
e('v_xor_b32 v%d, v%d, v%d' % (vRDc, vY2, vX))
e('v_lshlrev_b32 v%d, 4, v%d' % (vRDc, vRDc))
e('v_lshl_add_u32 v%d, v%d, 7, v%d' % (vRDc, vY2, vRDc))
e('v_add_u32 v%d, s%d, v%d' % (vRDc, sT0, vRDc))
if flag('st256x'):
    e('v_lshlrev_b32 v%d, 12, v%d' % (vST, vY))
    e('v_lshl_add_u32 v%d, v%d, 4, v%d' % (vST, vZ, vST))
else:
    e('v_lshlrev_b32 v%d, 12, v%d' % (vST, vY2))
    e('v_lshl_add_u32 v%d, v%d, 4, v%d' % (vST, vX, vST))
for r in range(8): e('v_mov_b32 v%d, 0' % (vNM+r))
e('s_mov_b32 s%d, 0x%08x' % (sC, f2u(CC)))
e('s_mov_b32 s%d, 0x%08x' % (sThr, f2u(2.0**THRLOG)))
e('s_mov_b32 s%d, 0x%08x' % (sLow, f2u(2.0**-LOWLOG)))
e('s_mov_b32 s%d, s%d' % (sOS, sOp))
e('s_and_b32 s%d, s%d, 0xffff' % (sOS+1, sOp+1))
e('s_mov_b32 s%d, 0x%x' % (sX, kb(0)))
e('s_mov_b32 s%d, %d' % (sVa, 2*SLOT))
e('s_mov_b32 s%d, %d' % (sVrd[0], 3*SLOT))
e('s_mov_b32 s%d, 1' % sFirst)
def qk0_with_prescale(ps, extra):
    for idx in range(16):
        if idx % 4 == 0: e('s_nop 1')
        need('k%d' % qk_frag(idx))
        e(qk(idx, vS[0], A=vV))
        for x in extra.get(idx, []):
            if callable(x): x()
            else: e(x)
        for x in ps[:10]: e(x)
        del ps[:10]
def p1():
    e('s_waitcnt vmcnt(%d)' % ((8 if K1LATE else 6) + NT))
    tickA()
    for f in KORD: e(kread(f, tag='q'))
    if STAMP:
        e('s_getreg_b32 s75, hwreg(HW_REG_HW_ID)')
        e('s_getreg_b32 s76, hwreg(HW_REG_XCC_ID)')
        e('s_and_b32 s75, s75, 0xffff')
        e('s_lshl_b32 s76, s76, 16')
        e('s_or_b32 s75, s75, s76')
        e('v_mov_b32 v250, s74')
        e('v_mov_b32 v251, s75')
        e('v_mov_b32 v252, s70')
        e('s_mov_b64 s[72:73], exec')
        e('s_mov_b64 exec, 1')
        e('buffer_store_dwordx2 v[250:251], v252, s[64:67], 0 offen')
        if flag('st0'):
            e('s_nop 3')
            e('v_mov_b32 v250, s78')
            e('v_mov_b32 v251, s79')
            e('buffer_store_dwordx2 v[250:251], v252, s[64:67], 0 offen offset:24')
        e('s_mov_b64 exec, s[72:73]')
        stamp(1)
    e(set_ka(sX))
    drain()
    e('s_barrier')
    tickB()
    tflush()
    for f in KORD: e(kread(f, vV))

    ps = prescale_ops()
    for i, x in enumerate(ps[:40]):
        e(x)
        if i == 9: e(m0imm(KBASE+3*SLOT))
        if i == 14: e(dk(0))
        if i == 29: e(dk(1)); e(KADV)
    del ps[:40]
    qk0_with_prescale(ps, {1: [m0imm(KBASE+4*SLOT)], 2: [dk(0)], 5: [dk(1)], 6: [KADV]})
    tickA()
    e('s_waitcnt vmcnt(%d)' % (6 + NT))


if not NOIDLE:
    e('s_add_u32 s%d, s%d, s%d' % (sT0, sWq, sD+1))
    e('s_cmp_ge_u32 s%d, s%d' % (sT0, sD+2))
    e('s_cbranch_scc1 L_p1I')
p1()

lab('L_pre0')
del dsq[:]
for x in next_k(sK1, sX): e(x)
e(set_ka(sK1))
e(m0v(sVa))
if USEPRI: prio_loop()
e('s_barrier')
tickB()
for f in KORD: e(kread(f))
e(dv(0))
e('s_and_b32 s%d, s%d, 0xff' % (sT0, sD+3))
e('s_cmp_eq_u32 s%d, 0' % (sD+7))
e('s_cselect_b32 s%d, 2, 6' % sT1)
e('s_cselect_b32 s%d, 1, 0' % sState)
e('s_sub_u32 s%d, s%d, s%d' % (sEv, sT0, sT1))
if PEV:
    e('s_bfe_u32 s%d, s%d, 0x40010' % (sT1, sD+3))
    e('s_sub_u32 s%d, s%d, s%d' % (sEv, sEv, sT1))
    e('s_cmp_eq_u32 s%d, 0' % sT1)
    e('s_cselect_b32 s%d, s%d, 3' % (sState, sState))
for x in next_v(sVrd[1], sVrd[0]): e(x)
e(set_va(sVrd[1]))
for x in next_k(sKrd[0], sK1): e(x)
e(set_ka(sKrd[0]))
e(dv(1)); e(VADV)
tflush()
stamp(2)
if not NOIDLE:
    e('s_add_u32 s%d, s%d, s%d' % (sT0, sWq, sD+1))
    e('s_cmp_ge_u32 s%d, s%d' % (sT0, sD+2))
    e('s_cbranch_scc1 L_step0I')
dsq0 = list(dsq)

handlers = []
def step0():
    lab('L_step0')
    dsq[:] = dsq0
    N = [[] for _ in range(16)]
    G = [sm_slot(0, g, True) for g in range(16)]
    for ks in range(4):
        if ks < 3: N[4*ks+4] += [kread(ks, tag='n')]; N[4*ks+5] += [kread(4+ks, tag='n')]
    N[14] += [kread(3, tag='n')]
    N[15] += [kread(7, tag='n')]
    N[1] += [m0k(sX)]
    N[2] += [dk(0)]
    N[6] += [dk(1)]
    N[7] += [KADV]
    N[10] += next_k(sKrd[1], sKrd[0])
    N[11] += ['s_sub_u32 s%d, s%d, 1' % (sEv, sEv), 's_cbranch_scc1 %s' % L('L_evS'), ('LABEL', 'L_retSx')]
    for g in range(16):
        need('k%d' % qk_frag(g))
        e(qk(g, vS[1]))
        for x in N[g] + G[g]:
            if x[0] == 'LABEL': lab(x[1])
            else: e(x)
    e(m0k(sK1))
    e(ad(0, 15)); e(cv(0, 7))
    e(set_ka(sKrd[1]))
    e('v_subrev_u32 v%d, s%d, v%d' % (vX, sLow, vL[0][0]))
    e('v_subrev_u32 v%d, s%d, v%d' % (vY, sLow, vL[0][1]))
    e('s_sub_u32 s%d, s%d, s%d' % (sT0, sThr, sLow))
    e('v_max_u32 v%d, v%d, v%d' % (vX, vX, vY))
    e('v_cmp_lt_u32 vcc, s%d, v%d' % (sT0, vX))
    e('s_cmp_eq_u32 s%d, 0' % sFirst)
    e('s_cbranch_scc1 %s' % L('L_s0w'))
    e('s_waitcnt vmcnt(6)')
    lab('L_s0w')
    e('s_cbranch_vccnz L_fbS')
    lab('L_fbretS')

DPOS0 = [int(x) for x in opt('dp0', '23,24,26,27,28,30,0').split(',')]
DPOS = [int(x) for x in opt('dp', '23,24,26,27,28,30,0').split(',')]
def body(p, tag, nxt, first=False, loop=False):
    lab('L_ret%s' % tag)
    INLOOP[0] = not first
    tickA()
    drain(vm=10)
    e('s_barrier')
    tickB()
    N = [[] for _ in range(32)]
    G = [[] for _ in range(32)]
    for q in range(4):
        x = 4*q; g = 7*q
        G[g] = [ex(p, x)]; G[g+1] = [ex(p, x+1)]; G[g+2] = [ad(p, x), cv(p, 2*q)]
        G[g+3] = [ex(p, x+2)]; G[g+4] = [ex(p, x+3)]; G[g+5] = [ad(p, x+1), ad(p, x+2)]; G[g+6] = [ad(p, x+3), cv(p, 2*q+1)]
    G[28] = check_ops(p)
    dp = DPOS if not first else DPOS0
    if dp[6]:
        for g in range(8): N[g] += [VREADS[2*g], VREADS[2*g+1]]
    else:
        for g in range(16): N[g].append(VREADS[g])
    for g in range(8): N[16+g].append(kread(KORD[g]))
    N[dp[0]] += [m0v(sVrd[1-p])]
    N[dp[1]] += [dv(0)]
    N[dp[1]+1] += [xor_v(sVrd[1-p])]
    N[dp[2]] += [dv(1)]
    N[dp[3]] += [m0k(sKrd[1-p])]
    N[dp[4]] += [dk(0)]
    N[29] += [VADV]
    G[29] = [set_va(sVrd[1-p])]
    N[dp[5]] += [dk(1)]
    N[30] += next_k(sKrd[1-p], sKrd[p])
    N[31] += [KADV]
    G[31] = [set_ka(sKrd[1-p])]
    if first:
        N[1] += [dk(0)]; N[4] += [dk(1)]; N[5] += [KADV]
        N[6] += ['s_sub_u32 s%d, s%d, 1' % (sEv, sEv), 's_cbranch_scc1 %s' % L('L_evF'), ('LABEL', 'L_retFx')]
    for g in range(32):
        if g == 16: need('v7')
        if g == 24: need('v15')
        if g < 16: e(qk(g, vS[1-p]))
        else: e(pv(g-16, vP[1-p], zero=first))
        if 'm' in XL and g in (21, 27) and not IDLE[0]:
            j = int(g == 27)
            e('v_mfma_f32_16x16x32_bf16 %s, %s, %s, %s' % (vr(248+4*j, 4), vr(vNM+4, 4), vr(vP[1-p]+4*j, 4), vr(248+4*j, 4)))
        for x in N[g] + G[g]:
            if x[0] == 'LABEL': lab(x[1])
            else: e(x)
    tflush()
    e('s_sub_u32 s%d, s%d, 1' % (sEv, sEv))
    e('s_cbranch_vccnz L_fb%s' % tag)
    INLOOP[0] = False
    lab('L_fbret%s' % tag)
    if loop: e('s_cbranch_scc0 %s' % L('L_ret%s' % nxt))
    else: e('s_cbranch_scc1 %s' % L('L_ev%s' % nxt))

RT = flag('rt')
def body_short(p):
    tag = 'R%d' % p
    lab('L_ret%s' % tag)
    tickA()
    drain(vm=10)
    e('s_barrier')
    tickB()
    M = [qk(g, vS[1-p]) for g in range(16) if IJ[g % 4][0] == 0] + [pv(g, vP[1-p]) for g in range(16)]
    N = [[] for _ in range(24)]
    G0 = []
    for q in range(4):
        x = 4*q
        G0 += [[ex(p, x)], [ex(p, x+1)], [ad(p, x), cv(p, 2*q)], [ex(p, x+2)], [ex(p, x+3)], [ad(p, x+1), ad(p, x+2)], [ad(p, x+3), cv(p, 2*q+1)]]
    G = [[] for _ in range(24)]
    for k, x in enumerate(G0): G[k*22//28] += x
    G[22] = check_ops(p)
    for g in range(8): N[g] += [VREADS[2*g], VREADS[2*g+1]]
    N[13] += [m0v(sVrd[1-p])]
    N[14] += [dv(0)]
    N[15] += [xor_v(sVrd[1-p])]
    N[17] += [dv(1)]
    N[18] += [m0k(sKrd[1-p])]
    N[19] += [dk(0)]
    N[20] += [VADV]
    G[23] += [set_va(sVrd[1-p])]
    N[22] += [dk(1)] + next_k(sKrd[1-p], sKrd[p])
    N[23] += [KADV]
    for g in range(24):
        if g == 8: need('v7')
        if g == 16: need('v15')
        e(M[g])
        for x in N[g] + G[g]: e(x)
    tflush()
    e('s_cbranch_vccnz L_fb%s' % tag)
    lab('L_fbret%s' % tag)

def fallback(p, ret, has_next=True, first=False, ret2=None):
    e('s_nop 7'); e('s_nop 1')
    for x in max8(vS[p], vX, vY): e(x)
    emit_fill(xlane('v_max_f32', vX, vY), [])
    if not first:
        e('v_max_f32 v%d, 0, v%d' % (vX, vX))
        e('v_max_f32 v%d, 0, v%d' % (vY, vY))
        e('v_exp_f32 v%d, -v%d' % (vX2, vX))
        e('v_exp_f32 v%d, -v%d' % (vY2, vY))
    for x in range(16):
        e('v_sub_f32 v%d, v%d, v%d' % (vS[p]+x, vS[p]+x, vX if x < 8 else vY))
    if has_next:
        for x in range(16):
            e('v_sub_f32 v%d, v%d, v%d' % (vS[1-p]+x, vS[1-p]+x, vX if x < 8 else vY))
        for r in range(8):
            e('v_sub_f32 v%d, v%d, v%d' % (vNM+r, vNM+r, vX if r < 4 else vY))
    if not first:
        e('v_mul_f32 v%d, v%d, v%d' % (vL[1-p][0], vL[1-p][0], vX2))
        e('v_mul_f32 v%d, v%d, v%d' % (vL[1-p][1], vL[1-p][1], vY2))
        for r in range(64):
            e('v_mul_f32 v%d, v%d, v%d' % (vO+r, vO+r, vX2 if (r % 8) < 4 else vY2))
    for x in range(16):
        for y in sm_slot(p, x, first): e(y)
        e('s_nop 0')
    for x in sm_fin(p): e(x)
    if ret2: e('s_cbranch_scc1 %s' % ret2)
    e('s_branch %s' % ret)

def handler(tag, p, ret):
    lab('L_ev%s' % tag)
    e('s_cmp_eq_u32 s%d, 1' % sState)
    e('s_cbranch_scc1 %s' % L('L_evB%s' % tag))
    if p is not None:
        e('s_cmp_eq_u32 s%d, 2' % sState)
        e('s_cbranch_scc1 %s' % L('L_tail%d' % p))
    if PEV:
        e('s_cmp_eq_u32 s%d, 3' % sState)
        e('s_cbranch_scc0 %s' % L('L_evQ%s' % tag))
        e('s_bfe_u32 s%d, s%d, 0x40010' % (sEv, sD+3))
        e('s_sub_u32 s%d, s%d, 1' % (sEv, sEv))
        e('s_mov_b32 s%d, 1' % sState)
        e('s_setprio 0')
        e('s_bitcmp1_b32 s%d, 30' % (sD+3))
        e('s_cbranch_scc0 %s' % L('L_evP%s' % tag))
        e('s_setprio 1')
        lab('L_evP%s' % tag)
        e('s_bitcmp1_b32 s%d, 31' % (sD+3))
        e('s_cbranch_scc0 %s' % L(ret))
        e('s_setprio 2')
        e('s_branch %s' % L(ret))
        lab('L_evQ%s' % tag)
    e('s_mov_b64 %s, %s' % (sr(sKS, 2), sr(sQp, 2)))
    e('s_mov_b32 s%d, s%d' % (sKS+2, sD+6))
    e('s_mov_b32 s%d, s%d' % (sKoff, sD+5))
    e('s_mov_b32 s%d, 3' % sEv)
    e('s_mov_b32 s%d, 1' % sState)
    e('s_branch %s' % L(ret))
    lab('L_evB%s' % tag)
    e('s_mov_b64 %s, %s' % (sr(sKS, 2), sr(sKp, 2)))
    e('s_mov_b32 s%d, s%d' % (sKS+2, sD+6))
    e('s_mov_b32 s%d, s%d' % (sVS+2, sD+6))
    e('s_mov_b32 s%d, s%d' % (sKoff, sD+4))
    e('s_mov_b32 s%d, s%d' % (sVoff, sD+4))
    e('s_mov_b32 s%d, 0' % sEv)
    if RT and p is not None and not IDLE[0]:
        e('s_bfe_u32 s%d, s%d, 0x80008' % (sT0, sD+3))
        e('s_cmp_le_u32 s%d, 16' % sT0)
        e('s_cbranch_scc1 L_retR%d' % p)
    e('s_mov_b32 s%d, 2' % sState)
    e('s_branch %s' % L(ret))

def masks(p, ni=2):
    mk = []
    for i in range(ni):
        for r in range(4):
            mk.append('v_cmp_lt_i32 %s, %d, v%d' % (sr(sM[r], 2), 16*i+r, vX))
        for j in range(2):
            for r in range(4):
                x = vS[p]+8*j+4*i+r
                mk.append('v_cndmask_b32 v%d, v%d, v%d, %s' % (x, vY, x, sr(sM[r], 2)))
    return mk
def tail1(p, last, short=False):
    sfx = 'R' if short else ''
    if last: lab('L_tailE%s%d' % (sfx, p))
    else:
        lab('L_tail%s%d' % (sfx, p))
        e('s_cmp_eq_u32 s%d, 0' % (sD+7))
        e('s_cbranch_scc1 %s' % L('L_tailE%s%d' % (sfx, p)))
    del dsq[:]
    if last and IDLE[0]:
        tickA()
        e('s_waitcnt vmcnt(6)')
        e('s_barrier')
        tickB()
        tflush()
        e('s_branch L_fin')
        return
    if last: e('s_xor_b32 s%d, s%d, 0x%x' % (sT1, sVrd[1-p], VX2))
    else: e(m0v(sVrd[1-p]))
    e('s_bfe_u32 s%d, s%d, 0x80008' % (sT0, sD+3))
    e('v_lshrrev_b32 v%d, 4, v%d' % (vX, vLane))
    e('v_lshlrev_b32 v%d, 2, v%d' % (vX, vX))
    e('v_sub_u32 v%d, s%d, v%d' % (vX, sT0, vX))
    e('v_mov_b32 v%d, 0xff800000' % vY)
    if last: e('v_add_u32 v%d, s%d, v%d' % (vAV2, sT1, vAVc))
    tickA()
    drain(vm=6 if last else 10)
    e('s_barrier')
    tickB()
    mk = masks(p, 1 if short else 2)
    nm_ = len(mk)//4
    for g in range(4):
        e(VREADS[2*g]); e(VREADS[2*g+1])
        for x in mk[nm_*g:nm_*g+nm_]: e(x)
    N = [[] for _ in range(16)]
    G = [sm_slot(p, g) for g in range(16)]
    fin_ = sm_fin(p)
    if short:
        xs = [0, 1, 2, 3, 8, 9, 10, 11]
        G = [[] for _ in range(16)]
        for m_, x in enumerate(xs):
            G[m_] += [ex(p, x)]
            if m_ >= 1: G[m_] += [ad(p, xs[m_-1])]
            if m_ >= 2 and m_ % 2 == 0: G[m_] += [cv(p, xs[m_-2]//2)]
        G[8] += [ad(p, 11), cv(p, 5)]
        for g, k in zip((10, 10, 12, 12), (2, 3, 6, 7)): G[g] += ['v_mov_b32 v%d, 0' % (vP[p]+k)]
        fin_ = []
    for g in range(8): N[g] += [VREADS[8+g]]
    if last:
        for g in range(8): N[8+g] += [vread(2*g, vK, vAV2, 'u'), vread(2*g+1, vK, vAV2, 'u')]
        nk = next_k(sX, sKrd[p])
        sl = [nk[0], nk[1],
              's_cmp_eq_u32 s%d, 1' % sW, 's_cselect_b32 s%d, s%d, s%d' % (sX, sKrd[p], sX),
              's_cmp_eq_u32 s%d, 0' % sW, 's_cselect_b32 s%d, s%d, s%d' % (sX, sKrd[1-p], sX),
              's_add_u32 s%d, s%d, %d' % (sX, sX, KEND),
              's_cmp_eq_u32 s%d, 3' % sW, 's_cselect_b32 s%d, s%d, s%d' % (sX, sVrd[1-p], sX),
              's_and_b32 s%d, s%d, 1' % (sT0, sW), 's_lshl_b32 s%d, s%d, 12' % (sT0, sT0), 's_sub_u32 s%d, s%d, s%d' % (sT0, sX, sT0)] + epi_soff()
        for g in range(9):
            N[g] += sl[:2]; del sl[:2]
        assert not sl
        ea = epi_addr()
        for g, x in zip((9, 11, 13, 15, 15), ea): G[g] += [x]
    else:
        N[8] += [dv(0)]
        N[9] += [xor_v(sVrd[1-p])]
        N[10] += ['s_sub_u32 s%d, s%d, %d' % (sX, sKrd[1-p], SLOT)]
        N[11] += ['s_cmp_lt_u32 s%d, 0x%x' % (sX, kb(0))]
        N[12] += ['s_cselect_b32 s%d, 0x%x, s%d' % (sX, kb(NK-1), sX)]
        N[13] += [dv(1)]
        N[14] += ['s_mov_b32 s%d, s%d' % (sVa, sVrd[p])]
        N[15] += [VADV]
        G[15] += [set_va(sVrd[1-p])]
    for g in range(16):
        if g % 2 == 0: need('v%d' % (g+1))
        e(pv(g, vP[1-p]))
        if last:
            for x in G[g][:1] + N[g] + G[g][1:]: e(x)
        else:
            for x in N[g] + G[g]: e(x)
    for x in fin_: e(x)
    for x in check_ops(p): e(x)
    if p == 0 and not last:
        e('s_mov_b32 s%d, s%d' % (sVrd[0], sVrd[1]))
    tflush()
    e('s_cmp_eq_u32 s%d, 0' % (sD+7))
    e('s_cbranch_vccnz L_fbT%s%d' % (sfx, p))
    if short:
        e('s_branch L_fbret%s%d' % ('E' if last else 'T', p))
        return
    if last:
        lab('L_fbretE%d' % p)
        final(p)
    else:
        lab('L_fbretT%d' % p)
        trans(p)

def norm_stage(dt, off=0):
    ops = []
    for j in range(2):
        b = vO + 8*dt + 4*j
        for r in range(4): ops.append('v_mul_f32 v%d, v%d, v%d' % (b+r, b+r, vR[j]))
        if 'n' in PK:
            sel = 'op_sel:[0,1] op_sel_hi:[1,1]' if vR[j] % 2 else 'op_sel_hi:[1,0]'
            for r in (0, 2):
                ops[-4+r] = 'v_pk_mul_f32 %s, %s, %s %s' % (vr(b+r, 2), vr(b+r, 2), vr(vR[j] & ~1, 2), sel)
                ops[-3+r] = None
        ops.append('v_cvt_pk_bf16_f32 v%d, v%d, v%d' % (b, b, b+1))
        ops.append('v_cvt_pk_bf16_f32 v%d, v%d, v%d' % (b+1, b+2, b+3))
    a, b_ = ops[:6], ops[6:]
    seq = a[:4] + b_[:2] + a[4:] + b_[2:4]
    seq.append(('ds_write_b64 v%d, %s offset:%d' % (vW + dt % 4, vr(vO+8*dt, 2), off), 'w'))
    seq += b_[4:]
    seq.append(('ds_write_b64 v%d, %s offset:%d' % (vW + dt % 4, vr(vO+8*dt+4, 2), off + 2048), 'w'))
    return seq
def rdback(rho, off=0):
    ops = []
    for k in range(4):
        b = vO+32*rho+4*k
        if k % 2 == 0: ops.append(('ds_read_b128 %s, v%d offset:%d' % (vr(b, 4), vRD, off + 1024*k), 'r%d' % k))
        else:
            ops.append(('ds_read_b64 %s, v%d offset:%d' % (vr(b, 2), vRD, off + 1024*k + 8), 'r%d' % k))
            ops.append(('ds_read_b64 %s, v%d offset:%d' % (vr(b+2, 2), vRD, off + 1024*k), 'r%d' % k))
    return ops
SOFF = [sT1, sT2, sT3, sT4]
def store(rho, k):
    need('r%d' % k)
    if flag('st256x'):
        m = 4*rho + k
        if m == 0: e('v_add_u32 v%d, 0x4000, v%d' % (vAV2, vST))
        e('buffer_store_dwordx4 %s, v%d, %s, s%d offen%s' % (vr(vO+32*rho+4*k, 4), vAV2 if m % 2 else vST, sr(sOS, 4), SOFF[m//2], SF))
        return
    e('buffer_store_dwordx4 %s, v%d, %s, s%d offen offset:%d%s' % (vr(vO+32*rho+4*k, 4), vST, sr(sOS, 4), SOFF[k], 128*rho, SF))
def epi_addr():
    return ['v_add_u32 v%d, s%d, v%d' % (vW, sT0, vWc),
            'v_add_u32 v%d, s%d, v%d' % (vRD, sT0, vRDc),
            'v_xor_b32 v%d, 32, v%d' % (vW+1, vW),
            'v_xor_b32 v%d, 64, v%d' % (vW+2, vW),
            'v_xor_b32 v%d, 96, v%d' % (vW+3, vW)]
def epi_soff():
    return ['s_add_u32 s%d, s%d, s%d' % (sT1, sWq, sD+1),
            's_mov_b32 s%d, s%d' % (sOS+2, sD+2),
            's_add_u32 s%d, s%d, %d' % (sT2, sT1, 8*4096),
            's_add_u32 s%d, s%d, %d' % (sT3, sT1, 16*4096),
            's_add_u32 s%d, s%d, %d' % (sT4, sT1, 24*4096)]
def rcps(p):
    return ['v_rcp_f32 v%d, v%d' % (vR[0], vL[p][0]), 'v_rcp_f32 v%d, v%d' % (vR[1], vL[p][1])]
def spread(main, extra):
    for i, x in enumerate(main):
        for y in extra.get(i, []):
            if callable(y): y()
            else: e(y)
        e(x)

FPK = int(opt('fpk', 99))
FST = [int(x) for x in opt('fst', '18,24').split(',')]
def final(p):
    if PEPI is not None: e('s_setprio %d' % int(PEPI))
    stamp(5)
    a, b = vL[p]
    U = [(4*(q//2) + t, q % 2) for q in range(4) for t in range(4)]
    def M(g): return lambda: (need('u%d' % (2*U[g][0]+1)), e(pv(U[g], vP[p], A=vK)))
    head = [M(0), 'v_permlane32_swap_b32 v%d, v%d' % (a, b), 'v_add_f32 v%d, v%d, v%d' % (a, a, b), 'v_mov_b32 v%d, v%d' % (b, a),
            M(1), 's_nop 0', 'v_permlane16_swap_b32 v%d, v%d' % (a, b), 'v_add_f32 v%d, v%d, v%d' % (a, a, b), 'v_mov_b32 v%d, v%d' % (b, a),
            M(2), 's_nop 0', 'v_permlane32_swap_b32 v%d, v%d' % (a, b), rcps(p)[0], M(3), rcps(p)[1], M(4)]
    for x in head:
        if callable(x): x()
        else: e(x)
    tk()
    seq = []
    for (dt, j) in U:
        x = vO + 8*dt + 4*j
        u = ['v_mul_f32 v%d, v%d, v%d' % (x+r, x+r, vR[j]) for r in range(4)]
        if len(seq)//7 >= FPK:
            sel = 'op_sel:[0,1] op_sel_hi:[1,1]' if vR[j] % 2 else 'op_sel_hi:[1,0]'
            u = ['v_pk_mul_f32 %s, %s, %s %s' % (vr(x, 2), vr(x, 2), vr(vR[j] & ~1, 2), sel), None,
                 'v_pk_mul_f32 %s, %s, %s %s' % (vr(x+2, 2), vr(x+2, 2), vr(vR[j] & ~1, 2), sel), None]
        u += ['v_cvt_pk_bf16_f32 v%d, v%d, v%d' % (x, x, x+1), 'v_cvt_pk_bf16_f32 v%d, v%d, v%d' % (x+1, x+2, x+3)]
        u += [('ds_write_b64 v%d, %s offset:%d' % (vW + dt % 4, vr(x, 2), 4096*(dt//4) + 2048*j), 'w')]
        seq += u
    def rd(q):
        rho, j = q//2, q % 2; off = 4096*rho + 2048*j; x = vS[0] + 8*q
        return [('ds_read_b128 %s, v%d offset:%d' % (vr(x, 4), vRD, off), 'r%d' % (2*q)),
                ('ds_read_b64 %s, v%d offset:%d' % (vr(x+4, 2), vRD, off + 1024 + 8), 'r%d' % (2*q+1)),
                ('ds_read_b64 %s, v%d offset:%d' % (vr(x+6, 2), vRD, off + 1024), 'r%d' % (2*q+1))]
    def st(k):
        q = k//2; rho, j = q//2, q % 2
        def f():
            need('r%d' % k)
            if flag('st256x'):
                if k == 0: e('v_add_u32 v%d, 0x4000, v%d' % (vAV2, vST))
                e('buffer_store_dwordx4 %s, v%d, %s, s%d offen%s' % (vr(vS[0]+4*k, 4), vAV2 if k % 2 else vST, sr(sOS, 4), SOFF[k//2], SF))
                return
            e('buffer_store_dwordx4 %s, v%d, %s, s%d offen offset:%d%s' % (vr(vS[0]+4*k, 4), vST, sr(sOS, 4), SOFF[2*j + k % 2], 128*rho, SF))
        return f
    ex_ = {}
    for g in range(5, 16): ex_.setdefault(4*(g-5) + 3, []).append(M(g))
    for q in range(3):
        ex_.setdefault(28*(q+1), []).extend(rd(q))
        ex_.setdefault(28*(q+1) + FST[0], []).append(st(2*q))
        ex_.setdefault(28*(q+1) + FST[1] + (q < 2 and FST[1] % 28 == 0), []).append(st(2*q+1))
    INFIN[0] = True
    spread(seq, ex_)
    INFIN[0] = False
    tk()
    for x in rd(3): e(x)
    for k_ in sorted(ex_):
        if k_ >= len(seq):
            for y in ex_[k_]: y()
    st(6)(); st(7)()
    tk(); tk()
    tflush()
    tkflush()
    e('s_branch L_fin')
def trans(p):
    lab('L_trans%d' % p)
    del dsq[:]
    if PTR is not None: e('s_setprio %d' % int(PTR))
    e('s_lshr_b32 s%d, s%d, 22' % (sK1, sD+7))
    e('s_add_u32 s%d, s%d, s%d' % (sK1, sK1, sW))
    e('s_and_b32 s%d, s%d, 3' % (sK1, sK1))
    if IDLE[0]:
        e('s_lshl_b32 s%d, s%d, 17' % (sT0, sK1))
        e('s_add_u32 s%d, s%d, s%d' % (sT0, sT0, sD+5))
        e('s_cmp_ge_u32 s%d, s%d' % (sT0, sD+6))
        e('s_cbranch_scc0 L_trans%d' % p)
    e('s_add_u32 s%d, s%d, 1' % (sT0, sK1))
    e('s_mul_i32 s%d, s%d, %d' % (sT0, sT0, SLOT))
    e('s_add_u32 s%d, s%d, s%d' % (sT0, sT0, sX))
    e('s_cselect_b32 s%d, 0x%x, 0' % (sT1, kb(0)))
    e('s_add_u32 s%d, s%d, s%d' % (sT0, sT0, sT1))
    e(set_ka(sT0))
    e('s_cmp_ge_u32 s%d, 2' % sW)
    e('s_cselect_b32 s%d, s%d, s%d' % (sT0, sVrd[0], sVa))
    tickA()
    e('s_waitcnt vmcnt(6)')
    e('s_barrier')
    tickB()
    stamp(3)
    qr = [kread(f, tag='q') for f in KORD]
    fill = VREADS[:6] + qr[:2] + VREADS[6:] + qr[2:]
    for _ in range(6): e(fill.pop(0))
    emit_fill(xlane('v_add_f32', vL[p][0], vL[p][1])[1:], fill)
    tk()
    ps = prescale_ops()
    nm = ['v_mov_b32 v%d, 0' % (vNM+r) for r in range(8)]
    pre = {0: rcps(p) + nm[:2], 1: epi_addr()[:3] + nm[2:4], 2: epi_addr()[3:] + nm[4:]}
    so = epi_soff() + ['s_lshl_b32 s%d, s%d, 17' % (sWq, sK1)] + next_k(sKrd[0], sX)
    for g in range(8):
        if g % 2 == 0: need('v%d' % (g+1))
        e(pv(g, vP[p]))
        for x in fill[:2]: e(x)
        del fill[:2]
        if g < 3:
            for x in pre[g]: e(x)
        else:
            if g == 3: need('q0')
            if g == 4: e(set_ka(sX))
            if g == 6: need('q4')
            for x in so[:2]: e(x)
            del so[:2]
            for x in ps[:6]: e(x)
            del ps[:6]
    assert not fill and not so
    e(m0k(sKrd[0]))
    for x in ps[:10]: e(x)
    del ps[:10]
    tk()
    drain(vm=2)
    e('s_barrier')
    tk()
    nk = next_k(sKrd[0], sKrd[0])
    N = {8: [dk(0)], 10: [dk(1)], 11: [KADV] + nk + [m0k(sKrd[0])], 12: [dk(0)], 14: [dk(1)], 15: [KADV] + nk + [m0k(sKrd[0])]}
    for g in range(8, 16):
        e(pv(g, vP[p]))
        for x in N.get(g, []): e(x)
        ns = norm_stage((g-8)//2)
        for x in (ns[:7] if g % 2 == 0 else ns[7:]): e(x)
    tk()
    for x in rdback(0): e(x)
    for f in KORD: e(kread(f, vV))
    ns = norm_stage(4) + norm_stage(5) + norm_stage(6) + norm_stage(7)
    spread(ns, {10: [lambda: store(0, 0)], 22: [lambda: store(0, 1)], 34: [lambda: store(0, 2)], 46: [lambda: store(0, 3)]})
    tk()
    for x in rdback(1): e(x)
    qk0_with_prescale(ps, {0: [dk(0)], 2: [dk(1)], 3: [KADV] + nk + [m0k(sKrd[0])],
                           4: [lambda: store(1, 0)], 6: [lambda: store(1, 1)], 8: [lambda: store(1, 2)], 10: [lambda: store(1, 3)],
                           12: [dk(0), 's_mov_b64 %s, %s' % (sr(sD, 2), sr(sD+4, 2)), 's_mov_b64 %s, %s' % (sr(sD+2, 2), sr(sD+6, 2))],
                           13: ['s_mov_b64 %s, 0' % sr(sD+4, 2), 's_mov_b64 %s, 0' % sr(sD+6, 2), 's_mov_b32 s%d, 0' % sFirst],
                           15: [dk(1), KADV]})
    tk(); tk()
    tflush()
    tkflush()
    stamp(4)
    tickA()
    e('s_waitcnt vmcnt(12)')
    e('s_branch L_pre0')

def mainloop():
    step0()
    body(1, 'F', '0', first=True)
    body(0, '0', '1')
    body(1, '1', '0', loop=True)
    handler('0', 0, 'L_ret0')
    handler('1', 1, 'L_ret1')
    handler('F', None, 'L_retFx')
    handler('S', None, 'L_retSx')
mainloop()
for p in (0, 1):
    tail1(p, False)
    tail1(p, True)
if RT:
    for p in (0, 1):
        body_short(p)
        tail1(1-p, False, True)
        tail1(1-p, True, True)
if not NOIDLE:
    IDLE[0] = True
    mainloop()
    for p in (0, 1):
        tail1(p, False)
        tail1(p, True)
    lab('L_p1')
    del dsq[:]
    p1()
    e('s_branch L_pre0')
    IDLE[0] = False
for tag, p in (('F', 1), ('0', 0), ('1', 1)):
    lab('L_fb%s' % tag)
    fallback(p, 'L_fbret%s' % tag)
if RT:
    for p in (0, 1):
        lab('L_fbR%d' % p)
        fallback(p, 'L_fbretR%d' % p)
for p in (0, 1):
    if RT:
        lab('L_fbTR%d' % p)
        for x in (4, 5, 6, 7, 12, 13, 14, 15): e('v_mov_b32 v%d, 0xff800000' % (vS[p]+x))
    lab('L_fbT%d' % p)
    fallback(p, 'L_fbretT%d' % p, has_next=False, ret2='L_fbretE%d' % p)
lab('L_fbS')
fallback(0, 'L_fbretS', first=True)

lab('L_fin')
if REP:
    e('s_waitcnt vmcnt(0) lgkmcnt(0)')
    e('s_barrier')
    e('s_sub_u32 s79, s79, 1')
    e('s_cbranch_scc0 L_again')
if STAMP:
    stamp(6)
    e('s_waitcnt vmcnt(0)')
    stamp(7)
if PROF:
    e('s_waitcnt vmcnt(0)')
    e('s_memtime s[68:69]')
    e('s_memrealtime s[72:73]')
    e('s_waitcnt lgkmcnt(0)')
    e('v_writelane_b32 v253, s76, 62')
    e('v_writelane_b32 v254, s74, 62')
    e('v_writelane_b32 v253, s68, 63')
    e('v_writelane_b32 v254, s72, 63')
    e('v_writelane_b32 v253, s71, 61')
    e('s_and_b32 s65, s65, 0xffff')
    e('s_mov_b32 s66, 0x1000000')
    e('s_mov_b32 s67, 0x20000')
    e('s_lshl_b32 s70, s2, 2')
    e('s_add_u32 s70, s70, s%d' % sW)
    e('s_lshl_b32 s70, s70, 9')
    e('v_lshlrev_b32 v252, 2, v%d' % vLane)
    e('s_nop 4')
    e('buffer_store_dword v253, v252, s[64:67], s70 offen')
    e('buffer_store_dword v254, v252, s[64:67], s70 offen offset:256')
lab('L_end')
e('s_endpgm')
out.append('.p2align 6')
out.append('.type L_table,@object')
lab('L_table')
for row in table:
    out.append('    .long ' + ', '.join('0x%08x' % x for x in row))
out.append('.size L_table, %d' % (ROW*NWG))
out.append('''.section .rodata,"a"
.p2align 6
.amdhsa_kernel %s_kernel
  .amdhsa_next_free_vgpr %d
  .amdhsa_next_free_sgpr %d
  .amdhsa_accum_offset %d
  .amdhsa_group_segment_fixed_size 0
  .amdhsa_kernarg_size 56
  .amdhsa_user_sgpr_count 2
  .amdhsa_user_sgpr_kernarg_segment_ptr 1
  .amdhsa_system_sgpr_workgroup_id_x 1
.end_amdhsa_kernel''' % (NAME, NVGPR, NSGPR, NVGPR))
dst = [a for a in sys.argv[1:] if not a.startswith('--')]
open(dst[0] if dst else 'cdna_kernels/%s.s' % NAME, 'w').write('\n'.join(out) + '\n')
```

```python
import sys, math, struct, json
CU = [0, 321, 555, 878, 1299, 1551, 1670, 1878, 2181, 2351, 2646, 2810, 3248, 3471, 3811, 4169, 4391]
NAME = "standalone__varlen_attn_packed__ragged"
HEADER = open('cdna_kernels/%s.s.ref' % NAME).read().split('; Override launch')[0]

def opt(name, default=None):
    for a in sys.argv[1:]:
        if a.startswith('--%s=' % name): return a.split('=', 1)[1]
    return default
def flag(name): return ('--' + name) in sys.argv
STAMP = flag('stamp'); PROF = flag('prof'); CLK = flag('clk'); FINE = flag('fine')
QF = opt('qf', 'nt'); KF = opt('kf', 'nt'); SF = opt('sf', '')
QF = (' ' + QF.replace('+', ' ')) if QF else ''
KF = (' ' + KF.replace('+', ' ')) if KF else ''
SF = (' ' + SF.replace('+', ' ')) if SF else ''
THRLOG = int(opt('thr', 14))
LOWLOG = int(opt('low', 40))
SCHED = opt('sched', 'a')
CLS = opt('cls', '01')
PRI = opt('pri', '00')
PPRO = opt('ppro', None)
PEPI = opt('pepi', None)
PTR = opt('ptr', None)
USEPRI = PPRO is not None or PEPI is not None or PTR is not None
NOIDLE = flag('noidle')
XL = opt('xl', '')
BW = dict((int(a), int(b)) for a, b in (x.split(':') for x in opt('bw', '4:2').split(',') if x))
WMD = int(opt('wmd', '10'))
K1LATE = flag('k1late')
PK = opt('pk', '')

out = []
IDLE = [False]
INLOOP = [False]
INFIN = [False]
FX = opt('fx', '')
dsq = []
def e(s, tag=None):
    if s is None: return
    if isinstance(s, tuple): s, tag = s
    if INLOOP[0] and XL:
        if 'd' in XL and s.startswith('buffer_load'): return
        if 'v' in XL and s.startswith('ds_read_b64'): return
        if 'k' in XL and s.startswith('ds_read_b128'): return
        if 'e' in XL and s.startswith('v_exp'): return
        if 'a' in XL and s.startswith('v_add_f32'): return
        if 'c' in XL and s.startswith('v_cvt'): return
        if 'b' in XL and s.startswith('s_barrier'): return
        if 'h' in XL and (s.startswith('v_max_f32') or s.startswith('v_cmp_lt_f32') or s.startswith('s_cbranch_vccnz')): return
    if INFIN[0] and FX:
        if 's' in FX and s.startswith('buffer_store'): return
        if 'w' in FX and s.startswith('ds_write'): return
        if 'r' in FX and s.startswith('ds_read'): return
        if 'm' in FX and s.startswith('v_mfma'): return
        if 'v' in FX and (s.startswith('v_mul') or s.startswith('v_pk_mul')): return
        if 'c' in FX and s.startswith('v_cvt'): return
    if s.startswith('ds_'): dsq.append(tag)
    if IDLE[0]:
        if s.startswith('ds_') or s.startswith('s_nop'): return
        if s.startswith('v_') and not s.startswith('v_add_u32') and not s.startswith('v_writelane') and not s.startswith('v_mov_b32 v25'): return
        if s.startswith('s_waitcnt lgkmcnt') and not (PROF or STAMP): return
        if s.startswith('s_cbranch_vccnz'): return
        if s.startswith('s_add_u32 m0'):
            out.append('    ' + s); s = 's_nop 0'
    out.append('    ' + s)
def need(*tags, vm=None):
    last = -1
    for t in tags:
        idx = [i for i, x in enumerate(dsq) if x == t]
        if idx: last = max(last, idx[-1])
    if last < 0:
        if vm is not None: e('s_waitcnt vmcnt(%d)' % vm)
        return
    n = min(15, len(dsq) - 1 - last)
    e('s_waitcnt %slgkmcnt(%d)' % ('vmcnt(%d) ' % vm if vm is not None else '', n))
    del dsq[:len(dsq) - n]
def drain(vm=None):
    e('s_waitcnt %slgkmcnt(0)' % ('vmcnt(%d) ' % vm if vm is not None else ''))
    del dsq[:]
def lab(s): out.append(s + ('I' if IDLE[0] else '') + ':')
def L(s): return s + ('I' if IDLE[0] else '')

NB = [(CU[s+1]-CU[s]+31)//32 for s in range(16)]
def make_schedule():
    byn = {}
    for s in range(16):
        for hs in range(2):
            for g in range((NB[s]+3)//4):
                byn.setdefault(NB[s], []).append((s, hs, g))
    def take(n): return byn[n].pop(0)
    plan = ([([14], [12])]*6 + [([14], [14])]*2 + [([14], [11])]*6 + [([7, 7], [11])]*6 + [([8, 6], [11])]*6
            + [([10, 4], [10])]*2 + [([10, 6], [10])]*2 + [([10, 8], [10])]*2)
    res = [[[None]*len(a), [None]*len(b)] for a, b in plan]
    for lane in (0, 1):
        for i, p in enumerate(plan):
            res[i][lane][0] = take(p[lane][0])
    for lane in (0, 1):
        for i, p in enumerate(plan):
            if len(p[lane]) > 1: res[i][lane][1] = take(p[lane][1])
    assert all(len(v) == 0 for v in byn.values())
    return [[dict(tasks=res[i][l], cls=int(CLS[l]), pri=int(PRI[l])) for l in (0, 1)] for i in range(32)]
if SCHED.endswith('.json'):
    sched = json.load(open(SCHED))
else:
    base = make_schedule()
    sched = [[[dict(tasks=[[s, ((x+s) & 7) + 8*hs, gq, 0] for (s, hs, gq) in ln['tasks']], cls=ln['cls'], pri=ln['pri']) for ln in cu] for cu in base] for x in range(8)]
seen = set()
for xs in sched:
    for cu in xs:
        for ln in cu:
            for t in ln['tasks']:
                assert tuple(t[:3]) not in seen and t[2] < (NB[t[0]]+3)//4; seen.add(tuple(t[:3]))
assert len(seen) == 82*8
NWG = 512
def desc(t, extra=0):
    if t is None: return [0, 0, 0, 0]
    s, head, g, rot = t[:4]
    Ls = CU[s+1]-CU[s]; n = NB[s]
    if len(t) > 4 and flag('fakeh'):
        return [CU[s]*4096 + head*256, (CU[s+1]-128)*4096 + head*256, CU[s+1]*4096, {14: 8, 10: 6, 6: 3}[n] | ((Ls-32*(n-1)) << 8) | extra]
    return [CU[s]*4096 + head*256, (CU[s]+128*g)*4096 + head*256, CU[s+1]*4096, n | ((Ls-32*(n-1)) << 8) | (rot << 22) | extra]
table = []
for wg in range(NWG):
    xcd = wg & 7; j = wg >> 3
    ln = sched[xcd][j % 32][j // 32]
    tk_ = ln['tasks']
    assert len(tk_) == 1 or NB[tk_[0][0]] >= 6
    pk_, pv_ = ln.get('pe', (0, 0))
    assert 0 <= pk_ <= min(15, NB[tk_[-1][0]] - 2)
    pe = (pk_ << 16) | (pv_ << 30)
    x0 = (ln.get('wm', WMD if ln['cls'] else 0) << 24) | (ln['pri'] << 20)
    table.append(desc(tk_[0], x0 | pe) + desc(None) if len(tk_) == 1 else desc(tk_[0], x0) + desc(tk_[1], pe))
if flag('kvsame'):
    for wg, row in enumerate(table):
        row[0] = (wg & 7)*256
        if row[7]: row[4] = (wg & 7)*256
if flag('qsame'):
    for wg, row in enumerate(table):
        if wg >= 256: row[1] = table[wg-256][1]; row[2] = max(row[2], table[wg-256][2])
PF = opt('pf', None)
PFG = int(opt('pfg', 64))
PFB = flag('pfb')
PFN = int(opt('pfn', 1))
NT = 2*PFN if PF else 0
ROW = 64 if PF else 32
if PF:
    k0_, k1_, v0_, v1_ = [int(x) for x in PF.split(':')]
    upt = 128//PFG if PFG <= 128 else 1
    ext = [[0xff]*(8*PFN) for _ in range(NWG)]
    grp = {}
    for wg in range(NWG):
        t = sched[wg & 7][(wg >> 3) % 32][wg >> 8]['tasks'][0]
        if wg >= 256 and not PFB: continue
        grp.setdefault((wg & 7, wg >> 8, t[0], t[1]), []).append(wg)
    for key, ws in grp.items():
        n = NB[key[2]]
        if key[1] == 1 and (key[0], 0, key[2], key[3]) in grp: continue
        for b, (a0, a1) in enumerate(((k0_, k1_), (v0_, v1_))):
            units = [u for u in range(a0*upt, min(a1, n)*upt)]
            slots = [(r, w, wg) for r in range(PFN) for w in range(4) for wg in (ws if b == 0 else ws[::-1])]
            for u, (r, w, wg) in zip(units, slots): ext[wg][(2*r+b)*4 + w] = u
    for wg in range(NWG):
        x = ext[wg]
        table[wg] = table[wg] + [x[4*i] | x[4*i+1] << 8 | x[4*i+2] << 16 | x[4*i+3] << 24 for i in range(2*PFN)] + [0]*(8-2*PFN)
PEV = any((row[3] | row[7]) & 0xf0000 for row in table)
FIXN = int(opt('fixn', 0))
if FIXN:
    NWG = int(opt('nwg', 512))
    table = []
    for wg in range(NWG):
        xcd = wg & 7; j = wg >> 3
        head = xcd + 8*(j & 1)
        r0 = ((j >> 1) % 2) * 2048
        table.append([r0*4096 + head*256, (128*(j >> 1))*4096 + head*256, 4391*4096, (FIXN if xcd < 4 else int(opt('fixhi', FIXN))) | (32 << 8) | ((WMD*(j//32)) << 24), 0, 0, 0, 0])

PS = 1056
SLOT = 8*PS
NK, NV = 5, 4
KBASE = NV*SLOT
KEND = KBASE + NK*SLOT
LDS = KEND
VX2 = 2*SLOT
assert (SLOT & VX2) == 0
BLK = 32*4096
def kb(i): return (KBASE + i*SLOT - KEND) & 0xffffffff

sQp, sKp, sVp, sOp = 4, 6, 8, 10
sD = 12
sKS, sVS, sOS = 20, 24, 28
sW = 32
sKoff, sVoff = 33, 34
sKrd = [35, 36]; sVrd = [37, 38]
sWc, sWcK = 39, 40
sEv, sState = 41, 42
sX, sVa = 43, 44
sT0, sT1, sT2, sT3 = 45, 46, 47, 48
sPri = 49
sC = 50
sK1 = 51
sThr = 52
sT4 = 53
sM = [54, 56, 58, 60]
sFirst = 62
sWq = 3
sLow = 63
NSGPR = 100 if FINE else 80

vG0, vG1 = 1, 2
vAKc, vAVc, vAK, vAV = 3, 4, 5, 6
vWc, vRDc, vST = 7, 8, 9
vLane = 10
vX, vY, vZ = 11, 12, 13
vX2, vY2 = 14, 15
vQ = 16
vO = 48
vS = [112, 128]
vP = [144, 152]
vK = 160
vV = 192
vNM = 224
vL = [[232, 233], [234, 235]]
vT = [236, 237, 238, 239]
vW = 240
vRD = 244
vR = [245, 246]
vAV2 = 247
PF2 = int(opt('pf2', 0)); PF2T = int(opt('pf2t', 4)); PF2G = int(opt('pf2g', 20))
NVGPR = 256 if (STAMP or PROF or 'm' in XL or PF2) else 248

def vr(b, n): return 'v[%d:%d]' % (b, b+n-1)
def sr(b, n): return 's[%d:%d]' % (b, b+n-1)
CC = 128 ** -0.5 * math.log2(math.e)
def f2u(x): return struct.unpack('<I', struct.pack('<f', x))[0]

def dk(which):
    if which == 0: return 'buffer_load_dwordx4 v%d, %s, s%d offen%s lds' % (vG0, sr(sKS, 4), sKoff, KF)
    return 'buffer_load_dwordx4 v%d, %s, s%d offen offset:%d%s lds' % (vG1, sr(sKS, 4), sKoff, PS, KF)
def dv(which):
    if which == 0: return 'buffer_load_dwordx4 v%d, %s, s%d offen%s lds' % (vG0, sr(sVS, 4), sVoff, KF)
    return 'buffer_load_dwordx4 v%d, %s, s%d offen offset:%d%s lds' % (vG1, sr(sVS, 4), sVoff, PS, KF)
def m0imm(addr): return 's_add_u32 m0, s%d, %d' % (sWc, addr)
def m0v(s): return 's_add_u32 m0, s%d, s%d' % (sWc, s)
def m0k(s): return 's_add_u32 m0, s%d, s%d' % (sWcK, s)
KADV = 's_add_u32 s%d, s%d, %d' % (sKoff, sKoff, BLK)
VADV = 's_add_u32 s%d, s%d, %d' % (sVoff, sVoff, BLK)
def next_k(dst, src):
    return ['s_add_u32 s%d, s%d, %d' % (dst, src, SLOT),
            's_cselect_b32 s%d, 0x%x, s%d' % (dst, kb(0), dst)]
def next_v(dst, src):
    return ['s_add_u32 s%d, s%d, %d' % (dst, src, SLOT),
            's_cmp_ge_u32 s%d, %d' % (dst, NV*SLOT),
            's_cselect_b32 s%d, 0, s%d' % (dst, dst)]
def xor_v(s): return 's_xor_b32 s%d, s%d, 0x%x' % (s, s, VX2)
def set_ka(s): return 'v_add_u32 v%d, s%d, v%d' % (vAK, s, vAKc)
def set_va(s): return 'v_add_u32 v%d, s%d, v%d' % (vAV, s, vAVc)
def kread(f, dst=vK, tag='k'):
    return ('ds_read_b128 %s, v%d offset:%d' % (vr(dst+4*f, 4), vAK, 512*(f//4) + 64*(f % 4)), '%s%d' % (tag, f))
KORD = [0, 4, 1, 5, 2, 6, 3, 7]
def vread(k, dst=vV, adr=vAV, tag='v'):
    dt, h = k//2, k % 2
    return ('ds_read_b64_tr_b16 %s, v%d offset:%d' % (vr(dst+4*dt+2*h, 2), adr, 32*dt + 512*h), '%s%d' % (tag, k))
VREADS = [vread(k) for k in range(16)]
IJ = [(0, 0), (0, 1), (1, 1), (1, 0)]
QO = opt('qo', '')
def qk(idx, S, A=vK, B=vQ, order=''):
    ks = idx//4; i, j = IJ[idx % 4]
    first = ks == 0
    if order == 'c':
        i, j = IJ[idx//4]; ks = idx % 4 if (idx//4) % 2 == 0 else 3 - idx % 4; first = idx % 4 == 0
    if order == 'd':
        i = idx//8; ks = (idx % 8)//2; j = (idx % 2) ^ (ks & 1); first = ks == 0
        if i: ks = 3 - ks; j = j ^ 0; first = ks == 3
    if order == 'e':
        j = idx//8; ks = (idx % 8)//2; i = (idx % 2) ^ (ks & 1); first = ks == 0
        if j: ks = 3 - ks; first = ks == 3
    D = S + 8*j + 4*i
    c = vr(D, 4) if not first else vr(vNM+4*j, 4)
    return 'v_mfma_f32_16x16x32_bf16 %s, %s, %s, %s' % (vr(D, 4), vr(A+4*(4*i+ks), 4), vr(B+4*(4*j+ks), 4), c)
def qk_frag(idx): return 4*IJ[idx % 4][0] + idx//4
def pv(idx, P, zero=False, A=vV):
    if isinstance(idx, tuple): dt, j = idx
    else: dt = idx//2; j = (idx % 2) ^ (dt & 1)
    D = vO + 8*dt + 4*j
    return 'v_mfma_f32_16x16x32_bf16 %s, %s, %s, %s' % (vr(D, 4), vr(A+4*dt, 4), vr(P+4*j, 4), '0' if zero else vr(D, 4))
def PO(idx):
    po = opt('po', '')
    if po == 'j': return (idx % 8 if idx < 8 else 15 - idx, idx//8)
    if po == 'n': return (idx//2, idx % 2)
    return idx
def ex(p, x): return 'v_exp_f32 v%d, v%d' % (vT[x % 4], vS[p]+x)
def ad(p, x, first=False):
    j = x//8
    if x % 8 == 0:
        if first: return 'v_mov_b32 v%d, v%d' % (vL[p][j], vT[x % 4])
        return 'v_add_f32 v%d, v%d, v%d' % (vL[p][j], vL[1-p][j], vT[x % 4])
    return 'v_add_f32 v%d, v%d, v%d' % (vL[p][j], vL[p][j], vT[x % 4])
def cv(p, k): return 'v_cvt_pk_bf16_f32 v%d, v%d, v%d' % (vP[p]+k, vT[(2*k) % 4], vT[(2*k+1) % 4])
def sm_slot(p, x, first=False):
    ops = [ex(p, x)]
    if x >= 1: ops.append(ad(p, x-1, first))
    if x >= 2 and x % 2 == 0: ops.append(cv(p, (x-2)//2))
    return ops
def sm_fin(p): return [ad(p, 15), cv(p, 7)]
def check_ops(p):
    return ['v_max_f32 v%d, v%d, v%d' % (vX, vL[p][0], vL[p][1]),
            'v_cmp_lt_f32 vcc, s%d, v%d' % (sThr, vX)]
def max8(S, a, b):
    return ['v_max3_f32 v%d, v%d, v%d, v%d' % (a, S, S+1, S+2),
            'v_max3_f32 v%d, v%d, v%d, v%d' % (b, S+8, S+9, S+10),
            'v_max3_f32 v%d, v%d, v%d, v%d' % (a, a, S+3, S+4),
            'v_max3_f32 v%d, v%d, v%d, v%d' % (b, b, S+11, S+12),
            'v_max3_f32 v%d, v%d, v%d, v%d' % (a, a, S+5, S+6),
            'v_max3_f32 v%d, v%d, v%d, v%d' % (b, b, S+13, S+14),
            'v_max_f32 v%d, v%d, v%d' % (a, a, S+7),
            'v_max_f32 v%d, v%d, v%d' % (b, b, S+15)]
def xlane(op, a, b):
    return [None,
            'v_permlane32_swap_b32 v%d, v%d' % (a, b), None,
            '%s v%d, v%d, v%d' % (op, a, a, b),
            'v_mov_b32 v%d, v%d' % (b, a), None,
            'v_permlane16_swap_b32 v%d, v%d' % (a, b), None,
            '%s v%d, v%d, v%d' % (op, a, a, b),
            'v_mov_b32 v%d, v%d' % (b, a), None,
            'v_permlane32_swap_b32 v%d, v%d' % (a, b), None]
def emit_fill(seq, fill):
    for x in seq:
        if x is None:
            if len(fill) >= 2: e(fill.pop(0)); e(fill.pop(0))
            else: e('s_nop 1')
        else: e(x)
NOPRS = opt('noprs', '')
def prescale_ops(where=''):
    if where and where in NOPRS: return [None]*160
    seq = []
    n = 0
    for f in KORD:
        for h in range(2):
            ops = []
            for i in (4*f+2*h, 4*f+2*h+1):
                t = vS[1] + 2*(n % 8); n += 1
                ops.append(['v_lshlrev_b32 v%d, 16, v%d' % (t, vK+i),
                            'v_and_b32 v%d, 0xffff0000, v%d' % (t+1, vK+i),
                            'v_mul_f32 v%d, s%d, v%d' % (t, sC, t),
                            'v_mul_f32 v%d, s%d, v%d' % (t+1, sC, t+1),
                            'v_cvt_pk_bf16_f32 v%d, v%d, v%d' % (vQ+i, t, t+1)])
            a, b = ops
            if 'p' in PK:
                for o in (a, b):
                    t = int(o[2].split()[1][1:-1])
                    o[2] = 'v_pk_mul_f32 %s, %s, %s op_sel_hi:[1,0]' % (vr(t, 2), vr(t, 2), sr(sC, 2)); o[3] = None
            seq += [a[0], a[1], b[0], b[1], a[2], a[3], b[2], b[3], a[4], b[4]]
    return seq

def stamp(slot):
    if not STAMP: return
    if flag('st0') and slot == 3: return
    e('s_memrealtime s[68:69]')
    drain()
    e('v_mov_b32 v250, s68')
    e('v_mov_b32 v251, s69')
    e('v_mov_b32 v252, s70')
    e('s_mov_b64 s[72:73], exec')
    e('s_mov_b64 exec, 1')
    e('buffer_store_dwordx2 v[250:251], v252, s[64:67], 0 offen offset:%d' % (slot*8))
    e('s_mov_b64 exec, s[72:73]')
    e('s_nop 3')
def tickA():
    if PROF: e('s_memtime s[68:69]')
    if PROF and CLK: e('s_memrealtime s[72:73]')
def tickB():
    if PROF and not CLK: e('s_memtime s[72:73]')
def tflush():
    if not PROF: return
    drain()
    e('s_mov_b32 m0, s71')
    e('s_add_u32 s71, s71, 1')
    e('v_writelane_b32 v253, s68, m0')
    e('v_writelane_b32 v254, s72, m0')
_tk = [0]
def tk():
    if FINE:
        e('s_memtime s[%d:%d]' % (80+2*_tk[0], 81+2*_tk[0])); _tk[0] += 1
def tkflush():
    if not FINE: return
    drain()
    n = _tk[0]
    for i in range(0, n, 2):
        e('s_mov_b32 m0, s71')
        e('s_add_u32 s71, s71, 1')
        e('v_writelane_b32 v253, s%d, m0' % (80+2*i))
        e('v_writelane_b32 v254, s%d, m0' % (80+2*min(i+1, n-1)))
    _tk[0] = 0
_pn = [0]
def prio_loop():
    _pn[0] += 1
    e('s_cmp_eq_u32 s%d, 0' % sPri)
    if USEPRI: e('s_setprio 1')
    e('s_cbranch_scc1 L_pr%d' % _pn[0])
    e('s_setprio %d' % (2 if USEPRI else 1))
    out.append('L_pr%d:' % _pn[0])

out.append(HEADER.rstrip())
out.append('; @launch grid=(%d,1,1) block=(256,1,1) lds=%d' % (NWG, LDS))
out.append('.amdgcn_target "amdgcn-amd-amdhsa--gfx950"')
out.append('.text')
out.append('.globl %s_kernel' % NAME)
out.append('.p2align 8')
out.append('.type %s_kernel,@function' % NAME)
lab('%s_kernel' % NAME)
e('s_cmp_ge_u32 s2, %d' % NWG)
e('s_cbranch_scc1 L_end')
REP = int(opt('rep', 0))
if REP:
    e('s_mov_b32 s79, %d' % REP)
    lab('L_again')
e('s_getpc_b64 s[46:47]')
lab('L_pc')
e('s_load_dwordx4 s[4:7], s[0:1], 0')
e('s_lshl_b32 s3, s2, %d' % (6 if PF else 5))
e('s_add_u32 s3, s3, L_table-L_pc')
e('s_add_u32 s46, s46, s3')
e('s_addc_u32 s47, s47, 0')
e('s_load_dwordx8 s[12:19], s[46:47], 0')
if PF: e('s_load_dwordx%d s[56:%d], s[46:47], 32' % (2*PFN, 55+2*PFN))
e('s_load_dwordx2 s[8:9], s[0:1], 16')
e('s_load_dwordx2 s[10:11], s[0:1], 32')
if STAMP or PROF:
    e('s_load_dwordx2 s[64:65], s[0:1], 48')
    e('s_memrealtime s[74:75]')
if PROF:
    e('s_memtime s[76:77]')
    e('s_mov_b32 s71, 0')
e('v_and_b32 v%d, 63, v0' % vLane)
e('v_lshrrev_b32 v%d, 6, v0' % vX)
e('v_lshrrev_b32 v%d, 4, v%d' % (vY, vLane))
e('v_readfirstlane_b32 s%d, v%d' % (sW, vX))
e('v_and_b32 v%d, 15, v%d' % (vZ, vLane))
e('v_lshlrev_b32 v%d, 4, v%d' % (vG0, vZ))
e('v_lshl_add_u32 v%d, v%d, 15, v%d' % (vT[0], vY, vG0))
e('s_lshl_b32 s%d, s%d, 13' % (sT0, sW))
e('v_add_u32 v%d, s%d, v%d' % (vG0, sT0, vT[0]))
e('v_add_u32 v%d, %d, v%d' % (vG1, 4096-PS, vG0))
e('s_mul_i32 s%d, s%d, %d' % (sWc, sW, 2*PS))
e('s_add_u32 s%d, s%d, %d' % (sWcK, sWc, KEND))
e('s_add_u32 s%d, s%d, 7' % (sX, sW))
e('s_cmp_ge_u32 s%d, 2' % sW)
e('s_cselect_b32 s%d, s%d, s%d' % (sX, sW, sX))
e('s_mul_i32 s%d, s%d, %d' % (sX, sX, SLOT))
e('s_mov_b32 s%d, 0x20000' % (sKS+3))
e('s_mov_b32 s%d, 0x20000' % (sVS+3))
e('s_mov_b32 s%d, 0x20000' % (sOS+3))
e('s_waitcnt lgkmcnt(0)')
if flag('st0'): e('s_memrealtime s[78:79]')
e('s_and_b32 s%d, s%d, 0xffff' % (sKp+1, sKp+1))
e('s_mov_b64 %s, %s' % (sr(sKS, 2), sr(sKp, 2)))
e('s_mov_b32 s%d, s%d' % (sKS+2, sD+2))
e('s_mov_b32 s%d, s%d' % (sKoff, sD))
e('s_and_b32 s%d, s%d, 0xffff' % (sQp+1, sQp+1))
TOUCH = int(opt('touch', 0)); TST = int(opt('tst', 20))
def touch():
    e('s_mov_b32 s56, s%d' % sOp)
    e('s_and_b32 s57, s%d, 0xffff' % (sOp+1))
    e('s_mov_b32 s58, %d' % (4391*4096))
    e('s_mov_b32 s59, 0x20000')
    e('v_lshlrev_b32 v%d, %d, v%d' % (vX2, TST, vLane))
    e('v_min_u32 v%d, %d, v%d' % (vX2, 4391*4096-4, vX2))
    e('buffer_load_dword v%d, v%d, s[56:59], 0 offen' % (vY2, vX2))
def ldseq(waits):
    cnt = [0]
    if flag('iss'): tk()
    def ld(s):
        e(s); cnt[0] += 1
        if flag('iss') and cnt[0] % 2 == 0: tk()
        if cnt[0] % 2 == 0 and cnt[0] <= (10 if opt('gate', '') else 12) and (WMUSE >> (cnt[0]//2-1)) & 1:
            e('s_bitcmp1_b32 s%d, %d' % (sD+3, 23 + cnt[0]//2))
            e('s_cbranch_scc0 L_lw%d' % cnt[0])
            e('s_waitcnt vmcnt(0)')
            if TOUCH == cnt[0]: touch()
            lab('L_lw%d' % cnt[0])
    if TOUCH == 1:
        e('s_bitcmp1_b32 s%d, 25' % (sD+3))
        e('s_cbranch_scc0 L_lw1')
        touch()
        lab('L_lw1')
    TQ = opt('tq', '')
    def tq():
        e('s_mov_b64 %s, %s' % (sr(sOS, 2), sr(sQp, 2)))
        e('s_mov_b32 s%d, s%d' % (sOS+2, sD+2))
        e('s_mov_b32 s%d, s%d' % (sVS, sVp))
        e('s_and_b32 s%d, s%d, 0xffff' % (sVS+1, sVp+1))
        e('s_mov_b32 s%d, s%d' % (sVS+2, sD+2))
        if 'q' in TQ: e('buffer_load_dword v%d, off, %s, s%d' % (vR[0], sr(sOS, 4), sD+1))
        if 'v' in TQ: e('buffer_load_dword v%d, off, %s, s%d' % (vR[1], sr(sVS, 4), sD))
    if 'e' in TQ: tq()
    GATE = opt('gate', '')
    if GATE:
        e('s_bitcmp1_b32 s%d, 29' % (sD+3))
        e('s_cbranch_scc0 L_gate')
        for gi in range(int(GATE)):
            e('buffer_load_dword v%d, off, %s, s%d' % (vR[0], sr(sKS, 4), sKoff))
            e('s_waitcnt vmcnt(0)')
        lab('L_gate')
    e(m0imm(KBASE)); e('s_mov_b64 %s, %s' % (sr(sOS, 2), sr(sQp, 2))); ld(dk(0))
    if TQ and 'e' not in TQ: tq()
    e('s_mov_b32 s%d, s%d' % (sOS+2, sD+2))
    e('s_lshr_b32 s%d, s%d, 22' % (sWq, sD+3))
    ld(dk(1)); e(KADV)
    def k1():
        e(m0imm(KBASE+SLOT)); e('s_mov_b32 s%d, s%d' % (sVS, sVp)); ld(dk(0))
        e('s_and_b32 s%d, s%d, 0xffff' % (sVS+1, sVp+1))
        ld(dk(1)); e(KADV)
    if not K1LATE: k1()
    e('s_add_u32 s%d, s%d, s%d' % (sWq, sWq, sW))
    e('s_and_b32 s%d, s%d, 3' % (sWq, sWq))
    e('s_lshl_b32 s%d, s%d, 17' % (sWq, sWq))
    e('s_add_u32 s%d, s%d, s%d' % (sT1, sD+1, sWq))
    e('s_mov_b32 s%d, s%d' % (sVS+2, sD+2))
    e('s_mov_b32 s%d, s%d' % (sVoff, sD))
    for j in range(8):
        e('s_add_u32 m0, s%d, %d' % (sX, j*PS))
        if j: e('s_add_u32 s%d, s%d, 4096' % (sT1, sT1))
        else: e('s_nop 0')
        ld('buffer_load_dwordx4 v%d, %s, s%d offen%s lds' % (vT[0], sr(sOS, 4), sT1, QF))
    if K1LATE: k1()
    e(m0imm(0)); e('s_sub_u32 s%d, s%d, %d' % (sX, sX, KEND)); ld(dv(0)); ld(dv(1)); e(VADV)
    e(m0imm(KBASE+2*SLOT)); e('s_nop 0'); ld(dk(0)); ld(dk(1)); e(KADV)
    e(m0imm(SLOT)); e('s_nop 0'); ld(dv(0)); ld(dv(1)); e(VADV)
WMUSE = 0
for row in table: WMUSE |= (row[3] >> 24) & 63
CPF = opt('cpf', '')
def cpf():
    e('s_getpc_b64 s[58:59]')
    e('s_lshr_b32 s%d, s2, 3' % sT2)
    e('s_lshl_b32 s%d, s%d, 2' % (sT2, sT2))
    e('s_add_u32 s%d, s%d, s%d' % (sT2, sT2, sW))
    e('s_lshl_b32 s%d, s%d, 7' % (sT2, sT2))
    e('s_add_u32 s58, s58, s%d' % sT2)
    e('s_addc_u32 s59, s59, 0')
    e('s_load_dword s60, s[58:59], 0')
    if '2' in CPF: e('s_load_dword s61, s[58:59], 64')
if 'e' in CPF: cpf()
ldseq({})
if 'l' in CPF: cpf()
if flag('iss'): tkflush(); FINE = False
if flag('st0'): e('s_memrealtime s[76:77]'); e('s_waitcnt lgkmcnt(0)'); e('s_mov_b32 s79, s76')
if PF:
    sh = {64: 2, 128: 1}[PFG]
    e('v_lshrrev_b32 v%d, %d, v%d' % (vRD, sh, vLane))
    e('v_and_b32 v%d, %d, v%d' % (vX, (1 << sh)-1, vLane))
    e('v_lshlrev_b32 v%d, 12, v%d' % (vRD, vRD))
    e('s_lshl_b32 s%d, s%d, 3' % (sT0, sW))
    e('v_lshl_add_u32 v%d, v%d, %d, v%d' % (vRD, vX, 8-sh, vRD))
    for i in range(NT):
        e('s_lshr_b32 s%d, s%d, s%d' % (sT1, 56+i, sT0))
        e('s_and_b32 s%d, s%d, 0xff' % (sT1, sT1))
        e('s_lshl_b32 s%d, s%d, %d' % (sT1, sT1, 18-sh))
        e('s_add_u32 s%d, s%d, s%d' % (sT1, sT1, sD))
        e('buffer_load_dword v%d, v%d, %s, s%d offen' % (vR[i % 2], vRD, sr(sVS if i % 2 else sKS, 4), sT1))
if STAMP:
    e('s_and_b32 s65, s65, 0xffff')
    e('s_mov_b32 s66, 0x1000000')
    e('s_mov_b32 s67, 0x20000')
    e('s_lshl_b32 s70, s2, 2')
    e('s_add_u32 s70, s70, s%d' % sW)
    e('s_lshl_b32 s70, s70, 6')
e('s_bfe_u32 s%d, s%d, 0x20014' % (sPri, sD+3))
if PPRO is not None: e('s_setprio %d' % int(PPRO))
else: prio_loop()
e('v_and_b32 v%d, 7, v%d' % (vX, vLane))
e('v_mul_u32_u24 v%d, %d, v%d' % (vAKc, PS, vX))
e('v_bfe_u32 v%d, v%d, 3, 1' % (vT[1], vLane))
e('v_lshl_add_u32 v%d, v%d, 8, v%d' % (vAKc, vT[1], vAKc))
e('v_lshl_add_u32 v%d, v%d, 4, v%d' % (vAKc, vY, vAKc))
e('v_add_u32 v%d, %d, v%d' % (vAKc, KEND, vAKc))
e(set_ka(sX))
e('v_bfe_u32 v%d, v%d, 2, 3' % (vAVc, vLane))
e('v_mul_u32_u24 v%d, %d, v%d' % (vAVc, PS, vAVc))
e('v_lshrrev_b32 v%d, 5, v%d' % (vX2, vLane))
e('v_lshl_add_u32 v%d, v%d, 8, v%d' % (vAVc, vX2, vAVc))
e('v_and_b32 v%d, 3, v%d' % (vY2, vLane))
e('v_lshl_add_u32 v%d, v%d, 3, v%d' % (vAVc, vY2, vAVc))
e('v_xor_b32 v%d, v%d, v%d' % (vWc, vX2, vX))
e('v_lshlrev_b32 v%d, 4, v%d' % (vWc, vWc))
e('v_lshl_add_u32 v%d, v%d, 7, v%d' % (vWc, vZ, vWc))
e('v_and_b32 v%d, 1, v%d' % (vY2, vY))
e('v_xor_b32 v%d, v%d, v%d' % (vY2, vY2, vT[1]))
e('v_lshl_add_u32 v%d, v%d, 3, v%d' % (vWc, vY2, vWc))
e('s_and_b32 s%d, s%d, 1' % (sT0, sW))
e('s_lshl_b32 s%d, s%d, 12' % (sT0, sT0))
e('v_add_u32 v%d, s%d, v%d' % (vWc, sT0, vWc))
e('v_lshrrev_b32 v%d, 3, v%d' % (vY2, vLane))
e('v_xor_b32 v%d, v%d, v%d' % (vRDc, vY2, vX))
e('v_lshlrev_b32 v%d, 4, v%d' % (vRDc, vRDc))
e('v_lshl_add_u32 v%d, v%d, 7, v%d' % (vRDc, vY2, vRDc))
e('v_add_u32 v%d, s%d, v%d' % (vRDc, sT0, vRDc))
if flag('st256x'):
    e('v_lshlrev_b32 v%d, 12, v%d' % (vST, vY))
    e('v_lshl_add_u32 v%d, v%d, 4, v%d' % (vST, vZ, vST))
else:
    e('v_lshlrev_b32 v%d, 12, v%d' % (vST, vY2))
    e('v_lshl_add_u32 v%d, v%d, 4, v%d' % (vST, vX, vST))
if PF2:
    e('v_lshrrev_b32 v248, 1, v%d' % vLane)
    e('v_and_b32 v249, 1, v%d' % vLane)
    e('v_lshlrev_b32 v248, 12, v248')
    e('v_lshl_add_u32 v248, v249, 7, v248')
for r in range(8): e('v_mov_b32 v%d, 0' % (vNM+r))
e('s_mov_b32 s%d, 0x%08x' % (sC, f2u(CC)))
e('s_mov_b32 s%d, 0x%08x' % (sThr, f2u(2.0**THRLOG)))
e('s_mov_b32 s%d, 0x%08x' % (sLow, f2u(2.0**-LOWLOG)))
e('s_mov_b32 s%d, s%d' % (sOS, sOp))
e('s_and_b32 s%d, s%d, 0xffff' % (sOS+1, sOp+1))
e('s_mov_b32 s%d, 0x%x' % (sX, kb(0)))
e('s_mov_b32 s%d, %d' % (sVa, 2*SLOT))
e('s_mov_b32 s%d, %d' % (sVrd[0], 3*SLOT))
e('s_mov_b32 s%d, 1' % sFirst)
def qk0_with_prescale(ps, extra):
    for idx in range(16):
        if idx % 4 == 0: e('s_nop 1')
        need('k%d' % qk_frag(idx))
        e(qk(idx, vS[0], A=vV))
        for x in extra.get(idx, []):
            if callable(x): x()
            else: e(x)
        for x in ps[:10]: e(x)
        del ps[:10]
def p1():
    e('s_waitcnt vmcnt(%d)' % ((8 if K1LATE else 6) + NT))
    tickA()
    for f in KORD: e(kread(f, vQ if 'p' in NOPRS else vK, tag='q'))
    if STAMP:
        e('s_getreg_b32 s75, hwreg(HW_REG_HW_ID)')
        e('s_getreg_b32 s76, hwreg(HW_REG_XCC_ID)')
        e('s_and_b32 s75, s75, 0xffff')
        e('s_lshl_b32 s76, s76, 16')
        e('s_or_b32 s75, s75, s76')
        e('v_mov_b32 v250, s74')
        e('v_mov_b32 v251, s75')
        e('v_mov_b32 v252, s70')
        e('s_mov_b64 s[72:73], exec')
        e('s_mov_b64 exec, 1')
        e('buffer_store_dwordx2 v[250:251], v252, s[64:67], 0 offen')
        if flag('st0'):
            e('s_nop 3')
            e('v_mov_b32 v250, s78')
            e('v_mov_b32 v251, s79')
            e('buffer_store_dwordx2 v[250:251], v252, s[64:67], 0 offen offset:24')
        e('s_mov_b64 exec, s[72:73]')
        stamp(1)
    e(set_ka(sX))
    drain()
    e('s_barrier')
    tickB()
    tflush()
    for f in KORD: e(kread(f, vV))

    ps = prescale_ops('p')
    for i, x in enumerate(ps[:40]):
        e(x)
        if i == 9:
            e(m0imm(KBASE+3*SLOT))
            if 'p' in NOPRS: e('s_nop 0')
        if i == 14: e(dk(0))
        if i == 29: e(dk(1)); e(KADV)
    del ps[:40]
    qk0_with_prescale(ps, {1: [m0imm(KBASE+4*SLOT)], 2: [dk(0)], 5: [dk(1)], 6: [KADV]})
    tickA()
    e('s_waitcnt vmcnt(%d)' % (6 + NT))


if not NOIDLE:
    e('s_add_u32 s%d, s%d, s%d' % (sT0, sWq, sD+1))
    e('s_cmp_ge_u32 s%d, s%d' % (sT0, sD+2))
    e('s_cbranch_scc1 L_p1I')
p1()

lab('L_pre0')
del dsq[:]
for x in next_k(sK1, sX): e(x)
e(set_ka(sK1))
e(m0v(sVa))
if USEPRI: prio_loop()
e('s_barrier')
tickB()
for f in KORD: e(kread(f))
e(dv(0))
e('s_and_b32 s%d, s%d, 0xff' % (sT0, sD+3))
e('s_cmp_eq_u32 s%d, 0' % (sD+7))
e('s_cselect_b32 s%d, 2, 6' % sT1)
e('s_cselect_b32 s%d, 1, 0' % sState)
e('s_sub_u32 s%d, s%d, s%d' % (sEv, sT0, sT1))
if PEV:
    e('s_bfe_u32 s%d, s%d, 0x40010' % (sT1, sD+3))
    e('s_sub_u32 s%d, s%d, s%d' % (sEv, sEv, sT1))
    e('s_cmp_eq_u32 s%d, 0' % sT1)
    e('s_cselect_b32 s%d, s%d, 3' % (sState, sState))
for x in next_v(sVrd[1], sVrd[0]): e(x)
e(set_va(sVrd[1]))
for x in next_k(sKrd[0], sK1): e(x)
e(set_ka(sKrd[0]))
e(dv(1)); e(VADV)
tflush()
stamp(2)
if not NOIDLE:
    e('s_add_u32 s%d, s%d, s%d' % (sT0, sWq, sD+1))
    e('s_cmp_ge_u32 s%d, s%d' % (sT0, sD+2))
    e('s_cbranch_scc1 L_step0I')
dsq0 = list(dsq)

handlers = []
def step0():
    lab('L_step0')
    dsq[:] = dsq0
    N = [[] for _ in range(16)]
    G = [sm_slot(0, g, True) for g in range(16)]
    for ks in range(4):
        if ks < 3: N[4*ks+4] += [kread(ks, tag='n')]; N[4*ks+5] += [kread(4+ks, tag='n')]
    N[14] += [kread(3, tag='n')]
    N[15] += [kread(7, tag='n')]
    N[1] += [m0k(sX)]
    N[2] += [dk(0)]
    N[6] += [dk(1)]
    N[7] += [KADV]
    N[10] += next_k(sKrd[1], sKrd[0])
    N[11] += ['s_sub_u32 s%d, s%d, 1' % (sEv, sEv), 's_cbranch_scc1 %s' % L('L_evS'), ('LABEL', 'L_retSx')]
    for g in range(16):
        need('k%d' % qk_frag(g))
        e(qk(g, vS[1]))
        for x in N[g] + G[g]:
            if x[0] == 'LABEL': lab(x[1])
            else: e(x)
    e(m0k(sK1))
    e(ad(0, 15)); e(cv(0, 7))
    e(set_ka(sKrd[1]))
    e('v_subrev_u32 v%d, s%d, v%d' % (vX, sLow, vL[0][0]))
    e('v_subrev_u32 v%d, s%d, v%d' % (vY, sLow, vL[0][1]))
    e('s_sub_u32 s%d, s%d, s%d' % (sT0, sThr, sLow))
    e('v_max_u32 v%d, v%d, v%d' % (vX, vX, vY))
    e('v_cmp_lt_u32 vcc, s%d, v%d' % (sT0, vX))
    e('s_cmp_eq_u32 s%d, 0' % sFirst)
    e('s_cbranch_scc1 %s' % L('L_s0w'))
    e('s_waitcnt vmcnt(6)')
    lab('L_s0w')
    e('s_cbranch_vccnz L_fbS')
    lab('L_fbretS')

DPOS0 = [int(x) for x in opt('dp0', '23,24,26,27,28,30,0').split(',')]
DPOS = [int(x) for x in opt('dp', '23,24,26,27,28,30,0').split(',')]
def body(p, tag, nxt, first=False, loop=False):
    lab('L_ret%s' % tag)
    INLOOP[0] = not first
    tickA()
    drain(vm=10)
    e('s_barrier')
    tickB()
    N = [[] for _ in range(32)]
    G = [[] for _ in range(32)]
    for q in range(4):
        x = 4*q; g = 7*q
        G[g] = [ex(p, x)]; G[g+1] = [ex(p, x+1)]; G[g+2] = [ad(p, x), cv(p, 2*q)]
        G[g+3] = [ex(p, x+2)]; G[g+4] = [ex(p, x+3)]; G[g+5] = [ad(p, x+1), ad(p, x+2)]; G[g+6] = [ad(p, x+3), cv(p, 2*q+1)]
    G[28] = check_ops(p)
    dp = DPOS if not first else DPOS0
    if dp[6]:
        for g in range(8): N[g] += [VREADS[2*g], VREADS[2*g+1]]
    else:
        for g in range(16): N[g].append(VREADS[g])
    for g in range(8): N[16+g].append(kread(KORD[g]))
    N[dp[0]] += [m0v(sVrd[1-p])]
    N[dp[1]] += [dv(0)]
    N[dp[1]+1] += [xor_v(sVrd[1-p])]
    N[dp[2]] += [dv(1)]
    N[dp[3]] += [m0k(sKrd[1-p])]
    N[dp[4]] += [dk(0)]
    N[29] += [VADV]
    G[29] = [set_va(sVrd[1-p])]
    N[dp[5]] += [dk(1)]
    N[30] += next_k(sKrd[1-p], sKrd[p])
    N[31] += [KADV]
    G[31] = [set_ka(sKrd[1-p])]
    if first:
        N[1] += [dk(0)]; N[4] += [dk(1)]; N[5] += [KADV]
        N[6] += ['s_sub_u32 s%d, s%d, 1' % (sEv, sEv), 's_cbranch_scc1 %s' % L('L_evF'), ('LABEL', 'L_retFx')]
        if PF2:
            pf = ['s_cmp_eq_u32 s%d, 0' % sFirst, 's_cbranch_scc0 %s' % L('L_npf'),
                  's_lshl_b32 s%d, s%d, 17' % (sT0, sW), 's_add_u32 s%d, s%d, s%d' % (sT0, sT0, sD), 's_add_u32 s%d, s%d, %d' % (sT0, sT0, PF2T*BLK),
                  'buffer_load_dword v249, v248, %s, s%d offen' % (sr(sVS, 4), sT0)]
            if PF2 >= 2:
                pf += ['s_add_u32 s%d, s%d, %d' % (sT1, sT0, 4*BLK), 'buffer_load_dword v249, v248, %s, s%d offen' % (sr(sVS, 4), sT1)]
            if PF2 >= 3:
                pf += ['buffer_load_dword v249, v248, %s, s%d offen' % (sr(sKS, 4), sT1)]
            N[PF2G] += pf + [('LABEL', 'L_npf')]
    for g in range(32):
        if g == 16: need('v7')
        if g == 24: need('v15')
        if g < 16: e(qk(g, vS[1-p], order=QO))
        else: e(pv(PO(g-16), vP[1-p], zero=first))
        if 'm' in XL and g in (21, 27) and not IDLE[0]:
            j = int(g == 27)
            e('v_mfma_f32_16x16x32_bf16 %s, %s, %s, %s' % (vr(248+4*j, 4), vr(vNM+4, 4), vr(vP[1-p]+4*j, 4), vr(248+4*j, 4)))
        for x in N[g] + G[g]:
            if x[0] == 'LABEL': lab(x[1])
            else: e(x)
    tflush()
    e('s_sub_u32 s%d, s%d, 1' % (sEv, sEv))
    e('s_cbranch_vccnz L_fb%s' % tag)
    INLOOP[0] = False
    lab('L_fbret%s' % tag)
    if loop: e('s_cbranch_scc0 %s' % L('L_ret%s' % nxt))
    else: e('s_cbranch_scc1 %s' % L('L_ev%s' % nxt))

RT = flag('rt')
def body_short(p):
    tag = 'R%d' % p
    lab('L_ret%s' % tag)
    tickA()
    drain(vm=10)
    e('s_barrier')
    tickB()
    M = [qk(g, vS[1-p]) for g in range(16) if IJ[g % 4][0] == 0] + [pv(g, vP[1-p]) for g in range(16)]
    N = [[] for _ in range(24)]
    G0 = []
    for q in range(4):
        x = 4*q
        G0 += [[ex(p, x)], [ex(p, x+1)], [ad(p, x), cv(p, 2*q)], [ex(p, x+2)], [ex(p, x+3)], [ad(p, x+1), ad(p, x+2)], [ad(p, x+3), cv(p, 2*q+1)]]
    G = [[] for _ in range(24)]
    for k, x in enumerate(G0): G[k*22//28] += x
    G[22] = check_ops(p)
    for g in range(8): N[g] += [VREADS[2*g], VREADS[2*g+1]]
    N[13] += [m0v(sVrd[1-p])]
    N[14] += [dv(0)]
    N[15] += [xor_v(sVrd[1-p])]
    N[17] += [dv(1)]
    N[18] += [m0k(sKrd[1-p])]
    N[19] += [dk(0)]
    N[20] += [VADV]
    G[23] += [set_va(sVrd[1-p])]
    N[22] += [dk(1)] + next_k(sKrd[1-p], sKrd[p])
    N[23] += [KADV]
    for g in range(24):
        if g == 8: need('v7')
        if g == 16: need('v15')
        e(M[g])
        for x in N[g] + G[g]: e(x)
    tflush()
    e('s_cbranch_vccnz L_fb%s' % tag)
    lab('L_fbret%s' % tag)

def fallback(p, ret, has_next=True, first=False, ret2=None):
    e('s_nop 7'); e('s_nop 1')
    for x in max8(vS[p], vX, vY): e(x)
    emit_fill(xlane('v_max_f32', vX, vY), [])
    if not first:
        e('v_max_f32 v%d, 0, v%d' % (vX, vX))
        e('v_max_f32 v%d, 0, v%d' % (vY, vY))
        e('v_exp_f32 v%d, -v%d' % (vX2, vX))
        e('v_exp_f32 v%d, -v%d' % (vY2, vY))
    for x in range(16):
        e('v_sub_f32 v%d, v%d, v%d' % (vS[p]+x, vS[p]+x, vX if x < 8 else vY))
    if has_next:
        for x in range(16):
            e('v_sub_f32 v%d, v%d, v%d' % (vS[1-p]+x, vS[1-p]+x, vX if x < 8 else vY))
        for r in range(8):
            e('v_sub_f32 v%d, v%d, v%d' % (vNM+r, vNM+r, vX if r < 4 else vY))
    if not first:
        e('v_mul_f32 v%d, v%d, v%d' % (vL[1-p][0], vL[1-p][0], vX2))
        e('v_mul_f32 v%d, v%d, v%d' % (vL[1-p][1], vL[1-p][1], vY2))
        for r in range(64):
            e('v_mul_f32 v%d, v%d, v%d' % (vO+r, vO+r, vX2 if (r % 8) < 4 else vY2))
    for x in range(16):
        for y in sm_slot(p, x, first): e(y)
        e('s_nop 0')
    for x in sm_fin(p): e(x)
    if ret2: e('s_cbranch_scc1 %s' % ret2)
    e('s_branch %s' % ret)

def handler(tag, p, ret):
    lab('L_ev%s' % tag)
    e('s_cmp_eq_u32 s%d, 1' % sState)
    e('s_cbranch_scc1 %s' % L('L_evB%s' % tag))
    if p is not None:
        e('s_cmp_eq_u32 s%d, 2' % sState)
        e('s_cbranch_scc1 %s' % L('L_tail%d' % p))
    if PEV:
        e('s_cmp_eq_u32 s%d, 3' % sState)
        e('s_cbranch_scc0 %s' % L('L_evQ%s' % tag))
        e('s_bfe_u32 s%d, s%d, 0x40010' % (sEv, sD+3))
        e('s_sub_u32 s%d, s%d, 1' % (sEv, sEv))
        e('s_mov_b32 s%d, 1' % sState)
        e('s_setprio 0')
        e('s_bitcmp1_b32 s%d, 30' % (sD+3))
        e('s_cbranch_scc0 %s' % L('L_evP%s' % tag))
        e('s_setprio 1')
        lab('L_evP%s' % tag)
        e('s_bitcmp1_b32 s%d, 31' % (sD+3))
        e('s_cbranch_scc0 %s' % L(ret))
        e('s_setprio 2')
        e('s_branch %s' % L(ret))
        lab('L_evQ%s' % tag)
    e('s_mov_b64 %s, %s' % (sr(sKS, 2), sr(sQp, 2)))
    e('s_mov_b32 s%d, s%d' % (sKS+2, sD+6))
    e('s_mov_b32 s%d, s%d' % (sKoff, sD+5))
    e('s_mov_b32 s%d, 3' % sEv)
    e('s_mov_b32 s%d, 1' % sState)
    e('s_branch %s' % L(ret))
    lab('L_evB%s' % tag)
    e('s_mov_b64 %s, %s' % (sr(sKS, 2), sr(sKp, 2)))
    e('s_mov_b32 s%d, s%d' % (sKS+2, sD+6))
    e('s_mov_b32 s%d, s%d' % (sVS+2, sD+6))
    e('s_mov_b32 s%d, s%d' % (sKoff, sD+4))
    e('s_mov_b32 s%d, s%d' % (sVoff, sD+4))
    e('s_mov_b32 s%d, 0' % sEv)
    if RT and p is not None and not IDLE[0]:
        e('s_bfe_u32 s%d, s%d, 0x80008' % (sT0, sD+3))
        e('s_cmp_le_u32 s%d, 16' % sT0)
        e('s_cbranch_scc1 L_retR%d' % p)
    e('s_mov_b32 s%d, 2' % sState)
    e('s_branch %s' % L(ret))

def masks(p, ni=2):
    mk = []
    for i in range(ni):
        for r in range(4):
            mk.append('v_cmp_lt_i32 %s, %d, v%d' % (sr(sM[r], 2), 16*i+r, vX))
        for j in range(2):
            for r in range(4):
                x = vS[p]+8*j+4*i+r
                mk.append('v_cndmask_b32 v%d, v%d, v%d, %s' % (x, vY, x, sr(sM[r], 2)))
    return mk
def tail1(p, last, short=False):
    sfx = 'R' if short else ''
    if last: lab('L_tailE%s%d' % (sfx, p))
    else:
        lab('L_tail%s%d' % (sfx, p))
        e('s_cmp_eq_u32 s%d, 0' % (sD+7))
        e('s_cbranch_scc1 %s' % L('L_tailE%s%d' % (sfx, p)))
    del dsq[:]
    if last and IDLE[0]:
        tickA()
        e('s_waitcnt vmcnt(6)')
        e('s_barrier')
        tickB()
        tflush()
        e('s_branch L_fin')
        return
    if last: e('s_xor_b32 s%d, s%d, 0x%x' % (sT1, sVrd[1-p], VX2))
    else: e(m0v(sVrd[1-p]))
    e('s_bfe_u32 s%d, s%d, 0x80008' % (sT0, sD+3))
    e('v_lshrrev_b32 v%d, 4, v%d' % (vX, vLane))
    e('v_lshlrev_b32 v%d, 2, v%d' % (vX, vX))
    e('v_sub_u32 v%d, s%d, v%d' % (vX, sT0, vX))
    e('v_mov_b32 v%d, 0xff800000' % vY)
    if last: e('v_add_u32 v%d, s%d, v%d' % (vAV2, sT1, vAVc))
    tickA()
    drain(vm=6 if last else 10)
    e('s_barrier')
    tickB()
    mk = masks(p, 1 if short else 2)
    nm_ = len(mk)//4
    for g in range(4):
        e(VREADS[2*g]); e(VREADS[2*g+1])
        for x in mk[nm_*g:nm_*g+nm_]: e(x)
    N = [[] for _ in range(16)]
    G = [sm_slot(p, g) for g in range(16)]
    fin_ = sm_fin(p)
    if short:
        xs = [0, 1, 2, 3, 8, 9, 10, 11]
        G = [[] for _ in range(16)]
        for m_, x in enumerate(xs):
            G[m_] += [ex(p, x)]
            if m_ >= 1: G[m_] += [ad(p, xs[m_-1])]
            if m_ >= 2 and m_ % 2 == 0: G[m_] += [cv(p, xs[m_-2]//2)]
        G[8] += [ad(p, 11), cv(p, 5)]
        for g, k in zip((10, 10, 12, 12), (2, 3, 6, 7)): G[g] += ['v_mov_b32 v%d, 0' % (vP[p]+k)]
        fin_ = []
    for g in range(8): N[g] += [VREADS[8+g]]
    if last:
        for g in range(8): N[8+g] += [vread(2*g, vK, vAV2, 'u'), vread(2*g+1, vK, vAV2, 'u')]
        nk = next_k(sX, sKrd[p])
        sl = [nk[0], nk[1],
              's_cmp_eq_u32 s%d, 1' % sW, 's_cselect_b32 s%d, s%d, s%d' % (sX, sKrd[p], sX),
              's_cmp_eq_u32 s%d, 0' % sW, 's_cselect_b32 s%d, s%d, s%d' % (sX, sKrd[1-p], sX),
              's_add_u32 s%d, s%d, %d' % (sX, sX, KEND),
              's_cmp_eq_u32 s%d, 3' % sW, 's_cselect_b32 s%d, s%d, s%d' % (sX, sVrd[1-p], sX),
              's_and_b32 s%d, s%d, 1' % (sT0, sW), 's_lshl_b32 s%d, s%d, 12' % (sT0, sT0), 's_sub_u32 s%d, s%d, s%d' % (sT0, sX, sT0)] + epi_soff()
        for g in range(9):
            N[g] += sl[:2]; del sl[:2]
        assert not sl
        ea = epi_addr()
        for g, x in zip((9, 11, 13, 15, 15), ea): G[g] += [x]
    else:
        N[8] += [dv(0)]
        N[9] += [xor_v(sVrd[1-p])]
        N[10] += ['s_sub_u32 s%d, s%d, %d' % (sX, sKrd[1-p], SLOT)]
        N[11] += ['s_cmp_lt_u32 s%d, 0x%x' % (sX, kb(0))]
        N[12] += ['s_cselect_b32 s%d, 0x%x, s%d' % (sX, kb(NK-1), sX)]
        N[13] += [dv(1)]
        N[14] += ['s_mov_b32 s%d, s%d' % (sVa, sVrd[p])]
        N[15] += [VADV]
        G[15] += [set_va(sVrd[1-p])]
    for g in range(16):
        if g % 2 == 0: need('v%d' % (g+1))
        e(pv(g, vP[1-p]))
        if last:
            for x in G[g][:1] + N[g] + G[g][1:]: e(x)
        else:
            for x in N[g] + G[g]: e(x)
    for x in fin_: e(x)
    for x in check_ops(p): e(x)
    if p == 0 and not last:
        e('s_mov_b32 s%d, s%d' % (sVrd[0], sVrd[1]))
    tflush()
    e('s_cmp_eq_u32 s%d, 0' % (sD+7))
    e('s_cbranch_vccnz L_fbT%s%d' % (sfx, p))
    if short:
        e('s_branch L_fbret%s%d' % ('E' if last else 'T', p))
        return
    if last:
        lab('L_fbretE%d' % p)
        final(p)
    else:
        lab('L_fbretT%d' % p)
        trans(p)

def norm_stage(dt, off=0):
    ops = []
    for j in range(2):
        b = vO + 8*dt + 4*j
        for r in range(4): ops.append('v_mul_f32 v%d, v%d, v%d' % (b+r, b+r, vR[j]))
        if 'n' in PK:
            sel = 'op_sel:[0,1] op_sel_hi:[1,1]' if vR[j] % 2 else 'op_sel_hi:[1,0]'
            for r in (0, 2):
                ops[-4+r] = 'v_pk_mul_f32 %s, %s, %s %s' % (vr(b+r, 2), vr(b+r, 2), vr(vR[j] & ~1, 2), sel)
                ops[-3+r] = None
        ops.append('v_cvt_pk_bf16_f32 v%d, v%d, v%d' % (b, b, b+1))
        ops.append('v_cvt_pk_bf16_f32 v%d, v%d, v%d' % (b+1, b+2, b+3))
    a, b_ = ops[:6], ops[6:]
    seq = a[:4] + b_[:2] + a[4:] + b_[2:4]
    seq.append(('ds_write_b64 v%d, %s offset:%d' % (vW + dt % 4, vr(vO+8*dt, 2), off), 'w'))
    seq += b_[4:]
    seq.append(('ds_write_b64 v%d, %s offset:%d' % (vW + dt % 4, vr(vO+8*dt+4, 2), off + 2048), 'w'))
    return seq
def rdback(rho, off=0):
    ops = []
    for k in range(4):
        b = vO+32*rho+4*k
        if k % 2 == 0: ops.append(('ds_read_b128 %s, v%d offset:%d' % (vr(b, 4), vRD, off + 1024*k), 'r%d' % k))
        else:
            ops.append(('ds_read_b64 %s, v%d offset:%d' % (vr(b, 2), vRD, off + 1024*k + 8), 'r%d' % k))
            ops.append(('ds_read_b64 %s, v%d offset:%d' % (vr(b+2, 2), vRD, off + 1024*k), 'r%d' % k))
    return ops
SOFF = [sT1, sT2, sT3, sT4]
def store(rho, k):
    need('r%d' % k)
    if flag('st256x'):
        m = 4*rho + k
        if m == 0: e('v_add_u32 v%d, 0x4000, v%d' % (vAV2, vST))
        e('buffer_store_dwordx4 %s, v%d, %s, s%d offen%s' % (vr(vO+32*rho+4*k, 4), vAV2 if m % 2 else vST, sr(sOS, 4), SOFF[m//2], SF))
        return
    e('buffer_store_dwordx4 %s, v%d, %s, s%d offen offset:%d%s' % (vr(vO+32*rho+4*k, 4), vST, sr(sOS, 4), SOFF[k], 128*rho, SF))
def epi_addr():
    return ['v_add_u32 v%d, s%d, v%d' % (vW, sT0, vWc),
            'v_add_u32 v%d, s%d, v%d' % (vRD, sT0, vRDc),
            'v_xor_b32 v%d, 32, v%d' % (vW+1, vW),
            'v_xor_b32 v%d, 64, v%d' % (vW+2, vW),
            'v_xor_b32 v%d, 96, v%d' % (vW+3, vW)]
def epi_soff():
    return ['s_add_u32 s%d, s%d, s%d' % (sT1, sWq, sD+1),
            's_mov_b32 s%d, s%d' % (sOS+2, sD+2),
            's_add_u32 s%d, s%d, %d' % (sT2, sT1, 8*4096),
            's_add_u32 s%d, s%d, %d' % (sT3, sT1, 16*4096),
            's_add_u32 s%d, s%d, %d' % (sT4, sT1, 24*4096)]
def rcps(p):
    return ['v_rcp_f32 v%d, v%d' % (vR[0], vL[p][0]), 'v_rcp_f32 v%d, v%d' % (vR[1], vL[p][1])]
def spread(main, extra):
    for i, x in enumerate(main):
        for y in extra.get(i, []):
            if callable(y): y()
            else: e(y)
        e(x)

FPK = int(opt('fpk', 99))
FST = [int(x) for x in opt('fst', '18,24').split(',')]
def final(p):
    if PEPI is not None: e('s_setprio %d' % int(PEPI))
    stamp(5)
    a, b = vL[p]
    U = [(4*(q//2) + t, q % 2) for q in range(4) for t in range(4)]
    def M(g): return lambda: (need('u%d' % (2*U[g][0]+1)), e(pv(U[g], vP[p], A=vK)))
    head = [M(0), 'v_permlane32_swap_b32 v%d, v%d' % (a, b), 'v_add_f32 v%d, v%d, v%d' % (a, a, b), 'v_mov_b32 v%d, v%d' % (b, a),
            M(1), 's_nop 0', 'v_permlane16_swap_b32 v%d, v%d' % (a, b), 'v_add_f32 v%d, v%d, v%d' % (a, a, b), 'v_mov_b32 v%d, v%d' % (b, a),
            M(2), 's_nop 0', 'v_permlane32_swap_b32 v%d, v%d' % (a, b), rcps(p)[0], M(3), rcps(p)[1], M(4)]
    for x in head:
        if callable(x): x()
        else: e(x)
    tk()
    seq = []
    for (dt, j) in U:
        x = vO + 8*dt + 4*j
        u = ['v_mul_f32 v%d, v%d, v%d' % (x+r, x+r, vR[j]) for r in range(4)]
        if len(seq)//7 >= FPK:
            sel = 'op_sel:[0,1] op_sel_hi:[1,1]' if vR[j] % 2 else 'op_sel_hi:[1,0]'
            u = ['v_pk_mul_f32 %s, %s, %s %s' % (vr(x, 2), vr(x, 2), vr(vR[j] & ~1, 2), sel), None,
                 'v_pk_mul_f32 %s, %s, %s %s' % (vr(x+2, 2), vr(x+2, 2), vr(vR[j] & ~1, 2), sel), None]
        u += ['v_cvt_pk_bf16_f32 v%d, v%d, v%d' % (x, x, x+1), 'v_cvt_pk_bf16_f32 v%d, v%d, v%d' % (x+1, x+2, x+3)]
        u += [('ds_write_b64 v%d, %s offset:%d' % (vW + dt % 4, vr(x, 2), 4096*(dt//4) + 2048*j), 'w')]
        seq += u
    def rd(q):
        rho, j = q//2, q % 2; off = 4096*rho + 2048*j; x = vS[0] + 8*q
        return [('ds_read_b128 %s, v%d offset:%d' % (vr(x, 4), vRD, off), 'r%d' % (2*q)),
                ('ds_read_b64 %s, v%d offset:%d' % (vr(x+4, 2), vRD, off + 1024 + 8), 'r%d' % (2*q+1)),
                ('ds_read_b64 %s, v%d offset:%d' % (vr(x+6, 2), vRD, off + 1024), 'r%d' % (2*q+1))]
    def st(k):
        q = k//2; rho, j = q//2, q % 2
        def f():
            need('r%d' % k)
            if flag('st256x'):
                if k == 0: e('v_add_u32 v%d, 0x4000, v%d' % (vAV2, vST))
                e('buffer_store_dwordx4 %s, v%d, %s, s%d offen%s' % (vr(vS[0]+4*k, 4), vAV2 if k % 2 else vST, sr(sOS, 4), SOFF[k//2], SF))
                return
            e('buffer_store_dwordx4 %s, v%d, %s, s%d offen offset:%d%s' % (vr(vS[0]+4*k, 4), vST, sr(sOS, 4), SOFF[2*j + k % 2], 128*rho, SF))
        return f
    ex_ = {}
    for g in range(5, 16): ex_.setdefault(4*(g-5) + 3, []).append(M(g))
    for q in range(3):
        ex_.setdefault(28*(q+1), []).extend(rd(q))
        ex_.setdefault(28*(q+1) + FST[0], []).append(st(2*q))
        ex_.setdefault(28*(q+1) + FST[1] + (q < 2 and FST[1] % 28 == 0), []).append(st(2*q+1))
    INFIN[0] = True
    spread(seq, ex_)
    INFIN[0] = False
    tk()
    for x in rd(3): e(x)
    for k_ in sorted(ex_):
        if k_ >= len(seq):
            for y in ex_[k_]: y()
    st(6)(); st(7)()
    tk(); tk()
    tflush()
    tkflush()
    e('s_branch L_fin')
def trans(p):
    lab('L_trans%d' % p)
    del dsq[:]
    if PTR is not None: e('s_setprio %d' % int(PTR))
    e('s_lshr_b32 s%d, s%d, 22' % (sK1, sD+7))
    e('s_add_u32 s%d, s%d, s%d' % (sK1, sK1, sW))
    e('s_and_b32 s%d, s%d, 3' % (sK1, sK1))
    if IDLE[0]:
        e('s_lshl_b32 s%d, s%d, 17' % (sT0, sK1))
        e('s_add_u32 s%d, s%d, s%d' % (sT0, sT0, sD+5))
        e('s_cmp_ge_u32 s%d, s%d' % (sT0, sD+6))
        e('s_cbranch_scc0 L_trans%d' % p)
    e('s_add_u32 s%d, s%d, 1' % (sT0, sK1))
    e('s_mul_i32 s%d, s%d, %d' % (sT0, sT0, SLOT))
    e('s_add_u32 s%d, s%d, s%d' % (sT0, sT0, sX))
    e('s_cselect_b32 s%d, 0x%x, 0' % (sT1, kb(0)))
    e('s_add_u32 s%d, s%d, s%d' % (sT0, sT0, sT1))
    e(set_ka(sT0))
    e('s_cmp_ge_u32 s%d, 2' % sW)
    e('s_cselect_b32 s%d, s%d, s%d' % (sT0, sVrd[0], sVa))
    tickA()
    e('s_waitcnt vmcnt(6)')
    e('s_barrier')
    tickB()
    stamp(3)
    qr = [kread(f, vQ if 't' in NOPRS else vK, tag='q') for f in KORD]
    fill = VREADS[:6] + qr[:2] + VREADS[6:] + qr[2:]
    for _ in range(6): e(fill.pop(0))
    emit_fill(xlane('v_add_f32', vL[p][0], vL[p][1])[1:], fill)
    tk()
    ps = prescale_ops('t')
    nm = ['v_mov_b32 v%d, 0' % (vNM+r) for r in range(8)]
    pre = {0: rcps(p) + nm[:2], 1: epi_addr()[:3] + nm[2:4], 2: epi_addr()[3:] + nm[4:]}
    so = epi_soff() + ['s_lshl_b32 s%d, s%d, 17' % (sWq, sK1)] + next_k(sKrd[0], sX)
    for g in range(8):
        if g % 2 == 0: need('v%d' % (g+1))
        e(pv(g, vP[p]))
        for x in fill[:2]: e(x)
        del fill[:2]
        if g < 3:
            for x in pre[g]: e(x)
        else:
            if g == 3: need('q0')
            if g == 4: e(set_ka(sX))
            if g == 6: need('q4')
            for x in so[:2]: e(x)
            del so[:2]
            for x in ps[:6]: e(x)
            del ps[:6]
    assert not fill and not so
    e(m0k(sKrd[0]))
    for x in ps[:10]: e(x)
    del ps[:10]
    tk()
    drain(vm=2)
    e('s_barrier')
    tk()
    nk = next_k(sKrd[0], sKrd[0])
    N = {8: [dk(0)], 10: [dk(1)], 11: [KADV] + nk + [m0k(sKrd[0])], 12: [dk(0)], 14: [dk(1)], 15: [KADV] + nk + [m0k(sKrd[0])]}
    for g in range(8, 16):
        e(pv(g, vP[p]))
        for x in N.get(g, []): e(x)
        ns = norm_stage((g-8)//2)
        for x in (ns[:7] if g % 2 == 0 else ns[7:]): e(x)
    tk()
    for x in rdback(0): e(x)
    for f in KORD: e(kread(f, vV))
    ns = norm_stage(4) + norm_stage(5) + norm_stage(6) + norm_stage(7)
    spread(ns, {10: [lambda: store(0, 0)], 22: [lambda: store(0, 1)], 34: [lambda: store(0, 2)], 46: [lambda: store(0, 3)]})
    tk()
    for x in rdback(1): e(x)
    qk0_with_prescale(ps, {0: [dk(0)], 2: [dk(1)], 3: [KADV] + nk + [m0k(sKrd[0])],
                           4: [lambda: store(1, 0)], 6: [lambda: store(1, 1)], 8: [lambda: store(1, 2)], 10: [lambda: store(1, 3)],
                           12: [dk(0), 's_mov_b64 %s, %s' % (sr(sD, 2), sr(sD+4, 2)), 's_mov_b64 %s, %s' % (sr(sD+2, 2), sr(sD+6, 2))],
                           13: ['s_mov_b64 %s, 0' % sr(sD+4, 2), 's_mov_b64 %s, 0' % sr(sD+6, 2), 's_mov_b32 s%d, 0' % sFirst],
                           15: [dk(1), KADV]})
    tk(); tk()
    tflush()
    tkflush()
    stamp(4)
    tickA()
    e('s_waitcnt vmcnt(12)')
    e('s_branch L_pre0')

def mainloop():
    step0()
    body(1, 'F', '0', first=True)
    body(0, '0', '1')
    body(1, '1', '0', loop=True)
    handler('0', 0, 'L_ret0')
    handler('1', 1, 'L_ret1')
    handler('F', None, 'L_retFx')
    handler('S', None, 'L_retSx')
mainloop()
for p in (0, 1):
    tail1(p, False)
    tail1(p, True)
if RT:
    for p in (0, 1):
        body_short(p)
        tail1(1-p, False, True)
        tail1(1-p, True, True)
if not NOIDLE:
    IDLE[0] = True
    mainloop()
    for p in (0, 1):
        tail1(p, False)
        tail1(p, True)
    lab('L_p1')
    del dsq[:]
    p1()
    e('s_branch L_pre0')
    IDLE[0] = False
for tag, p in (('F', 1), ('0', 0), ('1', 1)):
    lab('L_fb%s' % tag)
    fallback(p, 'L_fbret%s' % tag)
if RT:
    for p in (0, 1):
        lab('L_fbR%d' % p)
        fallback(p, 'L_fbretR%d' % p)
for p in (0, 1):
    if RT:
        lab('L_fbTR%d' % p)
        for x in (4, 5, 6, 7, 12, 13, 14, 15): e('v_mov_b32 v%d, 0xff800000' % (vS[p]+x))
    lab('L_fbT%d' % p)
    fallback(p, 'L_fbretT%d' % p, has_next=False, ret2='L_fbretE%d' % p)
lab('L_fbS')
fallback(0, 'L_fbretS', first=True)

lab('L_fin')
if REP:
    e('s_waitcnt vmcnt(0) lgkmcnt(0)')
    e('s_barrier')
    e('s_sub_u32 s79, s79, 1')
    e('s_cbranch_scc0 L_again')
if STAMP:
    stamp(6)
    e('s_waitcnt vmcnt(0)')
    stamp(7)
if PROF:
    e('s_waitcnt vmcnt(0)')
    e('s_memtime s[68:69]')
    e('s_memrealtime s[72:73]')
    e('s_waitcnt lgkmcnt(0)')
    e('v_writelane_b32 v253, s76, 62')
    e('v_writelane_b32 v254, s74, 62')
    e('v_writelane_b32 v253, s68, 63')
    e('v_writelane_b32 v254, s72, 63')
    e('v_writelane_b32 v253, s71, 61')
    e('s_and_b32 s65, s65, 0xffff')
    e('s_mov_b32 s66, 0x1000000')
    e('s_mov_b32 s67, 0x20000')
    e('s_lshl_b32 s70, s2, 2')
    e('s_add_u32 s70, s70, s%d' % sW)
    e('s_lshl_b32 s70, s70, 9')
    e('v_lshlrev_b32 v252, 2, v%d' % vLane)
    e('s_nop 4')
    e('buffer_store_dword v253, v252, s[64:67], s70 offen')
    e('buffer_store_dword v254, v252, s[64:67], s70 offen offset:256')
lab('L_end')
e('s_endpgm')
out.append('.p2align 6')
out.append('.type L_table,@object')
lab('L_table')
for row in table:
    out.append('    .long ' + ', '.join('0x%08x' % x for x in row))
out.append('.size L_table, %d' % (ROW*NWG))
out.append('''.section .rodata,"a"
.p2align 6
.amdhsa_kernel %s_kernel
  .amdhsa_next_free_vgpr %d
  .amdhsa_next_free_sgpr %d
  .amdhsa_accum_offset %d
  .amdhsa_group_segment_fixed_size 0
  .amdhsa_kernarg_size 56
  .amdhsa_user_sgpr_count 2
  .amdhsa_user_sgpr_kernarg_segment_ptr 1
  .amdhsa_system_sgpr_workgroup_id_x 1
.end_amdhsa_kernel''' % (NAME, NVGPR, NSGPR, NVGPR))
dst = [a for a in sys.argv[1:] if not a.startswith('--')]
open(dst[0] if dst else 'cdna_kernels/%s.s' % NAME, 'w').write('\n'.join(out) + '\n')
```

```python
import sys, math, struct, json
CU = [0, 321, 555, 878, 1299, 1551, 1670, 1878, 2181, 2351, 2646, 2810, 3248, 3471, 3811, 4169, 4391]
NAME = "standalone__varlen_attn_packed__ragged"
HEADER = open('cdna_kernels/%s.s.ref' % NAME).read().split('; Override launch')[0]

def opt(name, default=None):
    for a in sys.argv[1:]:
        if a.startswith('--%s=' % name): return a.split('=', 1)[1]
    return default
def flag(name): return ('--' + name) in sys.argv
STAMP = flag('stamp'); PROF = flag('prof'); CLK = flag('clk'); FINE = flag('fine')
QF = opt('qf', 'nt'); KF = opt('kf', 'nt'); SF = opt('sf', '')
QF = (' ' + QF.replace('+', ' ')) if QF else ''
KF = (' ' + KF.replace('+', ' ')) if KF else ''
SF = (' ' + SF.replace('+', ' ')) if SF else ''
THRLOG = int(opt('thr', 14))
LOWLOG = int(opt('low', 40))
SCHED = opt('sched', 'a')
CLS = opt('cls', '01')
PRI = opt('pri', '00')
PPRO = opt('ppro', None)
PEPI = opt('pepi', None)
PTR = opt('ptr', None)
USEPRI = PPRO is not None or PEPI is not None or PTR is not None
NOIDLE = flag('noidle')
XL = opt('xl', '')
BW = dict((int(a), int(b)) for a, b in (x.split(':') for x in opt('bw', '4:2').split(',') if x))
WMD = int(opt('wmd', '10'))
K1LATE = flag('k1late')
PK = opt('pk', '')

out = []
IDLE = [False]
INLOOP = [False]
INFIN = [False]
FX = opt('fx', '')
dsq = []
def e(s, tag=None):
    if s is None: return
    if isinstance(s, tuple): s, tag = s
    if INLOOP[0] and XL:
        if 'd' in XL and s.startswith('buffer_load'): return
        if 'v' in XL and s.startswith('ds_read_b64'): return
        if 'k' in XL and s.startswith('ds_read_b128'): return
        if 'e' in XL and s.startswith('v_exp'): return
        if 'a' in XL and s.startswith('v_add_f32'): return
        if 'c' in XL and s.startswith('v_cvt'): return
        if 'b' in XL and s.startswith('s_barrier'): return
        if 'h' in XL and (s.startswith('v_max_f32') or s.startswith('v_cmp_lt_f32') or s.startswith('s_cbranch_vccnz')): return
    if INFIN[0] and FX:
        if 's' in FX and s.startswith('buffer_store'): return
        if 'w' in FX and s.startswith('ds_write'): return
        if 'r' in FX and s.startswith('ds_read'): return
        if 'm' in FX and s.startswith('v_mfma'): return
        if 'v' in FX and (s.startswith('v_mul') or s.startswith('v_pk_mul')): return
        if 'c' in FX and s.startswith('v_cvt'): return
    if s.startswith('ds_'): dsq.append(tag)
    if IDLE[0]:
        if s.startswith('ds_') or s.startswith('s_nop'): return
        if s.startswith('v_') and not s.startswith('v_add_u32') and not s.startswith('v_writelane') and not s.startswith('v_mov_b32 v25'): return
        if s.startswith('s_waitcnt lgkmcnt') and not (PROF or STAMP): return
        if s.startswith('s_cbranch_vccnz'): return
        if s.startswith('s_add_u32 m0'):
            out.append('    ' + s); s = 's_nop 0'
    out.append('    ' + s)
def need(*tags, vm=None):
    last = -1
    for t in tags:
        idx = [i for i, x in enumerate(dsq) if x == t]
        if idx: last = max(last, idx[-1])
    if last < 0:
        if vm is not None: e('s_waitcnt vmcnt(%d)' % vm)
        return
    n = min(15, len(dsq) - 1 - last)
    e('s_waitcnt %slgkmcnt(%d)' % ('vmcnt(%d) ' % vm if vm is not None else '', n))
    del dsq[:len(dsq) - n]
def drain(vm=None):
    e('s_waitcnt %slgkmcnt(0)' % ('vmcnt(%d) ' % vm if vm is not None else ''))
    del dsq[:]
def lab(s): out.append(s + ('I' if IDLE[0] else '') + ':')
def L(s): return s + ('I' if IDLE[0] else '')

NB = [(CU[s+1]-CU[s]+31)//32 for s in range(16)]
def make_schedule():
    byn = {}
    for s in range(16):
        for hs in range(2):
            for g in range((NB[s]+3)//4):
                byn.setdefault(NB[s], []).append((s, hs, g))
    def take(n): return byn[n].pop(0)
    plan = ([([14], [12])]*6 + [([14], [14])]*2 + [([14], [11])]*6 + [([7, 7], [11])]*6 + [([8, 6], [11])]*6
            + [([10, 4], [10])]*2 + [([10, 6], [10])]*2 + [([10, 8], [10])]*2)
    res = [[[None]*len(a), [None]*len(b)] for a, b in plan]
    for lane in (0, 1):
        for i, p in enumerate(plan):
            res[i][lane][0] = take(p[lane][0])
    for lane in (0, 1):
        for i, p in enumerate(plan):
            if len(p[lane]) > 1: res[i][lane][1] = take(p[lane][1])
    assert all(len(v) == 0 for v in byn.values())
    return [[dict(tasks=res[i][l], cls=int(CLS[l]), pri=int(PRI[l])) for l in (0, 1)] for i in range(32)]
if SCHED.endswith('.json'):
    sched = json.load(open(SCHED))
else:
    base = make_schedule()
    sched = [[[dict(tasks=[[s, ((x+s) & 7) + 8*hs, gq, 0] for (s, hs, gq) in ln['tasks']], cls=ln['cls'], pri=ln['pri']) for ln in cu] for cu in base] for x in range(8)]
seen = set()
for xs in sched:
    for cu in xs:
        for ln in cu:
            for t in ln['tasks']:
                assert tuple(t[:3]) not in seen and t[2] < (NB[t[0]]+3)//4; seen.add(tuple(t[:3]))
assert len(seen) == 82*8
NWG = 512
def desc(t, extra=0):
    if t is None: return [0, 0, 0, 0]
    s, head, g, rot = t[:4]
    Ls = CU[s+1]-CU[s]; n = NB[s]
    if len(t) > 4 and flag('fakeh'):
        return [CU[s]*4096 + head*256, (CU[s+1]-128)*4096 + head*256, CU[s+1]*4096, {14: 8, 10: 6, 6: 3}[n] | ((Ls-32*(n-1)) << 8) | extra]
    return [CU[s]*4096 + head*256, (CU[s]+128*g)*4096 + head*256, CU[s+1]*4096, n | ((Ls-32*(n-1)) << 8) | (rot << 22) | extra]
table = []
for wg in range(NWG):
    xcd = wg & 7; j = wg >> 3
    ln = sched[xcd][j % 32][j // 32]
    tk_ = ln['tasks']
    assert len(tk_) == 1 or NB[tk_[0][0]] >= 6
    pk_, pv_ = ln.get('pe', (0, 0))
    assert 0 <= pk_ <= min(15, NB[tk_[-1][0]] - 2)
    pe = (pk_ << 16) | (pv_ << 30)
    x0 = (ln.get('wm', WMD if ln['cls'] else 0) << 24) | (ln['pri'] << 20)
    table.append(desc(tk_[0], x0 | pe) + desc(None) if len(tk_) == 1 else desc(tk_[0], x0) + desc(tk_[1], pe))
if flag('kvsame'):
    for wg, row in enumerate(table):
        row[0] = (wg & 7)*256
        if row[7]: row[4] = (wg & 7)*256
if flag('qsame'):
    for wg, row in enumerate(table):
        if wg >= 256: row[1] = table[wg-256][1]; row[2] = max(row[2], table[wg-256][2])
PF = opt('pf', None)
PFG = int(opt('pfg', 64))
PFB = flag('pfb')
PFN = int(opt('pfn', 1))
NT = 2*PFN if PF else 0
ROW = 64 if PF else 32
if PF:
    k0_, k1_, v0_, v1_ = [int(x) for x in PF.split(':')]
    upt = 128//PFG if PFG <= 128 else 1
    ext = [[0xff]*(8*PFN) for _ in range(NWG)]
    grp = {}
    for wg in range(NWG):
        t = sched[wg & 7][(wg >> 3) % 32][wg >> 8]['tasks'][0]
        if wg >= 256 and not PFB: continue
        grp.setdefault((wg & 7, wg >> 8, t[0], t[1]), []).append(wg)
    for key, ws in grp.items():
        n = NB[key[2]]
        if key[1] == 1 and (key[0], 0, key[2], key[3]) in grp: continue
        for b, (a0, a1) in enumerate(((k0_, k1_), (v0_, v1_))):
            units = [u for u in range(a0*upt, min(a1, n)*upt)]
            slots = [(r, w, wg) for r in range(PFN) for w in range(4) for wg in (ws if b == 0 else ws[::-1])]
            for u, (r, w, wg) in zip(units, slots): ext[wg][(2*r+b)*4 + w] = u
    for wg in range(NWG):
        x = ext[wg]
        table[wg] = table[wg] + [x[4*i] | x[4*i+1] << 8 | x[4*i+2] << 16 | x[4*i+3] << 24 for i in range(2*PFN)] + [0]*(8-2*PFN)
PEV = any((row[3] | row[7]) & 0xf0000 for row in table)
FIXN = int(opt('fixn', 0))
if FIXN:
    NWG = int(opt('nwg', 512))
    table = []
    for wg in range(NWG):
        xcd = wg & 7; j = wg >> 3
        head = xcd + 8*(j & 1)
        r0 = ((j >> 1) % 2) * 2048
        table.append([r0*4096 + head*256, (128*(j >> 1))*4096 + head*256, 4391*4096, (FIXN if xcd < 4 else int(opt('fixhi', FIXN))) | (32 << 8) | ((WMD*(j//32)) << 24), 0, 0, 0, 0])

PS = 1056
SLOT = 8*PS
NK, NV = 5, 4
KBASE = NV*SLOT
KEND = KBASE + NK*SLOT
LDS = KEND
VX2 = 2*SLOT
assert (SLOT & VX2) == 0
BLK = 32*4096
def kb(i): return (KBASE + i*SLOT - KEND) & 0xffffffff

sQp, sKp, sVp, sOp = 4, 6, 8, 10
sD = 12
sKS, sVS, sOS = 20, 24, 28
sW = 32
sKoff, sVoff = 33, 34
sKrd = [35, 36]; sVrd = [37, 38]
sWc, sWcK = 39, 40
sEv, sState = 41, 42
sX, sVa = 43, 44
sT0, sT1, sT2, sT3 = 45, 46, 47, 48
sPri = 49
sC = 50
sK1 = 51
sThr = 52
sT4 = 53
sM = [54, 56, 58, 60]
sFirst = 62
sWq = 3
sLow = 63
NSGPR = 100 if FINE else 80

vG0, vG1 = 1, 2
vAKc, vAVc, vAK, vAV = 3, 4, 5, 6
vWc, vRDc, vST = 7, 8, 9
vLane = 10
vX, vY, vZ = 11, 12, 13
vX2, vY2 = 14, 15
vQ = 16
vO = 48
vS = [112, 128]
vP = [144, 152]
vK = 160
vV = 192
vNM = 224
vL = [[232, 233], [234, 235]]
vT = [236, 237, 238, 239]
vW = 240
vRD = 244
vR = [245, 246]
vAV2 = 247
NVGPR = 256 if (STAMP or PROF or 'm' in XL) else 248

def vr(b, n): return 'v[%d:%d]' % (b, b+n-1)
def sr(b, n): return 's[%d:%d]' % (b, b+n-1)
CC = 128 ** -0.5 * math.log2(math.e)
def f2u(x): return struct.unpack('<I', struct.pack('<f', x))[0]

def dk(which):
    if which == 0: return 'buffer_load_dwordx4 v%d, %s, s%d offen%s lds' % (vG0, sr(sKS, 4), sKoff, KF)
    return 'buffer_load_dwordx4 v%d, %s, s%d offen offset:%d%s lds' % (vG1, sr(sKS, 4), sKoff, PS, KF)
def dv(which):
    if which == 0: return 'buffer_load_dwordx4 v%d, %s, s%d offen%s lds' % (vG0, sr(sVS, 4), sVoff, KF)
    return 'buffer_load_dwordx4 v%d, %s, s%d offen offset:%d%s lds' % (vG1, sr(sVS, 4), sVoff, PS, KF)
def m0imm(addr): return 's_add_u32 m0, s%d, %d' % (sWc, addr)
def m0v(s): return 's_add_u32 m0, s%d, s%d' % (sWc, s)
def m0k(s): return 's_add_u32 m0, s%d, s%d' % (sWcK, s)
KADV = 's_add_u32 s%d, s%d, %d' % (sKoff, sKoff, BLK)
VADV = 's_add_u32 s%d, s%d, %d' % (sVoff, sVoff, BLK)
def next_k(dst, src):
    return ['s_add_u32 s%d, s%d, %d' % (dst, src, SLOT),
            's_cselect_b32 s%d, 0x%x, s%d' % (dst, kb(0), dst)]
def next_v(dst, src):
    return ['s_add_u32 s%d, s%d, %d' % (dst, src, SLOT),
            's_cmp_ge_u32 s%d, %d' % (dst, NV*SLOT),
            's_cselect_b32 s%d, 0, s%d' % (dst, dst)]
def xor_v(s): return 's_xor_b32 s%d, s%d, 0x%x' % (s, s, VX2)
def set_ka(s): return 'v_add_u32 v%d, s%d, v%d' % (vAK, s, vAKc)
def set_va(s): return 'v_add_u32 v%d, s%d, v%d' % (vAV, s, vAVc)
def kread(f, dst=vK, tag='k'):
    return ('ds_read_b128 %s, v%d offset:%d' % (vr(dst+4*f, 4), vAK, 512*(f//4) + 64*(f % 4)), '%s%d' % (tag, f))
KORD = [0, 4, 1, 5, 2, 6, 3, 7]
def vread(k, dst=vV, adr=vAV, tag='v'):
    dt, h = k//2, k % 2
    return ('ds_read_b64_tr_b16 %s, v%d offset:%d' % (vr(dst+4*dt+2*h, 2), adr, 32*dt + 512*h), '%s%d' % (tag, k))
VREADS = [vread(k) for k in range(16)]
IJ = [(0, 0), (0, 1), (1, 1), (1, 0)]
def qk(idx, S, A=vK, B=vQ):
    ks = idx//4; i, j = IJ[idx % 4]
    D = S + 8*j + 4*i
    c = vr(D, 4) if ks else vr(vNM+4*j, 4)
    return 'v_mfma_f32_16x16x32_bf16 %s, %s, %s, %s' % (vr(D, 4), vr(A+4*(4*i+ks), 4), vr(B+4*(4*j+ks), 4), c)
def qk_frag(idx): return 4*IJ[idx % 4][0] + idx//4
def pv(idx, P, zero=False, A=vV):
    if isinstance(idx, tuple): dt, j = idx
    else: dt = idx//2; j = (idx % 2) ^ (dt & 1)
    D = vO + 8*dt + 4*j
    return 'v_mfma_f32_16x16x32_bf16 %s, %s, %s, %s' % (vr(D, 4), vr(A+4*dt, 4), vr(P+4*j, 4), '0' if zero else vr(D, 4))
def ex(p, x): return 'v_exp_f32 v%d, v%d' % (vT[x % 4], vS[p]+x)
def ad(p, x, first=False):
    j = x//8
    if x % 8 == 0:
        if first: return 'v_mov_b32 v%d, v%d' % (vL[p][j], vT[x % 4])
        return 'v_add_f32 v%d, v%d, v%d' % (vL[p][j], vL[1-p][j], vT[x % 4])
    return 'v_add_f32 v%d, v%d, v%d' % (vL[p][j], vL[p][j], vT[x % 4])
def cv(p, k): return 'v_cvt_pk_bf16_f32 v%d, v%d, v%d' % (vP[p]+k, vT[(2*k) % 4], vT[(2*k+1) % 4])
def sm_slot(p, x, first=False):
    ops = [ex(p, x)]
    if x >= 1: ops.append(ad(p, x-1, first))
    if x >= 2 and x % 2 == 0: ops.append(cv(p, (x-2)//2))
    return ops
def sm_fin(p): return [ad(p, 15), cv(p, 7)]
def check_ops(p):
    return ['v_max_f32 v%d, v%d, v%d' % (vX, vL[p][0], vL[p][1]),
            'v_cmp_lt_f32 vcc, s%d, v%d' % (sThr, vX)]
def max8(S, a, b):
    return ['v_max3_f32 v%d, v%d, v%d, v%d' % (a, S, S+1, S+2),
            'v_max3_f32 v%d, v%d, v%d, v%d' % (b, S+8, S+9, S+10),
            'v_max3_f32 v%d, v%d, v%d, v%d' % (a, a, S+3, S+4),
            'v_max3_f32 v%d, v%d, v%d, v%d' % (b, b, S+11, S+12),
            'v_max3_f32 v%d, v%d, v%d, v%d' % (a, a, S+5, S+6),
            'v_max3_f32 v%d, v%d, v%d, v%d' % (b, b, S+13, S+14),
            'v_max_f32 v%d, v%d, v%d' % (a, a, S+7),
            'v_max_f32 v%d, v%d, v%d' % (b, b, S+15)]
def xlane(op, a, b):
    return [None,
            'v_permlane32_swap_b32 v%d, v%d' % (a, b), None,
            '%s v%d, v%d, v%d' % (op, a, a, b),
            'v_mov_b32 v%d, v%d' % (b, a), None,
            'v_permlane16_swap_b32 v%d, v%d' % (a, b), None,
            '%s v%d, v%d, v%d' % (op, a, a, b),
            'v_mov_b32 v%d, v%d' % (b, a), None,
            'v_permlane32_swap_b32 v%d, v%d' % (a, b), None]
def emit_fill(seq, fill):
    for x in seq:
        if x is None:
            if len(fill) >= 2: e(fill.pop(0)); e(fill.pop(0))
            else: e('s_nop 1')
        else: e(x)
def prescale_ops():
    seq = []
    n = 0
    for f in KORD:
        for h in range(2):
            ops = []
            for i in (4*f+2*h, 4*f+2*h+1):
                t = vS[1] + 2*(n % 8); n += 1
                ops.append(['v_lshlrev_b32 v%d, 16, v%d' % (t, vK+i),
                            'v_and_b32 v%d, 0xffff0000, v%d' % (t+1, vK+i),
                            'v_mul_f32 v%d, s%d, v%d' % (t, sC, t),
                            'v_mul_f32 v%d, s%d, v%d' % (t+1, sC, t+1),
                            'v_cvt_pk_bf16_f32 v%d, v%d, v%d' % (vQ+i, t, t+1)])
            a, b = ops
            if 'p' in PK:
                for o in (a, b):
                    t = int(o[2].split()[1][1:-1])
                    o[2] = 'v_pk_mul_f32 %s, %s, %s op_sel_hi:[1,0]' % (vr(t, 2), vr(t, 2), sr(sC, 2)); o[3] = None
            seq += [a[0], a[1], b[0], b[1], a[2], a[3], b[2], b[3], a[4], b[4]]
    return seq

def stamp(slot):
    if not STAMP: return
    if flag('st0') and slot == 3: return
    e('s_memrealtime s[68:69]')
    drain()
    e('v_mov_b32 v250, s68')
    e('v_mov_b32 v251, s69')
    e('v_mov_b32 v252, s70')
    e('s_mov_b64 s[72:73], exec')
    e('s_mov_b64 exec, 1')
    e('buffer_store_dwordx2 v[250:251], v252, s[64:67], 0 offen offset:%d' % (slot*8))
    e('s_mov_b64 exec, s[72:73]')
    e('s_nop 3')
def tickA():
    if PROF: e('s_memtime s[68:69]')
    if PROF and CLK: e('s_memrealtime s[72:73]')
def tickB():
    if PROF and not CLK: e('s_memtime s[72:73]')
def tflush():
    if not PROF: return
    drain()
    e('s_mov_b32 m0, s71')
    e('s_add_u32 s71, s71, 1')
    e('v_writelane_b32 v253, s68, m0')
    e('v_writelane_b32 v254, s72, m0')
_tk = [0]
def tk():
    if FINE:
        e('s_memtime s[%d:%d]' % (80+2*_tk[0], 81+2*_tk[0])); _tk[0] += 1
def tkflush():
    if not FINE: return
    drain()
    n = _tk[0]
    for i in range(0, n, 2):
        e('s_mov_b32 m0, s71')
        e('s_add_u32 s71, s71, 1')
        e('v_writelane_b32 v253, s%d, m0' % (80+2*i))
        e('v_writelane_b32 v254, s%d, m0' % (80+2*min(i+1, n-1)))
    _tk[0] = 0
_pn = [0]
def prio_loop():
    _pn[0] += 1
    e('s_cmp_eq_u32 s%d, 0' % sPri)
    if USEPRI: e('s_setprio 1')
    e('s_cbranch_scc1 L_pr%d' % _pn[0])
    e('s_setprio %d' % (2 if USEPRI else 1))
    out.append('L_pr%d:' % _pn[0])

out.append(HEADER.rstrip())
W8 = flag('w8')
if W8: out.append('; @launch grid=(%d,1,1) block=(512,1,1) lds=%d' % (NWG//2, 2*LDS))
else: out.append('; @launch grid=(%d,1,1) block=(256,1,1) lds=%d' % (NWG, LDS))
out.append('.amdgcn_target "amdgcn-amd-amdhsa--gfx950"')
out.append('.text')
out.append('.globl %s_kernel' % NAME)
out.append('.p2align 8')
out.append('.type %s_kernel,@function' % NAME)
lab('%s_kernel' % NAME)
e('s_cmp_ge_u32 s2, %d' % (NWG//2 if W8 else NWG))
e('s_cbranch_scc1 L_end')
if W8:
    e('v_lshrrev_b32 v1, 8, v0')
    e('v_and_b32 v0, 255, v0')
    e('s_nop 1')
    e('v_readfirstlane_b32 s78, v1')
    e('s_lshl_b32 s3, s78, 8')
    e('s_add_u32 s2, s2, s3')
    e('s_mul_i32 s78, s78, %d' % LDS)
REP = int(opt('rep', 0))
if REP:
    e('s_mov_b32 s79, %d' % REP)
    lab('L_again')
e('s_getpc_b64 s[46:47]')
lab('L_pc')
e('s_load_dwordx4 s[4:7], s[0:1], 0')
if flag('xt'):
    e('s_and_b32 s3, s2, 7')
    e('s_lshr_b32 s45, s2, 3')
    e('s_lshl_b32 s3, s3, 11')
    e('s_lshl_b32 s45, s45, 5')
    e('s_add_u32 s3, s3, s45')
else: e('s_lshl_b32 s3, s2, %d' % (6 if PF else 5))
e('s_add_u32 s3, s3, L_table-L_pc')
e('s_add_u32 s46, s46, s3')
e('s_addc_u32 s47, s47, 0')
e('s_load_dwordx8 s[12:19], s[46:47], 0')
if PF: e('s_load_dwordx%d s[56:%d], s[46:47], 32' % (2*PFN, 55+2*PFN))
e('s_load_dwordx2 s[8:9], s[0:1], 16')
e('s_load_dwordx2 s[10:11], s[0:1], 32')
if STAMP or PROF:
    e('s_load_dwordx2 s[64:65], s[0:1], 48')
    e('s_memrealtime s[74:75]')
if PROF:
    e('s_memtime s[76:77]')
    e('s_mov_b32 s71, 0')
e('v_and_b32 v%d, 63, v0' % vLane)
e('v_lshrrev_b32 v%d, 6, v0' % vX)
e('v_lshrrev_b32 v%d, 4, v%d' % (vY, vLane))
e('v_readfirstlane_b32 s%d, v%d' % (sW, vX))
e('v_and_b32 v%d, 15, v%d' % (vZ, vLane))
e('v_lshlrev_b32 v%d, 4, v%d' % (vG0, vZ))
e('v_lshl_add_u32 v%d, v%d, 15, v%d' % (vT[0], vY, vG0))
e('s_lshl_b32 s%d, s%d, 13' % (sT0, sW))
e('v_add_u32 v%d, s%d, v%d' % (vG0, sT0, vT[0]))
e('v_add_u32 v%d, %d, v%d' % (vG1, 4096-PS, vG0))
e('s_mul_i32 s%d, s%d, %d' % (sWc, sW, 2*PS))
if W8: e('s_add_u32 s%d, s%d, s78' % (sWc, sWc))
e('s_add_u32 s%d, s%d, %d' % (sWcK, sWc, KEND))
e('s_add_u32 s%d, s%d, 7' % (sX, sW))
e('s_cmp_ge_u32 s%d, 2' % sW)
e('s_cselect_b32 s%d, s%d, s%d' % (sX, sW, sX))
e('s_mul_i32 s%d, s%d, %d' % (sX, sX, SLOT))
e('s_mov_b32 s%d, 0x20000' % (sKS+3))
e('s_mov_b32 s%d, 0x20000' % (sVS+3))
e('s_mov_b32 s%d, 0x20000' % (sOS+3))
e('s_waitcnt lgkmcnt(0)')
if flag('st0'): e('s_memrealtime s[78:79]')
e('s_and_b32 s%d, s%d, 0xffff' % (sKp+1, sKp+1))
e('s_mov_b64 %s, %s' % (sr(sKS, 2), sr(sKp, 2)))
e('s_mov_b32 s%d, s%d' % (sKS+2, sD+2))
e('s_mov_b32 s%d, s%d' % (sKoff, sD))
e('s_and_b32 s%d, s%d, 0xffff' % (sQp+1, sQp+1))
TOUCH = int(opt('touch', 0)); TST = int(opt('tst', 20))
def touch():
    e('s_mov_b32 s56, s%d' % sOp)
    e('s_and_b32 s57, s%d, 0xffff' % (sOp+1))
    e('s_mov_b32 s58, %d' % (4391*4096))
    e('s_mov_b32 s59, 0x20000')
    e('v_lshlrev_b32 v%d, %d, v%d' % (vX2, TST, vLane))
    e('v_min_u32 v%d, %d, v%d' % (vX2, 4391*4096-4, vX2))
    e('buffer_load_dword v%d, v%d, s[56:59], 0 offen' % (vY2, vX2))
def ldseq(waits):
    cnt = [0]
    if flag('iss'): tk()
    def ld(s):
        e(s); cnt[0] += 1
        if flag('iss') and cnt[0] % 2 == 0: tk()
        if cnt[0] % 2 == 0 and cnt[0] <= (10 if opt('gate', '') else 12) and (WMUSE >> (cnt[0]//2-1)) & 1:
            e('s_bitcmp1_b32 s%d, %d' % (sD+3, 23 + cnt[0]//2))
            e('s_cbranch_scc0 L_lw%d' % cnt[0])
            e('s_waitcnt vmcnt(0)')
            if TOUCH == cnt[0]: touch()
            lab('L_lw%d' % cnt[0])
    if TOUCH == 1:
        e('s_bitcmp1_b32 s%d, 25' % (sD+3))
        e('s_cbranch_scc0 L_lw1')
        touch()
        lab('L_lw1')
    TQ = opt('tq', '')
    def tq():
        e('s_mov_b64 %s, %s' % (sr(sOS, 2), sr(sQp, 2)))
        e('s_mov_b32 s%d, s%d' % (sOS+2, sD+2))
        e('s_mov_b32 s%d, s%d' % (sVS, sVp))
        e('s_and_b32 s%d, s%d, 0xffff' % (sVS+1, sVp+1))
        e('s_mov_b32 s%d, s%d' % (sVS+2, sD+2))
        if 'q' in TQ: e('buffer_load_dword v%d, off, %s, s%d' % (vR[0], sr(sOS, 4), sD+1))
        if 'v' in TQ: e('buffer_load_dword v%d, off, %s, s%d' % (vR[1], sr(sVS, 4), sD))
    if 'e' in TQ: tq()
    GATE = opt('gate', '')
    if GATE:
        e('s_bitcmp1_b32 s%d, 29' % (sD+3))
        e('s_cbranch_scc0 L_gate')
        for gi in range(int(GATE)):
            e('buffer_load_dword v%d, off, %s, s%d' % (vR[0], sr(sKS, 4), sKoff))
            e('s_waitcnt vmcnt(0)')
        lab('L_gate')
    e(m0imm(KBASE)); e('s_mov_b64 %s, %s' % (sr(sOS, 2), sr(sQp, 2))); ld(dk(0))
    if TQ and 'e' not in TQ: tq()
    e('s_mov_b32 s%d, s%d' % (sOS+2, sD+2))
    e('s_lshr_b32 s%d, s%d, 22' % (sWq, sD+3))
    ld(dk(1)); e(KADV)
    def k1():
        e(m0imm(KBASE+SLOT)); e('s_mov_b32 s%d, s%d' % (sVS, sVp)); ld(dk(0))
        e('s_and_b32 s%d, s%d, 0xffff' % (sVS+1, sVp+1))
        ld(dk(1)); e(KADV)
    if not K1LATE: k1()
    e('s_add_u32 s%d, s%d, s%d' % (sWq, sWq, sW))
    e('s_and_b32 s%d, s%d, 3' % (sWq, sWq))
    e('s_lshl_b32 s%d, s%d, 17' % (sWq, sWq))
    e('s_add_u32 s%d, s%d, s%d' % (sT1, sD+1, sWq))
    e('s_mov_b32 s%d, s%d' % (sVS+2, sD+2))
    e('s_mov_b32 s%d, s%d' % (sVoff, sD))
    if W8: e('s_add_u32 s77, s78, s%d' % sX)
    for j in range(8):
        e('s_add_u32 m0, s%d, %d' % (77 if W8 else sX, j*PS))
        if j: e('s_add_u32 s%d, s%d, 4096' % (sT1, sT1))
        else: e('s_nop 0')
        ld('buffer_load_dwordx4 v%d, %s, s%d offen%s lds' % (vT[0], sr(sOS, 4), sT1, QF))
    if K1LATE: k1()
    e(m0imm(0)); e('s_sub_u32 s%d, s%d, %d' % (sX, sX, KEND)); ld(dv(0)); ld(dv(1)); e(VADV)
    e(m0imm(KBASE+2*SLOT)); e('s_nop 0'); ld(dk(0)); ld(dk(1)); e(KADV)
    e(m0imm(SLOT)); e('s_nop 0'); ld(dv(0)); ld(dv(1)); e(VADV)
WMUSE = 0
for row in table: WMUSE |= (row[3] >> 24) & 63
CPF = opt('cpf', '')
def cpf():
    e('s_getpc_b64 s[58:59]')
    e('s_lshr_b32 s%d, s2, 3' % sT2)
    e('s_lshl_b32 s%d, s%d, 2' % (sT2, sT2))
    e('s_add_u32 s%d, s%d, s%d' % (sT2, sT2, sW))
    e('s_lshl_b32 s%d, s%d, 7' % (sT2, sT2))
    e('s_add_u32 s58, s58, s%d' % sT2)
    e('s_addc_u32 s59, s59, 0')
    e('s_load_dword s60, s[58:59], 0')
    if '2' in CPF: e('s_load_dword s61, s[58:59], 64')
if 'e' in CPF: cpf()
ldseq({})
if 'l' in CPF: cpf()
if flag('iss'): tkflush(); FINE = False
if flag('st0'): e('s_memrealtime s[76:77]'); e('s_waitcnt lgkmcnt(0)'); e('s_mov_b32 s79, s76')
if PF:
    sh = {64: 2, 128: 1}[PFG]
    e('v_lshrrev_b32 v%d, %d, v%d' % (vRD, sh, vLane))
    e('v_and_b32 v%d, %d, v%d' % (vX, (1 << sh)-1, vLane))
    e('v_lshlrev_b32 v%d, 12, v%d' % (vRD, vRD))
    e('s_lshl_b32 s%d, s%d, 3' % (sT0, sW))
    e('v_lshl_add_u32 v%d, v%d, %d, v%d' % (vRD, vX, 8-sh, vRD))
    for i in range(NT):
        e('s_lshr_b32 s%d, s%d, s%d' % (sT1, 56+i, sT0))
        e('s_and_b32 s%d, s%d, 0xff' % (sT1, sT1))
        e('s_lshl_b32 s%d, s%d, %d' % (sT1, sT1, 18-sh))
        e('s_add_u32 s%d, s%d, s%d' % (sT1, sT1, sD))
        e('buffer_load_dword v%d, v%d, %s, s%d offen' % (vR[i % 2], vRD, sr(sVS if i % 2 else sKS, 4), sT1))
if STAMP:
    e('s_and_b32 s65, s65, 0xffff')
    e('s_mov_b32 s66, 0x1000000')
    e('s_mov_b32 s67, 0x20000')
    e('s_lshl_b32 s70, s2, 2')
    e('s_add_u32 s70, s70, s%d' % sW)
    e('s_lshl_b32 s70, s70, 6')
e('s_bfe_u32 s%d, s%d, 0x20014' % (sPri, sD+3))
if PPRO is not None: e('s_setprio %d' % int(PPRO))
else: prio_loop()
e('v_and_b32 v%d, 7, v%d' % (vX, vLane))
e('v_mul_u32_u24 v%d, %d, v%d' % (vAKc, PS, vX))
e('v_bfe_u32 v%d, v%d, 3, 1' % (vT[1], vLane))
e('v_lshl_add_u32 v%d, v%d, 8, v%d' % (vAKc, vT[1], vAKc))
e('v_lshl_add_u32 v%d, v%d, 4, v%d' % (vAKc, vY, vAKc))
e('v_add_u32 v%d, %d, v%d' % (vAKc, KEND, vAKc))
if W8: e('v_add_u32 v%d, s78, v%d' % (vAKc, vAKc))
e(set_ka(sX))
e('v_bfe_u32 v%d, v%d, 2, 3' % (vAVc, vLane))
e('v_mul_u32_u24 v%d, %d, v%d' % (vAVc, PS, vAVc))
e('v_lshrrev_b32 v%d, 5, v%d' % (vX2, vLane))
e('v_lshl_add_u32 v%d, v%d, 8, v%d' % (vAVc, vX2, vAVc))
e('v_and_b32 v%d, 3, v%d' % (vY2, vLane))
e('v_lshl_add_u32 v%d, v%d, 3, v%d' % (vAVc, vY2, vAVc))
if W8: e('v_add_u32 v%d, s78, v%d' % (vAVc, vAVc))
e('v_xor_b32 v%d, v%d, v%d' % (vWc, vX2, vX))
e('v_lshlrev_b32 v%d, 4, v%d' % (vWc, vWc))
e('v_lshl_add_u32 v%d, v%d, 7, v%d' % (vWc, vZ, vWc))
e('v_and_b32 v%d, 1, v%d' % (vY2, vY))
e('v_xor_b32 v%d, v%d, v%d' % (vY2, vY2, vT[1]))
e('v_lshl_add_u32 v%d, v%d, 3, v%d' % (vWc, vY2, vWc))
e('s_and_b32 s%d, s%d, 1' % (sT0, sW))
e('s_lshl_b32 s%d, s%d, 12' % (sT0, sT0))
if W8: e('s_add_u32 s%d, s%d, s78' % (sT0, sT0))
e('v_add_u32 v%d, s%d, v%d' % (vWc, sT0, vWc))
e('v_lshrrev_b32 v%d, 3, v%d' % (vY2, vLane))
e('v_xor_b32 v%d, v%d, v%d' % (vRDc, vY2, vX))
e('v_lshlrev_b32 v%d, 4, v%d' % (vRDc, vRDc))
e('v_lshl_add_u32 v%d, v%d, 7, v%d' % (vRDc, vY2, vRDc))
e('v_add_u32 v%d, s%d, v%d' % (vRDc, sT0, vRDc))
if flag('st256x'):
    e('v_lshlrev_b32 v%d, 12, v%d' % (vST, vY))
    e('v_lshl_add_u32 v%d, v%d, 4, v%d' % (vST, vZ, vST))
else:
    e('v_lshlrev_b32 v%d, 12, v%d' % (vST, vY2))
    e('v_lshl_add_u32 v%d, v%d, 4, v%d' % (vST, vX, vST))
for r in range(8): e('v_mov_b32 v%d, 0' % (vNM+r))
e('s_mov_b32 s%d, 0x%08x' % (sC, f2u(CC)))
e('s_mov_b32 s%d, 0x%08x' % (sThr, f2u(2.0**THRLOG)))
e('s_mov_b32 s%d, 0x%08x' % (sLow, f2u(2.0**-LOWLOG)))
e('s_mov_b32 s%d, s%d' % (sOS, sOp))
e('s_and_b32 s%d, s%d, 0xffff' % (sOS+1, sOp+1))
e('s_mov_b32 s%d, 0x%x' % (sX, kb(0)))
e('s_mov_b32 s%d, %d' % (sVa, 2*SLOT))
e('s_mov_b32 s%d, %d' % (sVrd[0], 3*SLOT))
e('s_mov_b32 s%d, 1' % sFirst)
def qk0_with_prescale(ps, extra):
    for idx in range(16):
        if idx % 4 == 0: e('s_nop 1')
        need('k%d' % qk_frag(idx))
        e(qk(idx, vS[0], A=vV))
        for x in extra.get(idx, []):
            if callable(x): x()
            else: e(x)
        for x in ps[:10]: e(x)
        del ps[:10]
def p1():
    e('s_waitcnt vmcnt(%d)' % ((8 if K1LATE else 6) + NT))
    tickA()
    for f in KORD: e(kread(f, tag='q'))
    if STAMP:
        e('s_getreg_b32 s75, hwreg(HW_REG_HW_ID)')
        e('s_getreg_b32 s76, hwreg(HW_REG_XCC_ID)')
        e('s_and_b32 s75, s75, 0xffff')
        e('s_lshl_b32 s76, s76, 16')
        e('s_or_b32 s75, s75, s76')
        e('v_mov_b32 v250, s74')
        e('v_mov_b32 v251, s75')
        e('v_mov_b32 v252, s70')
        e('s_mov_b64 s[72:73], exec')
        e('s_mov_b64 exec, 1')
        e('buffer_store_dwordx2 v[250:251], v252, s[64:67], 0 offen')
        if flag('st0'):
            e('s_nop 3')
            e('v_mov_b32 v250, s78')
            e('v_mov_b32 v251, s79')
            e('buffer_store_dwordx2 v[250:251], v252, s[64:67], 0 offen offset:24')
        e('s_mov_b64 exec, s[72:73]')
        stamp(1)
    e(set_ka(sX))
    drain()
    e('s_barrier')
    tickB()
    tflush()
    for f in KORD: e(kread(f, vV))

    ps = prescale_ops()
    for i, x in enumerate(ps[:40]):
        e(x)
        if i == 9: e(m0imm(KBASE+3*SLOT))
        if i == 14: e(dk(0))
        if i == 29: e(dk(1)); e(KADV)
    del ps[:40]
    qk0_with_prescale(ps, {1: [m0imm(KBASE+4*SLOT)], 2: [dk(0)], 5: [dk(1)], 6: [KADV]})
    tickA()
    e('s_waitcnt vmcnt(%d)' % (6 + NT))


if not NOIDLE:
    e('s_add_u32 s%d, s%d, s%d' % (sT0, sWq, sD+1))
    e('s_cmp_ge_u32 s%d, s%d' % (sT0, sD+2))
    e('s_cbranch_scc1 L_p1I')
p1()

lab('L_pre0')
del dsq[:]
for x in next_k(sK1, sX): e(x)
e(set_ka(sK1))
e(m0v(sVa))
if USEPRI: prio_loop()
e('s_barrier')
tickB()
for f in KORD: e(kread(f))
e(dv(0))
e('s_and_b32 s%d, s%d, 0xff' % (sT0, sD+3))
e('s_cmp_eq_u32 s%d, 0' % (sD+7))
e('s_cselect_b32 s%d, 2, 6' % sT1)
e('s_cselect_b32 s%d, 1, 0' % sState)
e('s_sub_u32 s%d, s%d, s%d' % (sEv, sT0, sT1))
if PEV:
    e('s_bfe_u32 s%d, s%d, 0x40010' % (sT1, sD+3))
    e('s_sub_u32 s%d, s%d, s%d' % (sEv, sEv, sT1))
    e('s_cmp_eq_u32 s%d, 0' % sT1)
    e('s_cselect_b32 s%d, s%d, 3' % (sState, sState))
for x in next_v(sVrd[1], sVrd[0]): e(x)
e(set_va(sVrd[1]))
for x in next_k(sKrd[0], sK1): e(x)
e(set_ka(sKrd[0]))
e(dv(1)); e(VADV)
tflush()
stamp(2)
if not NOIDLE:
    e('s_add_u32 s%d, s%d, s%d' % (sT0, sWq, sD+1))
    e('s_cmp_ge_u32 s%d, s%d' % (sT0, sD+2))
    e('s_cbranch_scc1 L_step0I')
dsq0 = list(dsq)

handlers = []
def step0():
    lab('L_step0')
    dsq[:] = dsq0
    N = [[] for _ in range(16)]
    G = [sm_slot(0, g, True) for g in range(16)]
    for ks in range(4):
        if ks < 3: N[4*ks+4] += [kread(ks, tag='n')]; N[4*ks+5] += [kread(4+ks, tag='n')]
    N[14] += [kread(3, tag='n')]
    N[15] += [kread(7, tag='n')]
    N[1] += [m0k(sX)]
    N[2] += [dk(0)]
    N[6] += [dk(1)]
    N[7] += [KADV]
    N[10] += next_k(sKrd[1], sKrd[0])
    N[11] += ['s_sub_u32 s%d, s%d, 1' % (sEv, sEv), 's_cbranch_scc1 %s' % L('L_evS'), ('LABEL', 'L_retSx')]
    for g in range(16):
        need('k%d' % qk_frag(g))
        e(qk(g, vS[1]))
        for x in N[g] + G[g]:
            if x[0] == 'LABEL': lab(x[1])
            else: e(x)
    e(m0k(sK1))
    e(ad(0, 15)); e(cv(0, 7))
    e(set_ka(sKrd[1]))
    e('v_subrev_u32 v%d, s%d, v%d' % (vX, sLow, vL[0][0]))
    e('v_subrev_u32 v%d, s%d, v%d' % (vY, sLow, vL[0][1]))
    e('s_sub_u32 s%d, s%d, s%d' % (sT0, sThr, sLow))
    e('v_max_u32 v%d, v%d, v%d' % (vX, vX, vY))
    e('v_cmp_lt_u32 vcc, s%d, v%d' % (sT0, vX))
    e('s_cmp_eq_u32 s%d, 0' % sFirst)
    e('s_cbranch_scc1 %s' % L('L_s0w'))
    e('s_waitcnt vmcnt(6)')
    lab('L_s0w')
    e('s_cbranch_vccnz L_fbS')
    lab('L_fbretS')

DPOS0 = [int(x) for x in opt('dp0', '23,24,26,27,28,30,0').split(',')]
DPOS = [int(x) for x in opt('dp', '23,24,26,27,28,30,0').split(',')]
def body(p, tag, nxt, first=False, loop=False):
    lab('L_ret%s' % tag)
    INLOOP[0] = not first
    tickA()
    drain(vm=10)
    e('s_barrier')
    tickB()
    N = [[] for _ in range(32)]
    G = [[] for _ in range(32)]
    for q in range(4):
        x = 4*q; g = 7*q
        G[g] = [ex(p, x)]; G[g+1] = [ex(p, x+1)]; G[g+2] = [ad(p, x), cv(p, 2*q)]
        G[g+3] = [ex(p, x+2)]; G[g+4] = [ex(p, x+3)]; G[g+5] = [ad(p, x+1), ad(p, x+2)]; G[g+6] = [ad(p, x+3), cv(p, 2*q+1)]
    G[28] = check_ops(p)
    dp = DPOS if not first else DPOS0
    if dp[6]:
        for g in range(8): N[g] += [VREADS[2*g], VREADS[2*g+1]]
    else:
        for g in range(16): N[g].append(VREADS[g])
    for g in range(8): N[16+g].append(kread(KORD[g]))
    N[dp[0]] += [m0v(sVrd[1-p])]
    N[dp[1]] += [dv(0)]
    N[dp[1]+1] += [xor_v(sVrd[1-p])]
    N[dp[2]] += [dv(1)]
    N[dp[3]] += [m0k(sKrd[1-p])]
    N[dp[4]] += [dk(0)]
    N[29] += [VADV]
    G[29] = [set_va(sVrd[1-p])]
    N[dp[5]] += [dk(1)]
    N[30] += next_k(sKrd[1-p], sKrd[p])
    N[31] += [KADV]
    G[31] = [set_ka(sKrd[1-p])]
    if first:
        N[1] += [dk(0)]; N[4] += [dk(1)]; N[5] += [KADV]
        N[6] += ['s_sub_u32 s%d, s%d, 1' % (sEv, sEv), 's_cbranch_scc1 %s' % L('L_evF'), ('LABEL', 'L_retFx')]
    for g in range(32):
        if g == 16: need('v7')
        if g == 24: need('v15')
        if g < 16: e(qk(g, vS[1-p]))
        else: e(pv(g-16, vP[1-p], zero=first))
        if 'm' in XL and g in (21, 27) and not IDLE[0]:
            j = int(g == 27)
            e('v_mfma_f32_16x16x32_bf16 %s, %s, %s, %s' % (vr(248+4*j, 4), vr(vNM+4, 4), vr(vP[1-p]+4*j, 4), vr(248+4*j, 4)))
        for x in N[g] + G[g]:
            if x[0] == 'LABEL': lab(x[1])
            else: e(x)
    tflush()
    e('s_sub_u32 s%d, s%d, 1' % (sEv, sEv))
    e('s_cbranch_vccnz L_fb%s' % tag)
    INLOOP[0] = False
    lab('L_fbret%s' % tag)
    if loop: e('s_cbranch_scc0 %s' % L('L_ret%s' % nxt))
    else: e('s_cbranch_scc1 %s' % L('L_ev%s' % nxt))

RT = flag('rt')
def body_short(p):
    tag = 'R%d' % p
    lab('L_ret%s' % tag)
    tickA()
    drain(vm=10)
    e('s_barrier')
    tickB()
    M = [qk(g, vS[1-p]) for g in range(16) if IJ[g % 4][0] == 0] + [pv(g, vP[1-p]) for g in range(16)]
    N = [[] for _ in range(24)]
    G0 = []
    for q in range(4):
        x = 4*q
        G0 += [[ex(p, x)], [ex(p, x+1)], [ad(p, x), cv(p, 2*q)], [ex(p, x+2)], [ex(p, x+3)], [ad(p, x+1), ad(p, x+2)], [ad(p, x+3), cv(p, 2*q+1)]]
    G = [[] for _ in range(24)]
    for k, x in enumerate(G0): G[k*22//28] += x
    G[22] = check_ops(p)
    for g in range(8): N[g] += [VREADS[2*g], VREADS[2*g+1]]
    N[13] += [m0v(sVrd[1-p])]
    N[14] += [dv(0)]
    N[15] += [xor_v(sVrd[1-p])]
    N[17] += [dv(1)]
    N[18] += [m0k(sKrd[1-p])]
    N[19] += [dk(0)]
    N[20] += [VADV]
    G[23] += [set_va(sVrd[1-p])]
    N[22] += [dk(1)] + next_k(sKrd[1-p], sKrd[p])
    N[23] += [KADV]
    for g in range(24):
        if g == 8: need('v7')
        if g == 16: need('v15')
        e(M[g])
        for x in N[g] + G[g]: e(x)
    tflush()
    e('s_cbranch_vccnz L_fb%s' % tag)
    lab('L_fbret%s' % tag)

def fallback(p, ret, has_next=True, first=False, ret2=None):
    e('s_nop 7'); e('s_nop 1')
    for x in max8(vS[p], vX, vY): e(x)
    emit_fill(xlane('v_max_f32', vX, vY), [])
    if not first:
        e('v_max_f32 v%d, 0, v%d' % (vX, vX))
        e('v_max_f32 v%d, 0, v%d' % (vY, vY))
        e('v_exp_f32 v%d, -v%d' % (vX2, vX))
        e('v_exp_f32 v%d, -v%d' % (vY2, vY))
    for x in range(16):
        e('v_sub_f32 v%d, v%d, v%d' % (vS[p]+x, vS[p]+x, vX if x < 8 else vY))
    if has_next:
        for x in range(16):
            e('v_sub_f32 v%d, v%d, v%d' % (vS[1-p]+x, vS[1-p]+x, vX if x < 8 else vY))
        for r in range(8):
            e('v_sub_f32 v%d, v%d, v%d' % (vNM+r, vNM+r, vX if r < 4 else vY))
    if not first:
        e('v_mul_f32 v%d, v%d, v%d' % (vL[1-p][0], vL[1-p][0], vX2))
        e('v_mul_f32 v%d, v%d, v%d' % (vL[1-p][1], vL[1-p][1], vY2))
        for r in range(64):
            e('v_mul_f32 v%d, v%d, v%d' % (vO+r, vO+r, vX2 if (r % 8) < 4 else vY2))
    for x in range(16):
        for y in sm_slot(p, x, first): e(y)
        e('s_nop 0')
    for x in sm_fin(p): e(x)
    if ret2: e('s_cbranch_scc1 %s' % ret2)
    e('s_branch %s' % ret)

def handler(tag, p, ret):
    lab('L_ev%s' % tag)
    e('s_cmp_eq_u32 s%d, 1' % sState)
    e('s_cbranch_scc1 %s' % L('L_evB%s' % tag))
    if p is not None:
        e('s_cmp_eq_u32 s%d, 2' % sState)
        e('s_cbranch_scc1 %s' % L('L_tail%d' % p))
    if PEV:
        e('s_cmp_eq_u32 s%d, 3' % sState)
        e('s_cbranch_scc0 %s' % L('L_evQ%s' % tag))
        e('s_bfe_u32 s%d, s%d, 0x40010' % (sEv, sD+3))
        e('s_sub_u32 s%d, s%d, 1' % (sEv, sEv))
        e('s_mov_b32 s%d, 1' % sState)
        e('s_setprio 0')
        e('s_bitcmp1_b32 s%d, 30' % (sD+3))
        e('s_cbranch_scc0 %s' % L('L_evP%s' % tag))
        e('s_setprio 1')
        lab('L_evP%s' % tag)
        e('s_bitcmp1_b32 s%d, 31' % (sD+3))
        e('s_cbranch_scc0 %s' % L(ret))
        e('s_setprio 2')
        e('s_branch %s' % L(ret))
        lab('L_evQ%s' % tag)
    e('s_mov_b64 %s, %s' % (sr(sKS, 2), sr(sQp, 2)))
    e('s_mov_b32 s%d, s%d' % (sKS+2, sD+6))
    e('s_mov_b32 s%d, s%d' % (sKoff, sD+5))
    e('s_mov_b32 s%d, 3' % sEv)
    e('s_mov_b32 s%d, 1' % sState)
    e('s_branch %s' % L(ret))
    lab('L_evB%s' % tag)
    e('s_mov_b64 %s, %s' % (sr(sKS, 2), sr(sKp, 2)))
    e('s_mov_b32 s%d, s%d' % (sKS+2, sD+6))
    e('s_mov_b32 s%d, s%d' % (sVS+2, sD+6))
    e('s_mov_b32 s%d, s%d' % (sKoff, sD+4))
    e('s_mov_b32 s%d, s%d' % (sVoff, sD+4))
    e('s_mov_b32 s%d, 0' % sEv)
    if RT and p is not None and not IDLE[0]:
        e('s_bfe_u32 s%d, s%d, 0x80008' % (sT0, sD+3))
        e('s_cmp_le_u32 s%d, 16' % sT0)
        e('s_cbranch_scc1 L_retR%d' % p)
    e('s_mov_b32 s%d, 2' % sState)
    e('s_branch %s' % L(ret))

def masks(p, ni=2):
    mk = []
    for i in range(ni):
        for r in range(4):
            mk.append('v_cmp_lt_i32 %s, %d, v%d' % (sr(sM[r], 2), 16*i+r, vX))
        for j in range(2):
            for r in range(4):
                x = vS[p]+8*j+4*i+r
                mk.append('v_cndmask_b32 v%d, v%d, v%d, %s' % (x, vY, x, sr(sM[r], 2)))
    return mk
def tail1(p, last, short=False):
    sfx = 'R' if short else ''
    if last: lab('L_tailE%s%d' % (sfx, p))
    else:
        lab('L_tail%s%d' % (sfx, p))
        e('s_cmp_eq_u32 s%d, 0' % (sD+7))
        e('s_cbranch_scc1 %s' % L('L_tailE%s%d' % (sfx, p)))
    del dsq[:]
    if last and IDLE[0]:
        tickA()
        e('s_waitcnt vmcnt(6)')
        e('s_barrier')
        tickB()
        tflush()
        e('s_branch L_fin')
        return
    if last: e('s_xor_b32 s%d, s%d, 0x%x' % (sT1, sVrd[1-p], VX2))
    else: e(m0v(sVrd[1-p]))
    e('s_bfe_u32 s%d, s%d, 0x80008' % (sT0, sD+3))
    e('v_lshrrev_b32 v%d, 4, v%d' % (vX, vLane))
    e('v_lshlrev_b32 v%d, 2, v%d' % (vX, vX))
    e('v_sub_u32 v%d, s%d, v%d' % (vX, sT0, vX))
    e('v_mov_b32 v%d, 0xff800000' % vY)
    if last: e('v_add_u32 v%d, s%d, v%d' % (vAV2, sT1, vAVc))
    tickA()
    drain(vm=6 if last else 10)
    e('s_barrier')
    tickB()
    mk = masks(p, 1 if short else 2)
    nm_ = len(mk)//4
    for g in range(4):
        e(VREADS[2*g]); e(VREADS[2*g+1])
        for x in mk[nm_*g:nm_*g+nm_]: e(x)
    N = [[] for _ in range(16)]
    G = [sm_slot(p, g) for g in range(16)]
    fin_ = sm_fin(p)
    if short:
        xs = [0, 1, 2, 3, 8, 9, 10, 11]
        G = [[] for _ in range(16)]
        for m_, x in enumerate(xs):
            G[m_] += [ex(p, x)]
            if m_ >= 1: G[m_] += [ad(p, xs[m_-1])]
            if m_ >= 2 and m_ % 2 == 0: G[m_] += [cv(p, xs[m_-2]//2)]
        G[8] += [ad(p, 11), cv(p, 5)]
        for g, k in zip((10, 10, 12, 12), (2, 3, 6, 7)): G[g] += ['v_mov_b32 v%d, 0' % (vP[p]+k)]
        fin_ = []
    for g in range(8): N[g] += [VREADS[8+g]]
    if last:
        for g in range(8): N[8+g] += [vread(2*g, vK, vAV2, 'u'), vread(2*g+1, vK, vAV2, 'u')]
        nk = next_k(sX, sKrd[p])
        sl = [nk[0], nk[1],
              's_cmp_eq_u32 s%d, 1' % sW, 's_cselect_b32 s%d, s%d, s%d' % (sX, sKrd[p], sX),
              's_cmp_eq_u32 s%d, 0' % sW, 's_cselect_b32 s%d, s%d, s%d' % (sX, sKrd[1-p], sX),
              's_add_u32 s%d, s%d, %d' % (sX, sX, KEND),
              's_cmp_eq_u32 s%d, 3' % sW, 's_cselect_b32 s%d, s%d, s%d' % (sX, sVrd[1-p], sX),
              's_and_b32 s%d, s%d, 1' % (sT0, sW), 's_lshl_b32 s%d, s%d, 12' % (sT0, sT0), 's_sub_u32 s%d, s%d, s%d' % (sT0, sX, sT0)] + epi_soff()
        for g in range(9):
            N[g] += sl[:2]; del sl[:2]
        assert not sl
        ea = epi_addr()
        for g, x in zip((9, 11, 13, 15, 15), ea): G[g] += [x]
    else:
        N[8] += [dv(0)]
        N[9] += [xor_v(sVrd[1-p])]
        N[10] += ['s_sub_u32 s%d, s%d, %d' % (sX, sKrd[1-p], SLOT)]
        N[11] += ['s_cmp_lt_u32 s%d, 0x%x' % (sX, kb(0))]
        N[12] += ['s_cselect_b32 s%d, 0x%x, s%d' % (sX, kb(NK-1), sX)]
        N[13] += [dv(1)]
        N[14] += ['s_mov_b32 s%d, s%d' % (sVa, sVrd[p])]
        N[15] += [VADV]
        G[15] += [set_va(sVrd[1-p])]
    for g in range(16):
        if g % 2 == 0: need('v%d' % (g+1))
        e(pv(g, vP[1-p]))
        if last:
            for x in G[g][:1] + N[g] + G[g][1:]: e(x)
        else:
            for x in N[g] + G[g]: e(x)
    for x in fin_: e(x)
    for x in check_ops(p): e(x)
    if p == 0 and not last:
        e('s_mov_b32 s%d, s%d' % (sVrd[0], sVrd[1]))
    tflush()
    e('s_cmp_eq_u32 s%d, 0' % (sD+7))
    e('s_cbranch_vccnz L_fbT%s%d' % (sfx, p))
    if short:
        e('s_branch L_fbret%s%d' % ('E' if last else 'T', p))
        return
    if last:
        lab('L_fbretE%d' % p)
        final(p)
    else:
        lab('L_fbretT%d' % p)
        trans(p)

def norm_stage(dt, off=0):
    ops = []
    for j in range(2):
        b = vO + 8*dt + 4*j
        for r in range(4): ops.append('v_mul_f32 v%d, v%d, v%d' % (b+r, b+r, vR[j]))
        if 'n' in PK:
            sel = 'op_sel:[0,1] op_sel_hi:[1,1]' if vR[j] % 2 else 'op_sel_hi:[1,0]'
            for r in (0, 2):
                ops[-4+r] = 'v_pk_mul_f32 %s, %s, %s %s' % (vr(b+r, 2), vr(b+r, 2), vr(vR[j] & ~1, 2), sel)
                ops[-3+r] = None
        ops.append('v_cvt_pk_bf16_f32 v%d, v%d, v%d' % (b, b, b+1))
        ops.append('v_cvt_pk_bf16_f32 v%d, v%d, v%d' % (b+1, b+2, b+3))
    a, b_ = ops[:6], ops[6:]
    seq = a[:4] + b_[:2] + a[4:] + b_[2:4]
    seq.append(('ds_write_b64 v%d, %s offset:%d' % (vW + dt % 4, vr(vO+8*dt, 2), off), 'w'))
    seq += b_[4:]
    seq.append(('ds_write_b64 v%d, %s offset:%d' % (vW + dt % 4, vr(vO+8*dt+4, 2), off + 2048), 'w'))
    return seq
def rdback(rho, off=0):
    ops = []
    for k in range(4):
        b = vO+32*rho+4*k
        if k % 2 == 0: ops.append(('ds_read_b128 %s, v%d offset:%d' % (vr(b, 4), vRD, off + 1024*k), 'r%d' % k))
        else:
            ops.append(('ds_read_b64 %s, v%d offset:%d' % (vr(b, 2), vRD, off + 1024*k + 8), 'r%d' % k))
            ops.append(('ds_read_b64 %s, v%d offset:%d' % (vr(b+2, 2), vRD, off + 1024*k), 'r%d' % k))
    return ops
SOFF = [sT1, sT2, sT3, sT4]
def store(rho, k):
    need('r%d' % k)
    if flag('st256x'):
        m = 4*rho + k
        if m == 0: e('v_add_u32 v%d, 0x4000, v%d' % (vAV2, vST))
        e('buffer_store_dwordx4 %s, v%d, %s, s%d offen%s' % (vr(vO+32*rho+4*k, 4), vAV2 if m % 2 else vST, sr(sOS, 4), SOFF[m//2], SF))
        return
    e('buffer_store_dwordx4 %s, v%d, %s, s%d offen offset:%d%s' % (vr(vO+32*rho+4*k, 4), vST, sr(sOS, 4), SOFF[k], 128*rho, SF))
def epi_addr():
    return ['v_add_u32 v%d, s%d, v%d' % (vW, sT0, vWc),
            'v_add_u32 v%d, s%d, v%d' % (vRD, sT0, vRDc),
            'v_xor_b32 v%d, 32, v%d' % (vW+1, vW),
            'v_xor_b32 v%d, 64, v%d' % (vW+2, vW),
            'v_xor_b32 v%d, 96, v%d' % (vW+3, vW)]
def epi_soff():
    return ['s_add_u32 s%d, s%d, s%d' % (sT1, sWq, sD+1),
            's_mov_b32 s%d, s%d' % (sOS+2, sD+2),
            's_add_u32 s%d, s%d, %d' % (sT2, sT1, 8*4096),
            's_add_u32 s%d, s%d, %d' % (sT3, sT1, 16*4096),
            's_add_u32 s%d, s%d, %d' % (sT4, sT1, 24*4096)]
def rcps(p):
    return ['v_rcp_f32 v%d, v%d' % (vR[0], vL[p][0]), 'v_rcp_f32 v%d, v%d' % (vR[1], vL[p][1])]
def spread(main, extra):
    for i, x in enumerate(main):
        for y in extra.get(i, []):
            if callable(y): y()
            else: e(y)
        e(x)

FPK = int(opt('fpk', 99))
FST = [int(x) for x in opt('fst', '18,24').split(',')]
def final(p):
    if PEPI is not None: e('s_setprio %d' % int(PEPI))
    stamp(5)
    a, b = vL[p]
    U = [(4*(q//2) + t, q % 2) for q in range(4) for t in range(4)]
    def M(g): return lambda: (need('u%d' % (2*U[g][0]+1)), e(pv(U[g], vP[p], A=vK)))
    head = [M(0), 'v_permlane32_swap_b32 v%d, v%d' % (a, b), 'v_add_f32 v%d, v%d, v%d' % (a, a, b), 'v_mov_b32 v%d, v%d' % (b, a),
            M(1), 's_nop 0', 'v_permlane16_swap_b32 v%d, v%d' % (a, b), 'v_add_f32 v%d, v%d, v%d' % (a, a, b), 'v_mov_b32 v%d, v%d' % (b, a),
            M(2), 's_nop 0', 'v_permlane32_swap_b32 v%d, v%d' % (a, b), rcps(p)[0], M(3), rcps(p)[1], M(4)]
    for x in head:
        if callable(x): x()
        else: e(x)
    tk()
    seq = []
    for (dt, j) in U:
        x = vO + 8*dt + 4*j
        u = ['v_mul_f32 v%d, v%d, v%d' % (x+r, x+r, vR[j]) for r in range(4)]
        if len(seq)//7 >= FPK:
            sel = 'op_sel:[0,1] op_sel_hi:[1,1]' if vR[j] % 2 else 'op_sel_hi:[1,0]'
            u = ['v_pk_mul_f32 %s, %s, %s %s' % (vr(x, 2), vr(x, 2), vr(vR[j] & ~1, 2), sel), None,
                 'v_pk_mul_f32 %s, %s, %s %s' % (vr(x+2, 2), vr(x+2, 2), vr(vR[j] & ~1, 2), sel), None]
        u += ['v_cvt_pk_bf16_f32 v%d, v%d, v%d' % (x, x, x+1), 'v_cvt_pk_bf16_f32 v%d, v%d, v%d' % (x+1, x+2, x+3)]
        u += [('ds_write_b64 v%d, %s offset:%d' % (vW + dt % 4, vr(x, 2), 4096*(dt//4) + 2048*j), 'w')]
        seq += u
    def rd(q):
        rho, j = q//2, q % 2; off = 4096*rho + 2048*j; x = vS[0] + 8*q
        return [('ds_read_b128 %s, v%d offset:%d' % (vr(x, 4), vRD, off), 'r%d' % (2*q)),
                ('ds_read_b64 %s, v%d offset:%d' % (vr(x+4, 2), vRD, off + 1024 + 8), 'r%d' % (2*q+1)),
                ('ds_read_b64 %s, v%d offset:%d' % (vr(x+6, 2), vRD, off + 1024), 'r%d' % (2*q+1))]
    def st(k):
        q = k//2; rho, j = q//2, q % 2
        def f():
            need('r%d' % k)
            if flag('st256x'):
                if k == 0: e('v_add_u32 v%d, 0x4000, v%d' % (vAV2, vST))
                e('buffer_store_dwordx4 %s, v%d, %s, s%d offen%s' % (vr(vS[0]+4*k, 4), vAV2 if k % 2 else vST, sr(sOS, 4), SOFF[k//2], SF))
                return
            e('buffer_store_dwordx4 %s, v%d, %s, s%d offen offset:%d%s' % (vr(vS[0]+4*k, 4), vST, sr(sOS, 4), SOFF[2*j + k % 2], 128*rho, SF))
        return f
    ex_ = {}
    for g in range(5, 16): ex_.setdefault(4*(g-5) + 3, []).append(M(g))
    for q in range(3):
        ex_.setdefault(28*(q+1), []).extend(rd(q))
        ex_.setdefault(28*(q+1) + FST[0], []).append(st(2*q))
        ex_.setdefault(28*(q+1) + FST[1] + (q < 2 and FST[1] % 28 == 0), []).append(st(2*q+1))
    INFIN[0] = True
    spread(seq, ex_)
    INFIN[0] = False
    tk()
    for x in rd(3): e(x)
    for k_ in sorted(ex_):
        if k_ >= len(seq):
            for y in ex_[k_]: y()
    st(6)(); st(7)()
    tk(); tk()
    tflush()
    tkflush()
    e('s_branch L_fin')
def trans(p):
    lab('L_trans%d' % p)
    del dsq[:]
    if PTR is not None: e('s_setprio %d' % int(PTR))
    e('s_lshr_b32 s%d, s%d, 22' % (sK1, sD+7))
    e('s_add_u32 s%d, s%d, s%d' % (sK1, sK1, sW))
    e('s_and_b32 s%d, s%d, 3' % (sK1, sK1))
    if IDLE[0]:
        e('s_lshl_b32 s%d, s%d, 17' % (sT0, sK1))
        e('s_add_u32 s%d, s%d, s%d' % (sT0, sT0, sD+5))
        e('s_cmp_ge_u32 s%d, s%d' % (sT0, sD+6))
        e('s_cbranch_scc0 L_trans%d' % p)
    e('s_add_u32 s%d, s%d, 1' % (sT0, sK1))
    e('s_mul_i32 s%d, s%d, %d' % (sT0, sT0, SLOT))
    e('s_add_u32 s%d, s%d, s%d' % (sT0, sT0, sX))
    e('s_cselect_b32 s%d, 0x%x, 0' % (sT1, kb(0)))
    e('s_add_u32 s%d, s%d, s%d' % (sT0, sT0, sT1))
    e(set_ka(sT0))
    e('s_cmp_ge_u32 s%d, 2' % sW)
    e('s_cselect_b32 s%d, s%d, s%d' % (sT0, sVrd[0], sVa))
    tickA()
    e('s_waitcnt vmcnt(6)')
    e('s_barrier')
    tickB()
    stamp(3)
    qr = [kread(f, tag='q') for f in KORD]
    fill = VREADS[:6] + qr[:2] + VREADS[6:] + qr[2:]
    for _ in range(6): e(fill.pop(0))
    emit_fill(xlane('v_add_f32', vL[p][0], vL[p][1])[1:], fill)
    tk()
    ps = prescale_ops()
    nm = ['v_mov_b32 v%d, 0' % (vNM+r) for r in range(8)]
    pre = {0: rcps(p) + nm[:2], 1: epi_addr()[:3] + nm[2:4], 2: epi_addr()[3:] + nm[4:]}
    so = epi_soff() + ['s_lshl_b32 s%d, s%d, 17' % (sWq, sK1)] + next_k(sKrd[0], sX)
    for g in range(8):
        if g % 2 == 0: need('v%d' % (g+1))
        e(pv(g, vP[p]))
        for x in fill[:2]: e(x)
        del fill[:2]
        if g < 3:
            for x in pre[g]: e(x)
        else:
            if g == 3: need('q0')
            if g == 4: e(set_ka(sX))
            if g == 6: need('q4')
            for x in so[:2]: e(x)
            del so[:2]
            for x in ps[:6]: e(x)
            del ps[:6]
    assert not fill and not so
    e(m0k(sKrd[0]))
    for x in ps[:10]: e(x)
    del ps[:10]
    tk()
    drain(vm=2)
    e('s_barrier')
    tk()
    nk = next_k(sKrd[0], sKrd[0])
    N = {8: [dk(0)], 10: [dk(1)], 11: [KADV] + nk + [m0k(sKrd[0])], 12: [dk(0)], 14: [dk(1)], 15: [KADV] + nk + [m0k(sKrd[0])]}
    for g in range(8, 16):
        e(pv(g, vP[p]))
        for x in N.get(g, []): e(x)
        ns = norm_stage((g-8)//2)
        for x in (ns[:7] if g % 2 == 0 else ns[7:]): e(x)
    tk()
    for x in rdback(0): e(x)
    for f in KORD: e(kread(f, vV))
    ns = norm_stage(4) + norm_stage(5) + norm_stage(6) + norm_stage(7)
    spread(ns, {10: [lambda: store(0, 0)], 22: [lambda: store(0, 1)], 34: [lambda: store(0, 2)], 46: [lambda: store(0, 3)]})
    tk()
    for x in rdback(1): e(x)
    qk0_with_prescale(ps, {0: [dk(0)], 2: [dk(1)], 3: [KADV] + nk + [m0k(sKrd[0])],
                           4: [lambda: store(1, 0)], 6: [lambda: store(1, 1)], 8: [lambda: store(1, 2)], 10: [lambda: store(1, 3)],
                           12: [dk(0), 's_mov_b64 %s, %s' % (sr(sD, 2), sr(sD+4, 2)), 's_mov_b64 %s, %s' % (sr(sD+2, 2), sr(sD+6, 2))],
                           13: ['s_mov_b64 %s, 0' % sr(sD+4, 2), 's_mov_b64 %s, 0' % sr(sD+6, 2), 's_mov_b32 s%d, 0' % sFirst],
                           15: [dk(1), KADV]})
    tk(); tk()
    tflush()
    tkflush()
    stamp(4)
    tickA()
    e('s_waitcnt vmcnt(12)')
    e('s_branch L_pre0')

def mainloop():
    step0()
    body(1, 'F', '0', first=True)
    body(0, '0', '1')
    body(1, '1', '0', loop=True)
    handler('0', 0, 'L_ret0')
    handler('1', 1, 'L_ret1')
    handler('F', None, 'L_retFx')
    handler('S', None, 'L_retSx')
mainloop()
for p in (0, 1):
    tail1(p, False)
    tail1(p, True)
if RT:
    for p in (0, 1):
        body_short(p)
        tail1(1-p, False, True)
        tail1(1-p, True, True)
if not NOIDLE:
    IDLE[0] = True
    mainloop()
    for p in (0, 1):
        tail1(p, False)
        tail1(p, True)
    lab('L_p1')
    del dsq[:]
    p1()
    e('s_branch L_pre0')
    IDLE[0] = False
for tag, p in (('F', 1), ('0', 0), ('1', 1)):
    lab('L_fb%s' % tag)
    fallback(p, 'L_fbret%s' % tag)
if RT:
    for p in (0, 1):
        lab('L_fbR%d' % p)
        fallback(p, 'L_fbretR%d' % p)
for p in (0, 1):
    if RT:
        lab('L_fbTR%d' % p)
        for x in (4, 5, 6, 7, 12, 13, 14, 15): e('v_mov_b32 v%d, 0xff800000' % (vS[p]+x))
    lab('L_fbT%d' % p)
    fallback(p, 'L_fbretT%d' % p, has_next=False, ret2='L_fbretE%d' % p)
lab('L_fbS')
fallback(0, 'L_fbretS', first=True)

lab('L_fin')
if REP:
    e('s_waitcnt vmcnt(0) lgkmcnt(0)')
    e('s_barrier')
    e('s_sub_u32 s79, s79, 1')
    e('s_cbranch_scc0 L_again')
if STAMP:
    stamp(6)
    e('s_waitcnt vmcnt(0)')
    stamp(7)
if PROF:
    e('s_waitcnt vmcnt(0)')
    e('s_memtime s[68:69]')
    e('s_memrealtime s[72:73]')
    e('s_waitcnt lgkmcnt(0)')
    e('v_writelane_b32 v253, s76, 62')
    e('v_writelane_b32 v254, s74, 62')
    e('v_writelane_b32 v253, s68, 63')
    e('v_writelane_b32 v254, s72, 63')
    e('v_writelane_b32 v253, s71, 61')
    e('s_and_b32 s65, s65, 0xffff')
    e('s_mov_b32 s66, 0x1000000')
    e('s_mov_b32 s67, 0x20000')
    e('s_lshl_b32 s70, s2, 2')
    e('s_add_u32 s70, s70, s%d' % sW)
    e('s_lshl_b32 s70, s70, 9')
    e('v_lshlrev_b32 v252, 2, v%d' % vLane)
    e('s_nop 4')
    e('buffer_store_dword v253, v252, s[64:67], s70 offen')
    e('buffer_store_dword v254, v252, s[64:67], s70 offen offset:256')
lab('L_end')
e('s_endpgm')
out.append('.p2align %d' % (8 if flag('xt') else 6))
out.append('.type L_table,@object')
lab('L_table')
if flag('xt'): table = [table[(i >> 6) + 8*(i & 63)] for i in range(512)]
for row in table:
    out.append('    .long ' + ', '.join('0x%08x' % x for x in row))
out.append('.size L_table, %d' % (ROW*NWG))
out.append('''.section .rodata,"a"
.p2align 6
.amdhsa_kernel %s_kernel
  .amdhsa_next_free_vgpr %d
  .amdhsa_next_free_sgpr %d
  .amdhsa_accum_offset %d
  .amdhsa_group_segment_fixed_size 0
  .amdhsa_kernarg_size 56
  .amdhsa_user_sgpr_count 2
  .amdhsa_user_sgpr_kernarg_segment_ptr 1
  .amdhsa_system_sgpr_workgroup_id_x 1
.end_amdhsa_kernel''' % (NAME, NVGPR, NSGPR, NVGPR))
dst = [a for a in sys.argv[1:] if not a.startswith('--')]
open(dst[0] if dst else 'cdna_kernels/%s.s' % NAME, 'w').write('\n'.join(out) + '\n')
```

```python
import sys
src, dst, mode, V0, K = sys.argv[1], sys.argv[2], sys.argv[3], int(sys.argv[4]), int(sys.argv[5])
L = open(src).read().split('\n')
i = L.index('    s_getpc_b64 s[46:47]')
L = L[:i] + ['    s_memrealtime s[66:67]', '    s_mov_b32 s69, s2', '    s_load_dwordx4 s[72:75], s[0:1], 40'] + L[i:]
j = L.index('L_fin:')
p = ['s_waitcnt vmcnt(0)', 's_barrier', 's_memrealtime s[70:71]', 's_cmp_eq_u32 s32, 0', 's_cbranch_scc0 L_end',
     's_lshl_b32 s68, s69, 3', 'v_mov_b32 v0, s68', 's_waitcnt lgkmcnt(0)', 's_add_u32 s5, s66, 2300',
     'L_sq:', 's_sleep 8', 's_memrealtime s[6:7]', 's_waitcnt lgkmcnt(0)', 's_sub_u32 s8, s6, s5', 's_cmp_lt_i32 s8, 0', 's_cbranch_scc1 L_sq', 'v_mov_b32 v2, s66', 'v_mov_b32 v3, s70', 'v_mov_b32 v4, 0', 'v_mov_b32 v5, 1',
     's_mov_b64 exec, 1', 'global_store_dwordx2 v0, v[2:3], s[74:75] sc0 sc1', 's_waitcnt vmcnt(0)',
     'global_atomic_add v6, v4, v5, s[72:73] sc0 sc1', 's_waitcnt vmcnt(0)', 'v_readfirstlane_b32 s68, v6', 's_mov_b64 exec, -1',
     's_and_b32 s68, s68, 511', 's_cmp_eq_u32 s68, 511', 's_cbranch_scc0 L_end',
     'v_mbcnt_lo_u32_b32 v0, -1, 0', 'v_mbcnt_hi_u32_b32 v0, -1, v0', 'v_lshlrev_b32 v0, 3, v0']
for k in range(8): p.append('global_load_dwordx2 v[%d:%d], v0, s[74:75] offset:%d sc0 sc1' % (10+2*k, 11+2*k, 512*k))
p.append('s_waitcnt vmcnt(0)')
p += ['v_mov_b32 v2, v10', 'v_mov_b32 v3, v11', 'v_mov_b32 v4, 0']
for k in range(1, 8): p += ['v_min_u32 v2, v2, v%d' % (10+2*k), 'v_max_u32 v3, v3, v%d' % (11+2*k)]
for k in range(4): p += ['v_max_u32 v%d, v%d, v%d' % (11+2*k, 11+2*k, 19+2*k)]
p += ['s_nop 1', 's_mov_b32 s4, -1', 's_mov_b32 s5, 0', 's_mov_b32 s6, -1', 's_mov_b32 s7, 0']
x = int(mode[1]) if len(mode) > 1 else -1
for l in range(64):
    p += ['v_readlane_b32 s8, v2, %d' % l, 'v_readlane_b32 s9, v3, %d' % l, 's_min_u32 s4, s4, s8', 's_max_u32 s5, s5, s9']
    if l % 8 == x: p += ['s_min_u32 s6, s6, s8', 's_max_u32 s7, s7, s9']
if mode == 'M':
    p += ['s_mov_b32 s7, 0']
    for k in range(4):
        for l in range(64): p += ['v_readlane_b32 s9, v%d, %d' % (11+2*k, l), 's_sub_u32 s9, s9, s4', 's_add_u32 s7, s7, s9']
    p += ['s_lshr_b32 s5, s7, 8']
elif mode[0] in 'AB':
    p += ['s_mov_b32 s7, 0']
    for k in range(4):
        for l in range(x, 64, 8): p += ['v_readlane_b32 s9, v%d, %d' % ((10 if mode[0] == 'A' else 11)+2*k, l), 's_sub_u32 s9, s9, s4', 's_add_u32 s7, s7, s9']
    p += ['s_lshr_b32 s5, s7, 5']
else:
    p += ['s_sub_u32 s5, s%d, s4' % {'T': 5, 'S': 6, 'E': 7}[mode[0]]]
p += ['s_sub_i32 s5, s5, %d' % V0, 's_max_i32 s5, s5, 0', 's_min_i32 s5, s5, 1000', 's_mul_i32 s5, s5, %d' % K,
      's_memrealtime s[6:7]', 's_waitcnt lgkmcnt(0)', 's_add_u32 s5, s5, s6',
      'L_sp:', 's_memrealtime s[6:7]', 's_waitcnt lgkmcnt(0)', 's_sub_u32 s8, s6, s5', 's_cmp_lt_i32 s8, 0', 's_cbranch_scc1 L_sp']
L = L[:j+1] + [(y if y.endswith(':') else '    ' + y) for y in p] + L[j+1:]
open(dst, 'w').write('\n'.join(L))
```

```python
import sys
src, dst, mode, V0, K = sys.argv[1], sys.argv[2], sys.argv[3], int(sys.argv[4]), int(sys.argv[5])
L = open(src).read().split('\n')
i = L.index('    s_getpc_b64 s[46:47]')
L = L[:i] + ['    s_memrealtime s[66:67]', '    s_mov_b32 s69, s2', '    s_load_dwordx4 s[72:75], s[0:1], 40'] + L[i:]
j = L.index('L_fin:')
p = ['s_waitcnt vmcnt(0)', 's_barrier', 's_memrealtime s[70:71]', 's_cmp_eq_u32 s32, 0', 's_cbranch_scc0 L_end',
     's_lshl_b32 s68, s69, 3', 'v_mov_b32 v0, s68', 's_waitcnt lgkmcnt(0)', 's_add_u32 s5, s66, 2300',
     'L_sq:', 's_sleep 8', 's_memrealtime s[6:7]', 's_waitcnt lgkmcnt(0)', 's_sub_u32 s8, s6, s5', 's_cmp_lt_i32 s8, 0', 's_cbranch_scc1 L_sq', 'v_mov_b32 v2, s66', 'v_mov_b32 v3, s70', 'v_mov_b32 v4, 0', 'v_mov_b32 v5, 1',
     's_mov_b64 exec, 1', 'global_store_dwordx2 v0, v[2:3], s[74:75] sc0 sc1', 's_waitcnt vmcnt(0)',
     'global_atomic_add v6, v4, v5, s[72:73] sc0 sc1', 's_waitcnt vmcnt(0)', 'v_readfirstlane_b32 s68, v6', 's_mov_b64 exec, -1',
     's_and_b32 s68, s68, 511', 's_cmp_eq_u32 s68, 511', 's_cbranch_scc0 L_end',
     'v_mbcnt_lo_u32_b32 v0, -1, 0', 'v_mbcnt_hi_u32_b32 v0, -1, v0', 'v_lshlrev_b32 v0, 3, v0']
for k in range(8): p.append('global_load_dwordx2 v[%d:%d], v0, s[74:75] offset:%d sc0 sc1' % (10+2*k, 11+2*k, 512*k))
p.append('s_waitcnt vmcnt(0)')
p += ['v_mov_b32 v2, v10', 'v_mov_b32 v3, v11', 'v_mov_b32 v4, 0']
for k in range(1, 8): p += ['v_min_u32 v2, v2, v%d' % (10+2*k), 'v_max_u32 v3, v3, v%d' % (11+2*k)]
for k in range(4): p += ['v_max_u32 v%d, v%d, v%d' % (11+2*k, 11+2*k, 19+2*k)]
p += ['s_nop 1', 's_mov_b32 s4, -1', 's_mov_b32 s5, 0', 's_mov_b32 s6, -1', 's_mov_b32 s7, 0']
xs = [int(c) for c in mode[1:]]; x = xs[0] if xs else -1
for l in range(64):
    p += ['v_readlane_b32 s8, v2, %d' % l, 'v_readlane_b32 s9, v3, %d' % l, 's_min_u32 s4, s4, s8', 's_max_u32 s5, s5, s9']
    if l % 8 in xs: p += ['s_min_u32 s6, s6, s8', 's_max_u32 s7, s7, s9']
if mode == 'M':
    p += ['s_mov_b32 s7, 0']
    for k in range(4):
        for l in range(64): p += ['v_readlane_b32 s9, v%d, %d' % (11+2*k, l), 's_sub_u32 s9, s9, s4', 's_add_u32 s7, s7, s9']
    p += ['s_lshr_b32 s5, s7, 8']
elif mode[0] in 'AB':
    p += ['s_mov_b32 s7, 0']
    for k in range(4):
        for l in [l for l in range(64) if l % 8 in xs]: p += ['v_readlane_b32 s9, v%d, %d' % ((10 if mode[0] == 'A' else 11)+2*k, l), 's_sub_u32 s9, s9, s4', 's_add_u32 s7, s7, s9']
    p += ['s_lshr_b32 s5, s7, %d' % {1: 5, 2: 6, 4: 7}[len(xs)]]
else:
    p += ['s_sub_u32 s5, s%d, s4' % {'T': 5, 'S': 6, 'E': 7}[mode[0]]]
p += ['s_sub_i32 s5, s5, %d' % V0, 's_max_i32 s5, s5, 0', 's_min_i32 s5, s5, 1000', 's_mul_i32 s5, s5, %d' % K,
      's_memrealtime s[6:7]', 's_waitcnt lgkmcnt(0)', 's_add_u32 s5, s5, s6',
      'L_sp:', 's_memrealtime s[6:7]', 's_waitcnt lgkmcnt(0)', 's_sub_u32 s8, s6, s5', 's_cmp_lt_i32 s8, 0', 's_cbranch_scc1 L_sp']
L = L[:j+1] + [(y if y.endswith(':') else '    ' + y) for y in p] + L[j+1:]
open(dst, 'w').write('\n'.join(L))
```
